```python
import torch

def _softmax(x, axis=-1):
    return torch.softmax(x, dim=axis)
def _gelu(x):
    return torch.nn.functional.gelu(x, approximate="tanh")
def _silu(x):
    return torch.nn.functional.silu(x)
def _sigmoid(x):
    return torch.sigmoid(x)
def _layernorm(x, axis=-1, eps=1e-5):
    m = x.mean(dim=axis, keepdim=True)
    v = x.var(dim=axis, keepdim=True, unbiased=False)
    return (x - m) / torch.sqrt(v + eps)
def _scatter_add(tgt, idx, src, axis=0):
    return tgt.clone().index_add_(axis, idx, src)
def _segment_sum(src, seg, n):
    out = torch.zeros((n,) + src.shape[1:], dtype=src.dtype)
    return out.index_add_(0, seg, src)
def _pad(x, pw):
    flat = tuple(v for pair in reversed(pw) for v in pair)
    return torch.nn.functional.pad(x, flat)

kernel_name = 'parallel_sum__ssm_conv_s4d__glu_gated_reglu__prompt'

def setup_inputs():

    _w = (lambda a: (lambda t: t.to(torch.bfloat16) if t.is_floating_point() else t)(torch.as_tensor(a)))
    def _A_setup():
        Bsz, L, D, N = 1, 2048, 448, 256
        return {
            "u": _w((lambda *s: torch.randn(*s, dtype=torch.bfloat16) * 0.05)(Bsz, L, D)),
            "log_A_real": _w((lambda *s: torch.randn(*s, dtype=torch.bfloat16) * 6.4)(D, N) * 0.5),
            "A_imag": _w((lambda *s: torch.randn(*s, dtype=torch.bfloat16) * 0.05)(D, N) * 3.14),
            "C_real": _w((lambda *s: torch.randn(*s, dtype=torch.bfloat16) * 0.1)(D, N) / N ** 0.5),
            "C_imag": _w((lambda *s: torch.randn(*s, dtype=torch.bfloat16) * 0.1)(D, N) / N ** 0.5),
            "log_dt": _w((lambda *s: torch.randn(*s, dtype=torch.bfloat16) * 0.05)(D) * 0.5 - 4.0),
            "D_skip": _w((lambda *s: torch.randn(*s, dtype=torch.bfloat16) * 0.05)(D)),
        }
    _A_in = _A_setup()

    def _B_setup():
        B, S, D, F = 1, 2048, 448, 1792
        return {
            "x": _w((lambda *s: torch.randn(*s, dtype=torch.bfloat16) * 0.05)(B, S, D)),
            "W_gate": _w((lambda *s: torch.randn(*s, dtype=torch.bfloat16) * 0.4)(D, F) * (2.0 / D) ** 0.5),
            "W_up": _w((lambda *s: torch.randn(*s, dtype=torch.bfloat16) * 0.4)(D, F) * (2.0 / D) ** 0.5),
            "W_down": _w((lambda *s: torch.randn(*s, dtype=torch.bfloat16) * 0.4)(F, D) * (1.0 / F) ** 0.5),
        }
    _B_in = _B_setup()

    return {
        "A_u": _A_in["u"],
        "A_log_A_real": _A_in["log_A_real"],
        "A_A_imag": _A_in["A_imag"],
        "A_C_real": _A_in["C_real"],
        "A_C_imag": _A_in["C_imag"],
        "A_log_dt": _A_in["log_dt"],
        "A_D_skip": _A_in["D_skip"],
        "B_x": _B_in["x"],
        "B_W_gate": _B_in["W_gate"],
        "B_W_up": _B_in["W_up"],
        "B_W_down": _B_in["W_down"],
    }

def reference(A_u, A_log_A_real, A_A_imag, A_C_real, A_C_imag, A_log_dt, A_D_skip, B_x, B_W_gate, B_W_up, B_W_down):
    def _A_ref(u, log_A_real, A_imag, C_real, C_imag, log_dt, D_skip):
        L = u.shape[1]
        dt = torch.exp(log_dt)
        A = -torch.exp(log_A_real) + 1j * A_imag
        C = (C_real + 1j * C_imag) * dt[:, None]
        pos = (lambda x, dt: x.to(dt))(torch.arange(L), log_dt.dtype)
        P = torch.exp((A * dt[:, None])[:, :, None] * pos[None, None, :])
        K = 2.0 * torch.einsum("dn,dnl->dl", C, P).real
        L2 = 2 * L
        u_t = (lambda x, *d: x.permute(*d))(u, 0, 2, 1)
        Kf = (lambda x, *a, **k: torch.fft.rfft(x.float(), *a, **k))(K, L2)
        Uf = (lambda x, *a, **k: torch.fft.rfft(x.float(), *a, **k))(u_t, L2)
        y = (lambda x, *a, **k: torch.fft.irfft(x, *a, **k).to(torch.bfloat16))(Uf * Kf[None, :, :], L2)[:, :, :L]
        y = (lambda x, *d: x.permute(*d))(y, 0, 2, 1)
        return y + u * D_skip[None, None, :]

    def _B_ref(x, W_gate, W_up, W_down):
        gate = torch.einsum("bsd,df->bsf", x, W_gate)
        up = torch.einsum("bsd,df->bsf", x, W_up)
        gate = gate * (lambda x, dt: x.to(dt))(gate > 0, gate.dtype)
        h = gate * up
        return torch.einsum("bsf,fd->bsd", h, W_down)

    x = A_u
    xn = _layernorm(x, axis=-1)
    return x + _A_ref(xn, A_log_A_real, A_A_imag, A_C_real, A_C_imag, A_log_dt, A_D_skip) + _B_ref(xn, B_W_gate, B_W_up, B_W_down)
```

```python
import sys, struct

NAME = "parallel_sum__ssm_conv_s4d__glu_gated_reglu__prompt"
OPT = dict(diag=0, interleave=1)
for a in sys.argv[2:]:
    k, val = a.split("=")
    OPT[k] = int(val)

OFF_U = 0x0
OFF_ST = 0x200000
OFF_SS = 0x210000
OFF_FL = 0x220000
OFF_Y = 0x240000
OFF_H = 0x400000
OFF_TS = 0xC00000
WS_BYTES = 0x1000000

KT = 0
KT_SZ = 8704
UB = 34816
UB_SZ = 4576
TB = UB + 2 * UB_SZ
TB_SZ = 2568
SF = TB + 2 * TB_SZ
XR = 49152
WR = 98304
WD = 49152
WD_SZ = 28672
PR = 49152
PR_SZ = 20480
KR_PITCH = 4160
EX_OFF = 8320
LDS_BYTES = 163840

LOG2E = 0x3fb8aa3b
NLOG2E = 0xbfb8aa3b
INV2PI = 0x3e22f983


def f2u(x):
    return struct.unpack("<I", struct.pack("<f", x))[0]


def v(n, c=1):
    return f"v{n}" if c == 1 else f"v[{n}:{n+c-1}]"


def s(n, c=1):
    return f"s{n}" if c == 1 else f"s[{n}:{n+c-1}]"


class Asm:
    def __init__(self):
        self.l = []
        self.vm = 0
        self.uid = 0

    def __call__(self, t):
        self.l.append("    " + t)

    def label(self, n):
        self.l.append(n + ":")

    def c(self, t):
        self.l.append("    ; " + t)

    def vmem(self, t):
        self(t)
        self.vm += 1
        return self.vm

    def wait_vm(self, ident):
        n = self.vm - ident
        assert 0 <= n <= 63, n
        self(f"s_waitcnt vmcnt({n})")

    def new(self, p):
        self.uid += 1
        return f"L_{p}{self.uid}"


A = Asm()

sWG, sWAVE = 2, 3
pX, pLA, pAI, pCR, pCI, pLDT, pDS = 4, 6, 8, 10, 12, 14, 16
pWG, pWU, pWD, pOUT, pDBG, pWS = 20, 22, 24, 26, 28, 30
rX, rWG, rWU, rWD, rWS = 32, 36, 40, 44, 48
sXCD, sJ, sRB, sFB, sRB64, sCB, sCH0 = 52, 53, 54, 55, 56, 57, 58
sT0, sT1, sT2, sT3, sT4, sT5 = 59, 60, 61, 62, 63, 64
sW1, sW2, sW3, sCNT = 65, 66, 67, 68
sDK = 72
sTS = 88
vLANE = 1


def stamp(i):
    if OPT["diag"]:
        A(f"s_memrealtime {s(sTS+2*i,2)}")
        A("s_waitcnt lgkmcnt(0)")


def stamp_flush(n):
    if not OPT["diag"]:
        return
    A(f"s_lshl_b32 {s(sT0)}, {s(sWG)}, 3")
    A(f"s_add_u32 {s(sT0)}, {s(sT0)}, {s(sWAVE)}")
    A(f"s_lshl_b32 {s(sT0)}, {s(sT0)}, 5")
    A(f"s_add_u32 {s(sT0)}, {s(sT0)}, {OFF_TS}")
    A(f"v_mov_b32 v2, {s(sT0)}")
    for i in range(n):
        A(f"v_mov_b32 v3, {s(sTS+2*i)}")
        A(f"global_store_dword v2, v3, {s(pWS,2)} offset:{4*i}")
        A("s_nop 1")


def srd(r, p, nbytes):
    A(f"s_mov_b32 {s(r)}, {s(p)}")
    A(f"s_and_b32 {s(r+1)}, {s(p+1)}, 0xffff")
    A(f"s_mov_b32 {s(r+2)}, {nbytes}")
    A(f"s_mov_b32 {s(r+3)}, 0x20000")


SPIN_MAX = 1 << 16


def poll_global(vaddr, vtmp, base, first_issued=False):
    lp, done, chk = A.new("pl"), A.new("pd"), A.new("pc")
    A(f"s_mov_b32 {s(sCNT)}, 0")
    if first_issued:
        A(f"s_branch {chk}")
    A.label(lp)
    A(f"global_load_dword {v(vtmp)}, {v(vaddr)}, {s(base,2)} sc1")
    A.label(chk)
    A("s_waitcnt vmcnt(0)")
    A(f"v_cmp_ne_u32 vcc, 0, {v(vtmp)}")
    A(f"s_add_u32 {s(sCNT)}, {s(sCNT)}, 1")
    A("s_cmp_eq_u64 vcc, exec")
    A(f"s_cbranch_scc1 {done}")
    A("s_sleep 1")
    A(f"s_cmp_lt_u32 {s(sCNT)}, {SPIN_MAX}")
    A(f"s_cbranch_scc1 {lp}")
    A.label(done)


def pair_sync(phase, vMine, vOther, vt):
    lp, done = A.new("sl"), A.new("sd")
    A(f"v_mov_b32 {v(vt)}, {phase}")
    A(f"ds_write_b32 {v(vMine)}, {v(vt)}")
    A(f"s_mov_b32 {s(sCNT)}, 0")
    A.label(lp)
    A(f"ds_read_b32 {v(vt)}, {v(vOther)}")
    A(f"s_add_u32 {s(sCNT)}, {s(sCNT)}, 1")
    A("s_waitcnt lgkmcnt(0)")
    A(f"v_cmp_le_u32 vcc, {phase}, {v(vt)}")
    A(f"s_cbranch_vccnz {done}")
    A(f"s_cmp_lt_u32 {s(sCNT)}, {SPIN_MAX*16}")
    A(f"s_cbranch_scc1 {lp}")
    A.label(done)


def prologue():
    A(f"s_cmp_ge_u32 {s(sWG)}, 256")
    A("s_cbranch_scc1 L_end")
    A(f"s_load_dwordx16 {s(4,16)}, s[0:1], 0")
    A(f"s_load_dwordx8 {s(20,8)}, s[0:1], 64")
    A(f"s_load_dwordx4 {s(28,4)}, s[0:1], 96")
    stamp_first = OPT["diag"]
    if stamp_first:
        A(f"s_memrealtime {s(sTS,2)}")
    A(f"s_getpc_b64 {s(sT1,2)}")
    A.label("L_pc")
    A("v_lshlrev_b32 v2, 7, v0")
    A("v_min_u32 v2, L_end-L_pc, v2")
    A(f"global_load_dword v95, v2, {s(sT1,2)}")
    A("v_lshrrev_b32 v2, 6, v0")
    A(f"v_and_b32 {v(vLANE)}, 63, v0")
    A(f"v_readfirstlane_b32 {s(sWAVE)}, v2")
    A(f"s_and_b32 {s(sXCD)}, {s(sWG)}, 7")
    A(f"s_lshr_b32 {s(sJ)}, {s(sWG)}, 3")
    A("s_waitcnt lgkmcnt(0)")
    srd(rX, pX, 2048 * 448 * 2)
    srd(rWG, pWG, 448 * 1792 * 2)
    srd(rWU, pWU, 448 * 1792 * 2)
    srd(rWD, pWD, 448 * 1792 * 2)
    srd(rWS, pWS, WS_BYTES)
    A(f"s_and_b32 {s(sT0)}, {s(sXCD)}, 3")
    A(f"s_lshr_b32 {s(sT1)}, {s(sXCD)}, 2")
    A(f"s_cmp_lt_u32 {s(sJ)}, 4")
    A("s_cbranch_scc1 L_side")
    A(f"s_sub_u32 {s(sJ)}, {s(sJ)}, 4")
    A(f"s_and_b32 {s(sT2)}, {s(sJ)}, 3")
    A(f"s_lshr_b32 {s(sCB)}, {s(sJ)}, 2")
    A(f"s_lshl_b32 {s(sRB)}, {s(sT0)}, 2")
    A(f"s_add_u32 {s(sRB)}, {s(sRB)}, {s(sT2)}")
    A(f"s_mul_i32 {s(sFB)}, {s(sT1)}, 7")
    A(f"s_add_u32 {s(sFB)}, {s(sFB)}, {s(sCB)}")
    A(f"s_lshl_b32 {s(sRB64)}, {s(sT0)}, 1")
    A(f"s_add_u32 {s(sRB64)}, {s(sRB64)}, {s(sT1)}")
    A(f"s_lshl_b32 {s(sRB64)}, {s(sRB64)}, 2")
    A(f"s_add_u32 {s(sRB64)}, {s(sRB64)}, {s(sT2)}")
    A(f"s_mul_i32 {s(sCH0)}, {s(sXCD)}, 28")
    A(f"s_add_u32 {s(sCH0)}, {s(sCH0)}, {s(sJ)}")
    A(f"s_lshl_b32 {s(sCH0)}, {s(sCH0)}, 1")
    A(f"s_cmp_ge_u32 {s(sWAVE)}, 4")
    A("s_cbranch_scc1 L_xw")


def side():
    A.label("L_side")
    A.vm = 0
    XB, F, WB, SA = 8, 40, 100, 160
    vR, vQ, vOFF, vT, vT2, vM, vRI = 2, 3, 4, 5, 6, 7, 36
    sRG, sUNIT, sFB64 = sRB, sFB, sRB64
    A(f"s_lshl_b32 {s(sRG)}, {s(sT0)}, 1")
    A(f"s_add_u32 {s(sRG)}, {s(sRG)}, {s(sT1)}")
    A(f"s_lshl_b32 {s(sRG)}, {s(sRG)}, 2")
    A(f"s_add_u32 {s(sRG)}, {s(sRG)}, {s(sJ)}")
    A(f"s_lshl_b32 {s(sRG)}, {s(sRG)}, 3")
    A(f"s_add_u32 {s(sRG)}, {s(sRG)}, {s(sWAVE)}")
    A(f"s_lshl_b32 {s(sUNIT)}, {s(sT0)}, 2")
    A(f"s_add_u32 {s(sUNIT)}, {s(sUNIT)}, {s(sJ)}")
    A(f"s_mul_i32 {s(sFB64)}, {s(sT1)}, 14")
    A(f"s_min_u32 {s(sT2)}, {s(sUNIT)}, 13")
    A(f"s_add_u32 {s(sFB64)}, {s(sFB64)}, {s(sT2)}")
    A(f"v_lshrrev_b32 {v(vR)}, 3, {v(vLANE)}")
    A(f"v_and_b32 {v(vQ)}, 7, {v(vLANE)}")
    A(f"v_mul_u32_u24 {v(vOFF)}, 896, {v(vR)}")
    A(f"v_lshl_add_u32 {v(vOFF)}, {v(vQ)}, 4, {v(vOFF)}")
    A(f"s_mul_i32 {s(sT2)}, {s(sRG)}, {8*896}")
    for i in range(7):
        idx = A.vmem(f"buffer_load_dwordx4 {v(XB+4*i,4)}, {v(vOFF)}, {s(rX,4)}, {s(sT2)} offen offset:{128*i}")
    x_done = idx
    A(f"s_cmp_ge_u32 {s(sWAVE)}, 4")
    A(f"s_cselect_b32 {s(rWG)}, {s(rWU)}, {s(rWG)}")
    A(f"s_cselect_b32 {s(rWG+1)}, {s(rWU+1)}, {s(rWG+1)}")
    A(f"v_mul_u32_u24 {v(vT)}, 3584, {v(vR)}")
    A(f"v_lshl_add_u32 {v(vT)}, {v(vQ)}, 4, {v(vT)}")
    A(f"s_and_b32 {s(sT2)}, {s(sWAVE)}, 3")
    A(f"s_mul_i32 {s(sT2)}, {s(sT2)}, {112*3584}")
    A(f"s_lshl_b32 {s(sT3)}, {s(sFB64)}, 7")
    A(f"s_add_u32 {s(sT2)}, {s(sT2)}, {s(sT3)}")
    for i in range(14):
        idx = A.vmem(f"buffer_load_dwordx4 {v(WB+4*i,4)}, {v(vT)}, {s(rWG,4)}, {s(sT2)} offen")
        if i < 13:
            A(f"s_add_u32 {s(sT2)}, {s(sT2)}, {8*3584}")
    w_done = idx
    skip = A.new("nc")
    A(f"s_cmp_lg_u32 {s(sWG)}, 31")
    A(f"s_cbranch_scc1 {skip}")
    for i in range(4):
        A(f"v_mov_b32 {v(SA+i)}, 0")
    A(f"v_lshlrev_b32 {v(vT2)}, 4, v0")
    A(f"s_mov_b32 {s(sT3)}, {OFF_FL}")
    A(f"buffer_store_dwordx4 {v(SA,4)}, {v(vT2)}, {s(rWS,4)}, {s(sT3)} offen sc1")
    A("s_waitcnt vmcnt(0)")
    A.label(skip)
    A.wait_vm(x_done)
    stamp(1)
    for i in range(28):
        A(f"v_lshlrev_b32 {v(F+2*i)}, 16, {v(XB+i)}")
        A(f"v_and_b32 {v(F+2*i+1)}, 0xffff0000, {v(XB+i)}")
    C = XB
    for k in range(4):
        A(f"v_add_f32 {v(C+k)}, {v(F+k)}, {v(F+4+k)}")
    for i in range(8, 56):
        A(f"v_add_f32 {v(C+i%4)}, {v(C+i%4)}, {v(F+i)}")

    def reduce8():
        A(f"v_add_f32 {v(C)}, {v(C)}, {v(C+1)}")
        A(f"v_add_f32 {v(C+2)}, {v(C+2)}, {v(C+3)}")
        A(f"v_add_f32 {v(C)}, {v(C)}, {v(C+2)}")
        for m in ("quad_perm:[1,0,3,2]", "quad_perm:[2,3,0,1]", "row_half_mirror"):
            A("s_nop 1")
            A(f"v_add_f32_dpp {v(C)}, {v(C)}, {v(C)} {m} row_mask:0xf bank_mask:0xf")
    reduce8()
    A(f"v_mul_f32 {v(vM)}, {f2u(1.0/448):#x}, {v(C)}")
    for i in range(56):
        t = C + 4 + i % 4
        A(f"v_sub_f32 {v(t)}, {v(F+i)}, {v(vM)}")
        if i < 4:
            A(f"v_mul_f32 {v(C+i)}, {v(t)}, {v(t)}")
        else:
            A(f"v_fmac_f32 {v(C+i%4)}, {v(t)}, {v(t)}")
    reduce8()
    A(f"v_mul_f32 {v(C)}, {f2u(1.0/448):#x}, {v(C)}")
    A(f"v_cvt_pk_bf16_f32 {v(C+1)}, {v(vM)}, {v(C)}")
    A(f"v_lshlrev_b32 {v(vM)}, 16, {v(C+1)}")
    A(f"v_and_b32 {v(C)}, 0xffff0000, {v(C+1)}")
    A(f"v_add_f32 {v(C)}, {f2u(1e-5):#x}, {v(C)}")
    A(f"v_cvt_pk_bf16_f32 {v(C)}, {v(C)}, {v(C)}")
    A(f"v_lshlrev_b32 {v(C)}, 16, {v(C)}")
    A(f"v_sqrt_f32 {v(C)}, {v(C)}")
    A("s_nop 0")
    A(f"v_cvt_pk_bf16_f32 {v(C)}, {v(C)}, {v(C)}")
    A(f"v_lshlrev_b32 {v(C)}, 16, {v(C)}")
    A(f"v_rcp_f32 {v(vRI+1)}, {v(C)}")
    A(f"v_cvt_pk_bf16_f32 {v(vRI)}, -{v(vM)}, -{v(vM)}")
    A(f"v_lshlrev_b32 {v(vT2)}, 3, {v(vR)}")
    A(f"s_lshl_b32 {s(sT3)}, {s(sRG)}, 6")
    A(f"s_add_u32 {s(sT3)}, {s(sT3)}, {OFF_ST}")
    A(f"s_mov_b32 exec_lo, 0x01010101")
    A(f"s_mov_b32 exec_hi, 0x01010101")
    A.vmem(f"buffer_store_dwordx2 {v(vRI,2)}, {v(vT2)}, {s(rWS,4)}, {s(sT3)} offen sc1")
    A("s_mov_b64 exec, -1")
    for i in range(28):
        a, b = F + 2 * i, F + 2 * i + 1
        A(f"v_sub_f32 {v(a)}, {v(a)}, {v(vM)}")
        A(f"v_sub_f32 {v(b)}, {v(b)}, {v(vM)}")
        A(f"v_cvt_pk_bf16_f32 {v(b)}, {v(a)}, {v(b)}")
        A(f"v_lshlrev_b32 {v(a)}, 16, {v(b)}")
        A(f"v_and_b32 {v(b)}, 0xffff0000, {v(b)}")
        A(f"v_mul_f32 {v(a)}, {v(a)}, {v(vRI+1)}")
        A(f"v_mul_f32 {v(b)}, {v(b)}, {v(vRI+1)}")
        A(f"v_cvt_pk_bf16_f32 {v(XB+i)}, {v(a)}, {v(b)}")
    A(f"s_mul_i32 {s(sT3)}, {s(sWAVE)}, 7680")
    A(f"v_mul_u32_u24 {v(vT2)}, 960, {v(vR)}")
    A(f"v_lshl_add_u32 {v(vT2)}, {v(vQ)}, 4, {v(vT2)}")
    A(f"v_add_u32 {v(vT2)}, {s(sT3)}, {v(vT2)}")
    for i in range(7):
        A(f"ds_write_b128 {v(vT2)}, {v(XB+4*i,4)} offset:{128*i}")
    A(f"v_bfe_u32 {v(vT2)}, {v(vLANE)}, 2, 2")
    A(f"v_mul_u32_u24 {v(vT2)}, 960, {v(vT2)}")
    A(f"v_lshrrev_b32 {v(vOFF)}, 4, {v(vLANE)}")
    A(f"v_lshl_add_u32 {v(vT2)}, {v(vOFF)}, 5, {v(vT2)}")
    A(f"v_and_b32 {v(vOFF)}, 3, {v(vLANE)}")
    A(f"v_lshl_add_u32 {v(vT2)}, {v(vOFF)}, 3, {v(vT2)}")
    A(f"v_add_u32 {v(vT2)}, {s(sT3)}, {v(vT2)}")
    for i in range(7):
        A(f"ds_read_b64_tr_b16 {v(F+4*i,2)}, {v(vT2)} offset:{128*i}")
        A(f"ds_read_b64_tr_b16 {v(F+4*i+2,2)}, {v(vT2)} offset:{128*i+3840}")
    A(f"v_lshlrev_b32 {v(vOFF)}, 4, {v(vLANE)}")
    A(f"s_mul_i32 {s(sT3)}, {s(sRG)}, 7168")
    A(f"s_add_u32 {s(sT4)}, {s(sT3)}, 4096")
    for i in range(7):
        A(f"s_waitcnt lgkmcnt({12-2*i})")
        so, off = (sT3, 1024 * i) if i < 4 else (sT4, 1024 * (i - 4))
        A.vmem(f"buffer_store_dwordx4 {v(F+4*i,4)}, {v(vOFF)}, {s(rWS,4)}, {s(so)} offen offset:{off} sc1")
    A.wait_vm(w_done)
    stamp(2)
    T = 170
    for i in range(14):
        for d in range(4):
            src = WB + 4 * i + d
            if i == 0:
                A(f"v_lshlrev_b32 {v(SA+2*d)}, 16, {v(src)}")
                A(f"v_and_b32 {v(SA+2*d+1)}, 0xffff0000, {v(src)}")
            else:
                A(f"v_lshlrev_b32 {v(T+2*d)}, 16, {v(src)}")
                A(f"v_and_b32 {v(T+2*d+1)}, 0xffff0000, {v(src)}")
                A(f"v_pk_add_f32 {v(SA+2*d,2)}, {v(SA+2*d,2)}, {v(T+2*d,2)}")
    SB = 65536
    A(f"v_lshlrev_b32 {v(vT2)}, 5, v0")
    A(f"v_add_u32 {v(vT2)}, {SB}, {v(vT2)}")
    A(f"ds_write_b128 {v(vT2)}, {v(SA,4)}")
    A(f"ds_write_b128 {v(vT2)}, {v(SA+4,4)} offset:16")
    A("s_waitcnt lgkmcnt(0)")
    A("s_barrier")
    skip = A.new("ns")
    A(f"s_cmp_ge_u32 {s(sWAVE)}, 2")
    A(f"s_cbranch_scc1 {skip}")
    A(f"s_cmp_ge_u32 {s(sUNIT)}, 14")
    A(f"s_cbranch_scc1 {skip}")
    A(f"s_lshl_b32 {s(sT3)}, {s(sWAVE)}, 13")
    A(f"s_add_u32 {s(sT3)}, {s(sT3)}, {SB}")
    A(f"v_lshl_add_u32 {v(vT2)}, {v(vLANE)}, 2, {s(sT3)}")
    for i in range(32):
        A(f"ds_read_b32 {v(WB+i)}, {v(vT2)} offset:{256*i}")
    A("s_waitcnt lgkmcnt(0)")
    for st in (16, 8, 4, 2, 1):
        for i in range(st):
            A(f"v_add_f32 {v(WB+i)}, {v(WB+i)}, {v(WB+i+st)}")
    A(f"v_cvt_pk_bf16_f32 {v(WB+1)}, {v(WB)}, {v(WB)}")
    A(f"v_lshlrev_b32 {v(WB+1)}, 16, {v(WB+1)}")
    A(f"v_sub_f32 {v(WB)}, {v(WB)}, {v(WB+1)}")
    A(f"v_cvt_pk_bf16_f32 {v(WB)}, {v(WB+1)}, {v(WB)}")
    A(f"s_mul_i32 {s(sT3)}, {s(sWAVE)}, {1792*4}")
    A(f"s_lshl_b32 {s(sT4)}, {s(sFB64)}, 8")
    A(f"s_add_u32 {s(sT3)}, {s(sT3)}, {s(sT4)}")
    A(f"s_add_u32 {s(sT3)}, {s(sT3)}, {OFF_SS}")
    A(f"v_lshlrev_b32 {v(vT2)}, 2, {v(vLANE)}")
    A(f"buffer_store_dword {v(WB)}, {v(vT2)}, {s(rWS,4)}, {s(sT3)} offen sc1")
    A.label(skip)
    A("s_waitcnt vmcnt(0)")
    A("s_barrier")
    stamp(3)
    skip = A.new("nf")
    A(f"s_cmp_lg_u32 {s(sWAVE)}, 0")
    A(f"s_cbranch_scc1 {skip}")
    A(f"s_lshl_b32 {s(sT3)}, {s(sWG)}, 2")
    A(f"v_mov_b32 {v(vT2)}, {s(sT3)}")
    A(f"v_mov_b32 {v(vT)}, 1")
    A("s_mov_b64 exec, 1")
    A(f"global_store_dword {v(vT2)}, {v(vT)}, {s(pDBG,2)} sc1")
    A("s_mov_b64 exec, -1")
    A.label(skip)
    stamp_flush(4)
    A("s_endpgm")


def final():
    A.label("L_final")
    A("s_barrier")
    vRow, vC8, vP, vT, vR2, vO = 2, 3, 4, 5, 6, 7
    P, T = 8, 48
    A(f"v_lshrrev_b32 {v(vRow)}, 3, v0")
    A(f"v_and_b32 {v(vC8)}, 7, v0")
    A(f"v_lshrrev_b32 {v(vP)}, 5, {v(vRow)}")
    A(f"v_mul_u32_u24 {v(vP)}, 10240, {v(vP)}")
    A(f"v_lshrrev_b32 {v(vT)}, 2, {v(vC8)}")
    A(f"v_mul_u32_u24 {v(vT)}, 5120, {v(vT)}")
    A(f"v_add_u32 {v(vP)}, {v(vP)}, {v(vT)}")
    A(f"v_bfe_u32 {v(vT)}, {v(vRow)}, 3, 2")
    A(f"v_mul_u32_u24 {v(vT)}, 1280, {v(vT)}")
    A(f"v_add_u32 {v(vP)}, {v(vP)}, {v(vT)}")
    A(f"v_and_b32 {v(vT)}, 1, {v(vRow)}")
    A(f"v_mul_u32_u24 {v(vT)}, 272, {v(vT)}")
    A(f"v_add_u32 {v(vP)}, {v(vP)}, {v(vT)}")
    A(f"v_bfe_u32 {v(vT)}, {v(vRow)}, 1, 1")
    A(f"v_mul_u32_u24 {v(vT)}, 640, {v(vT)}")
    A(f"v_add_u32 {v(vP)}, {v(vP)}, {v(vT)}")
    A(f"v_bfe_u32 {v(vT)}, {v(vRow)}, 2, 1")
    A(f"v_lshl_add_u32 {v(vP)}, {v(vT)}, 7, {v(vP)}")
    A(f"v_and_b32 {v(vT)}, 3, {v(vC8)}")
    A(f"v_lshl_add_u32 {v(vP)}, {v(vT)}, 5, {v(vP)}")
    A(f"v_add_u32 {v(vP)}, {PR}, {v(vP)}")
    for q in range(4):
        A(f"ds_read_b128 {v(P+8*q,4)}, {v(vP)} offset:{q*PR_SZ}")
        A(f"ds_read_b128 {v(P+8*q+4,4)}, {v(vP)} offset:{q*PR_SZ+16}")
    A(f"v_lshrrev_b32 {v(vT)}, 2, {v(vC8)}")
    A(f"v_mul_u32_u24 {v(vO)}, {2*KT_SZ}, {v(vT)}")
    A(f"v_bfe_u32 {v(vT)}, {v(vC8)}, 1, 1")
    A(f"v_mul_u32_u24 {v(vT)}, {KR_PITCH}, {v(vT)}")
    A(f"v_add_u32 {v(vO)}, {v(vO)}, {v(vT)}")
    A(f"v_lshl_add_u32 {v(vO)}, {v(vRow)}, 6, {v(vO)}")
    A(f"v_and_b32 {v(vT)}, 1, {v(vC8)}")
    A(f"v_lshl_add_u32 {v(vO)}, {v(vT)}, 5, {v(vO)}")
    A(f"ds_read_b128 {v(T,4)}, {v(vO)} offset:{KT}")
    A(f"ds_read_b128 {v(T+4,4)}, {v(vO)} offset:{KT+16}")
    A(f"v_lshlrev_b32 {v(vT)}, 2, {v(vRow)}")
    A(f"ds_read_b32 {v(vR2)}, {v(vT)} offset:{TB}")
    A(f"v_mul_u32_u24 {v(vO)}, 896, {v(vRow)}")
    A(f"v_lshl_add_u32 {v(vO)}, {v(vC8)}, 4, {v(vO)}")
    A(f"s_mul_i32 {s(sT0)}, {s(sRB64)}, {64*896}")
    A(f"s_lshl_b32 {s(sT1)}, {s(sCB)}, 7")
    A(f"s_add_u32 {s(sT0)}, {s(sT0)}, {s(sT1)}")
    A(f"v_add_u32 {v(vO)}, {s(sT0)}, {v(vO)}")
    A("s_waitcnt lgkmcnt(7)")
    for e in range(8):
        A(f"v_add_f32 {v(P+e)}, {v(P+e)}, {v(P+8+e)}")
    A("s_waitcnt lgkmcnt(3)")
    for e in range(8):
        A(f"v_add_f32 {v(P+16+e)}, {v(P+16+e)}, {v(P+24+e)}")
    for e in range(8):
        A(f"v_add_f32 {v(P+e)}, {v(P+e)}, {v(P+16+e)}")
    A("s_waitcnt lgkmcnt(0)")
    for e in range(8):
        A(f"v_fmac_f32 {v(T+e)}, {v(P+e)}, {v(vR2)}")
    for e in range(4):
        A(f"v_cvt_pk_bf16_f32 {v(P+e)}, {v(T+2*e)}, {v(T+2*e+1)}")
    A(f"global_store_dwordx4 {v(vO)}, {v(P,4)}, {s(pOUT,2)}")
    if OPT["diag"]:
        A("s_waitcnt vmcnt(0)")
    stamp(5)
    stamp_flush(6)
    A.label("L_end")
    A("s_endpgm")


def cwave():
    A.vm = 0
    vXA, vWA, vL16, vT, vT2, vFL = 2, 6, 8, 9, 10, 11
    FR = 16
    SM = 64
    ACC = 128
    sRH, sFH = sW1, sW2

    def xf(st, rbk): return FR + 24 * st + 4 * rbk
    def wf(st, mat, j): return FR + 24 * st + 8 + 4 * (2 * mat + j)
    def acc(mat, j, rbk): return ACC + 16 * ((mat * 2 + j) * 2 + rbk)

    A(f"s_and_b32 {s(sRH)}, {s(sWAVE)}, 1")
    A(f"s_lshr_b32 {s(sFH)}, {s(sWAVE)}, 1")
    A(f"v_and_b32 {v(vT)}, 31, {v(vLANE)}")
    A(f"s_lshl_b32 {s(sT0)}, {s(sRH)}, 13")
    A(f"s_add_u32 {s(sT0)}, {s(sT0)}, {XR}")
    A(f"v_lshl_add_u32 {v(vT)}, {v(vT)}, 7, {s(sT0)}")
    A(f"v_bfe_u32 {v(vT2)}, {v(vLANE)}, 1, 3")
    A(f"v_lshrrev_b32 {v(vFL)}, 5, {v(vLANE)}")
    A(f"v_xor_b32 {v(vT2)}, {v(vT2)}, {v(vFL)}")
    for k in range(4):
        A(f"v_xor_b32 {v(vXA+k)}, {2*k}, {v(vT2)}")
        A(f"v_lshl_add_u32 {v(vXA+k)}, {v(vXA+k)}, 4, {v(vT)}")
    A(f"v_bfe_u32 {v(vT2)}, {v(vLANE)}, 2, 2")
    A(f"v_lshl_add_u32 {v(vT)}, {v(vFL)}, 3, {v(vT2)}")
    A(f"v_lshlrev_b32 {v(vT)}, 8, {v(vT)}")
    A(f"v_bfe_u32 {v(vL16)}, {v(vLANE)}, 4, 1")
    A(f"v_lshl_add_u32 {v(vT)}, {v(vL16)}, 5, {v(vT)}")
    A(f"v_and_b32 {v(vL16)}, 3, {v(vLANE)}")
    A(f"v_lshl_add_u32 {v(vT)}, {v(vL16)}, 3, {v(vT)}")
    A(f"v_add_u32 {v(vT)}, {WR}, {v(vT)}")
    A(f"s_lshl_b32 {s(sT0)}, {s(sFH)}, 1")
    A(f"v_xor_b32 {v(vT2)}, {s(sT0)}, {v(vT2)}")
    A(f"v_lshl_add_u32 {v(vWA)}, {v(vT2)}, 6, {v(vT)}")
    A(f"v_xor_b32 {v(vT2)}, 1, {v(vT2)}")
    A(f"v_lshl_add_u32 {v(vWA+1)}, {v(vT2)}, 6, {v(vT)}")
    A(f"v_lshlrev_b32 {v(vL16)}, 4, {v(vLANE)}")
    for i in range(24):
        A(f"v_mov_b32 {v(SM+i)}, 0")
    A(f"v_and_b32 {v(vFL)}, 31, {v(vLANE)}")
    A(f"v_lshlrev_b32 {v(vFL)}, 2, {v(vFL)}")

    def reads(st, c, ks):
        xs = ((c // 2) % 3) * 16384
        k4 = (c % 2) * 2 + ks
        ws_ = (c % 4) * 16384 + ks * 4096
        r = []
        r.append(f"ds_read_b128 {v(xf(st,0),4)}, {v(vXA+k4)} offset:{xs}")
        for j in range(2):
            for mat in range(2):
                for h in range(2):
                    r.append(f"ds_read_b64_tr_b16 {v(wf(st,mat,j)+2*h,2)}, {v(vWA+j)} offset:{ws_+mat*8192+h*1024}")
            if j == 0:
                r.append(f"ds_read_b128 {v(xf(st,1),4)}, {v(vXA+k4)} offset:{xs+4096}")
        return r

    def mf(st, first):
        m = []
        for j in range(2):
            for rbk in range(2):
                for mat in range(2):
                    a = acc(mat, j, rbk)
                    cc = "0" if first else v(a, 16)
                    m.append(f"v_mfma_f32_32x32x16_bf16 {v(a,16)}, {v(wf(st,mat,j),4)}, {v(xf(st,rbk),4)}, {cc}")
        return m

    def phase(ms, rs, extra=()):
        rs = list(rs)
        extra = list(extra)
        for i, m in enumerate(ms):
            A(m)
            for _ in range(2):
                if rs:
                    A(rs.pop(0))
            if not rs and extra and i >= 5:
                while extra:
                    e = extra.pop(0)
                    e()
        assert not rs and not extra

    A("s_barrier")
    stamp(1)
    for r in reads(0, 0, 0):
        A(r)
    A("s_waitcnt lgkmcnt(0)")
    for c in range(14):
        phase(mf(0, c == 0), reads(1, c, 1))
        A("s_waitcnt lgkmcnt(0)")
        A("s_barrier")
        ex = []
        if c == 9:
            ex = [lambda: A.vmem(f"global_load_dword {v(vT)}, {v(vFL)}, {s(pDBG,2)} sc1")]
        if c == 11:
            def fetch():
                poll_global(vFL, vT, pDBG, first_issued=True)
                A(f"s_lshl_b32 {s(sT0)}, {s(sFB)}, 1")
                A(f"s_add_u32 {s(sT0)}, {s(sT0)}, {s(sFH)}")
                A(f"s_lshl_b32 {s(sT0)}, {s(sT0)}, 8")
                A(f"s_add_u32 {s(sT0)}, {s(sT0)}, {OFF_SS}")
                A(f"s_add_u32 {s(sT1)}, {s(sT0)}, {1792*4}")
                A(f"s_lshl_b32 {s(sT2)}, {s(sRB)}, 1")
                A(f"s_add_u32 {s(sT2)}, {s(sT2)}, {s(sRH)}")
                A(f"s_lshl_b32 {s(sT2)}, {s(sT2)}, 9")
                A(f"s_add_u32 {s(sT2)}, {s(sT2)}, {OFF_ST}")
                A(f"v_lshlrev_b32 {v(vT)}, 1, {v(vFL)}")
                A("s_mov_b32 exec_hi, 0")
                for mat in range(2):
                    for j in range(2):
                        A.vmem(f"buffer_load_dword {v(SM+4*(2*mat+j))}, {v(vFL)}, {s(rWS,4)}, {s(sT0+mat)} offen offset:{128*j} sc1")
                for rbk in range(2):
                    A.vmem(f"buffer_load_dword {v(SM+16+4*rbk)}, {v(vT)}, {s(rWS,4)}, {s(sT2)} offen offset:{256*rbk} sc1")
                A("s_mov_b32 exec_hi, -1")
            ex = [fetch]
        phase(mf(1, False), reads(0, c + 1, 0) if c < 13 else [], ex)
        if c < 13:
            A("s_waitcnt lgkmcnt(0)")
    A("s_waitcnt vmcnt(0)")
    for j in range(2):
        for rbk in range(2):
            for mat in range(2):
                a = acc(mat, j, rbk)
                A(f"v_mfma_f32_32x32x16_bf16 {v(a,16)}, {v(SM+4*(2*mat+j),4)}, {v(SM+16+4*rbk,4)}, {v(a,16)}")
    stamp(2)
    A(f"s_lshl_b32 {s(sT0)}, {s(sRB)}, 1")
    A(f"s_add_u32 {s(sT0)}, {s(sT0)}, {s(sRH)}")
    A(f"s_lshl_b32 {s(sT1)}, {s(sFB)}, 1")
    A(f"s_add_u32 {s(sT1)}, {s(sT1)}, {s(sFH)}")
    A(f"s_mul_i32 {s(sT2)}, {s(sT0)}, {224*1024}")
    A(f"s_lshl_b32 {s(sT3)}, {s(sT1)}, 12")
    A(f"s_add_u32 {s(sT2)}, {s(sT2)}, {s(sT3)}")
    A(f"s_add_u32 {s(sT2)}, {s(sT2)}, {OFF_H}")
    A(f"s_add_u32 {s(sT3)}, {s(sT2)}, {112*1024}")
    A(f"s_lshl_b32 {s(sT0)}, {s(sT0)}, 7")
    A(f"s_lshl_b32 {s(sT1)}, {s(sT1)}, 2")
    A(f"s_add_u32 {s(sT0)}, {s(sT0)}, {s(sT1)}")
    A(f"s_add_u32 {s(sT0)}, {s(sT0)}, {OFF_FL}")
    for j in range(2):
        for rbk in range(2):
            g_, u_ = acc(0, j, rbk), acc(1, j, rbk)
            for ab in range(2):
                b = 8 * ab
                for e in range(8):
                    A(f"v_max_f32 {v(g_+b+e)}, 0, {v(g_+b+e)}")
                for e in range(8):
                    A(f"v_mul_f32 {v(g_+b+e)}, {v(g_+b+e)}, {v(u_+b+e)}")
                for e in range(4):
                    A(f"v_cvt_pk_bf16_f32 {v(g_+b+e)}, {v(g_+b+2*e)}, {v(g_+b+2*e+1)}")
                hs = A.vmem(f"buffer_store_dwordx4 {v(g_+b,4)}, {v(vL16)}, {s(rWS,4)}, {s(sT2+rbk)} offen offset:{(2*j+ab)*1024} sc1")
    vDO, vDA = 2, 3
    A(f"v_lshrrev_b32 {v(vT)}, 3, {v(vLANE)}")
    A(f"v_mul_u32_u24 {v(vDO)}, 896, {v(vT)}")
    A(f"v_lshrrev_b32 {v(vT)}, 2, {v(vLANE)}")
    A(f"v_lshrrev_b32 {v(vT2)}, 4, {v(vLANE)}")
    A(f"v_xor_b32 {v(vT)}, {v(vT)}, {v(vT2)}")
    A(f"v_and_b32 {v(vT)}, 1, {v(vT)}")
    A(f"v_lshl_add_u32 {v(vDO)}, {v(vT)}, 6, {v(vDO)}")
    A(f"v_and_b32 {v(vT)}, 3, {v(vLANE)}")
    A(f"v_lshl_add_u32 {v(vDO)}, {v(vT)}, 4, {v(vDO)}")
    sWDQ, sDOFF = sW1, sW2
    A(f"s_mul_i32 {s(sWDQ)}, {s(sWAVE)}, {WD_SZ}")
    A(f"s_add_u32 {s(sWDQ)}, {s(sWDQ)}, {WD}")
    A(f"s_mul_i32 {s(sDOFF)}, {s(sWAVE)}, {448*896}")
    A(f"s_lshl_b32 {s(sT1)}, {s(sCB)}, 7")
    A(f"s_add_u32 {s(sDOFF)}, {s(sDOFF)}, {s(sT1)}")

    def wd_dma(i):
        A(f"s_add_u32 m0, {s(sWDQ)}, {(i%28)*1024}")
        A(f"s_add_u32 {s(sT1)}, {s(sDOFF)}, {i*8*896}")
        return A.vmem(f"buffer_load_dwordx4 {v(vDO)}, {s(rWD,4)}, {s(sT1)} offen lds")

    for i in range(28):
        d1 = wd_dma(i)
    A.wait_vm(hs)
    A(f"v_mov_b32 {v(vT)}, {s(sT0)}")
    A(f"v_mov_b32 {v(vT2)}, 1")
    A("s_mov_b64 exec, 1")
    A.vmem(f"global_store_dword {v(vT)}, {v(vT2)}, {s(pWS,2)} sc1")
    A("s_mov_b64 exec, -1")
    stamp(3)
    A(f"v_bfe_u32 {v(vT2)}, {v(vLANE)}, 2, 2")
    A(f"v_lshrrev_b32 {v(vT)}, 5, {v(vLANE)}")
    A(f"v_lshl_add_u32 {v(vT)}, {v(vT)}, 2, {v(vT2)}")
    A(f"v_lshl_add_u32 {v(vT)}, {v(vT)}, 7, {s(sWDQ)}")
    A(f"v_bfe_u32 {v(vT2)}, {v(vLANE)}, 4, 1")
    A(f"v_lshl_add_u32 {v(vT)}, {v(vT2)}, 5, {v(vT)}")
    A(f"v_and_b32 {v(vT2)}, 3, {v(vLANE)}")
    A(f"v_lshl_add_u32 {v(vT)}, {v(vT2)}, 3, {v(vT)}")
    A(f"v_bfe_u32 {v(vT2)}, {v(vLANE)}, 3, 1")
    A(f"v_lshl_add_u32 {v(vDA)}, {v(vT2)}, 6, {v(vT)}")
    A(f"v_xor_b32 {v(vDA+1)}, 64, {v(vDA)}")
    W1, ACC2, HB, W2 = 128, 64, 12, 240
    HD = 6
    A.wait_vm(d1)

    def wd_reads(dst, ks):
        return [f"ds_read_b64_tr_b16 {v(dst+4*cj+2*h,2)}, {v(vDA+cj)} offset:{ks*2048+h*1024}"
                for cj in range(2) for h in range(2)]
    for ks in range(14):
        for r in wd_reads(W1 + 8 * ks, ks):
            A(r)
    A("s_waitcnt lgkmcnt(0)")
    for i in range(28, 56):
        d2 = wd_dma(i)
    A(f"v_min_u32 {v(vFL)}, 6, {v(vLANE)}")
    A(f"s_mul_i32 {s(sT0)}, {s(sWAVE)}, 28")
    A(f"s_lshl_b32 {s(sT1)}, {s(sRB64)}, 7")
    A(f"s_add_u32 {s(sT0)}, {s(sT0)}, {s(sT1)}")
    A(f"s_add_u32 {s(sT0)}, {s(sT0)}, {OFF_FL}")
    A(f"v_lshl_add_u32 {v(vFL)}, {v(vFL)}, 2, {s(sT0)}")
    poll_global(vFL, vT, pWS)
    stamp(4)
    sH0, sH1 = sT2, sT3
    A(f"s_mul_i32 {s(sH0)}, {s(sRB64)}, {224*1024}")
    A(f"s_mul_i32 {s(sT0)}, {s(sWAVE)}, {28*1024}")
    A(f"s_add_u32 {s(sH0)}, {s(sH0)}, {s(sT0)}")
    A(f"s_add_u32 {s(sH0)}, {s(sH0)}, {OFF_H}")
    A(f"s_add_u32 {s(sH1)}, {s(sH0)}, {112*1024}")
    hid = {}

    def h_load(ks):
        if ks % 4 == 0 and ks > 0:
            A(f"s_add_u32 {s(sH0)}, {s(sH0)}, 4096")
            A(f"s_add_u32 {s(sH1)}, {s(sH1)}, 4096")
        for rbk in range(2):
            hid[ks] = A.vmem(f"buffer_load_dwordx4 {v(HB+8*(ks%HD)+4*rbk,4)}, {v(vL16)}, {s(rWS,4)}, {s(sH0+rbk)} offen offset:{(ks%4)*1024} sc1")
    for ks in range(HD):
        h_load(ks)
    for ks in range(28):
        if ks >= 13 and ks + 1 < 28:
            for r in wd_reads(W2 + 8 * ((ks + 1) % 2), ks + 1 - 14):
                A(r)
        A.wait_vm(hid[ks])
        if ks >= 14:
            A(f"s_waitcnt lgkmcnt({4 if ks + 1 < 28 else 0})")
        wb = W1 + 8 * ks if ks < 14 else W2 + 8 * (ks % 2)
        for rbk in range(2):
            for cj in range(2):
                a = ACC2 + 16 * (2 * rbk + cj)
                cc = "0" if ks == 0 else v(a, 16)
                A(f"v_mfma_f32_32x32x16_bf16 {v(a,16)}, {v(HB+8*(ks%HD)+4*rbk,4)}, {v(wb+4*cj,4)}, {cc}")
        if ks + HD < 28:
            h_load(ks + HD)
    A("s_barrier")
    A(f"s_mul_i32 {s(sT0)}, {s(sWAVE)}, {PR_SZ}")
    A(f"s_add_u32 m0, {s(sT0)}, 4092")
    A("s_nop 9")
    pos = [0, 272, 640, 912]
    for t in range(4):
        for r in range(16):
            A(f"ds_write_addtid_b32 {v(ACC2+16*t+r)} offset:{PR-4092+t*5120+(r//4)*1280+pos[r%4]}")
    A("s_waitcnt lgkmcnt(0)")
    A("s_branch L_final")


def kgen_list(sl, R):
    o = []
    e = o.append
    pA, pI, pR, pC, vDT, vFA = R["pA"], R["pI"], R["pR"], R["pC"], R["dt"], R["fa"]
    t = R["tmp"]
    zr, zi = t, t + 1
    E = {1: t + 2, 8: t + 4, 256: t + 6}
    q0, q1, q2, pk = t + 8, t + 9, t + 10, t + 11
    Areg = t + 14
    AF, BF, DK = R["AF"], R["BF"], R["DK"]

    def unpack(d, src):
        e(f"v_and_b32 {v(d)}, 0xffff0000, {v(src)}" if sl else f"v_lshlrev_b32 {v(d)}, 16, {v(src)}")
    unpack(q0, pA)
    e(f"v_mul_f32 {v(q0)}, {LOG2E:#x}, {v(q0)}")
    e(f"v_exp_f32 {v(q0)}, {v(q0)}")
    unpack(zi, pI)
    e(f"v_cvt_pk_bf16_f32 {v(q0)}, {v(q0)}, {v(q0)}")
    e(f"v_lshlrev_b32 {v(q0)}, 16, {v(q0)}")
    e(f"v_mul_f32 {v(q0)}, {v(q0)}, {v(vDT)}")
    e(f"v_mul_f32 {v(zr)}, {NLOG2E:#x}, {v(q0)}")
    e(f"v_mul_f32 {v(zi)}, {v(zi)}, {v(vDT)}")
    e(f"v_mul_f32 {v(zi)}, {INV2PI:#x}, {v(zi)}")
    for p in (1, 8, 256):
        e(f"v_mul_f32 {v(q0)}, {f2u(float(p)):#x}, {v(zr)}")
        e(f"v_mul_f32 {v(q1)}, {f2u(float(p)):#x}, {v(zi)}")
        e(f"v_exp_f32 {v(q0)}, {v(q0)}")
        e(f"v_fract_f32 {v(q1)}, {v(q1)}")
        e(f"v_cos_f32 {v(q2)}, {v(q1)}")
        e(f"v_sin_f32 {v(q1)}, {v(q1)}")
        e(f"v_mul_f32 {v(E[p])}, {v(q0)}, {v(q2)}")
        if p == 8:
            e(f"v_mul_f32 {v(E[p]+1)}, -{v(q0)}, {v(q1)}")
        else:
            e(f"v_mul_f32 {v(E[p]+1)}, {v(q0)}, {v(q1)}")
    cnt = [0]

    def put(r, row):
        k = pk + cnt[0] % 2
        cnt[0] += 1
        e(f"v_cvt_pk_bf16_f32 {v(k)}, {v(r)}, {v(r+1)}")
        e(f"ds_write_addtid_b32 {v(k)} offset:{row*272}")

    def cmul(d, a, b):
        e(f"v_mul_f32 {v(q0)}, {v(a+1)}, {v(b+1)}")
        e(f"v_mul_f32 {v(q1)}, {v(a+1)}, {v(b)}")
        e(f"v_fma_f32 {v(d+1)}, {v(a)}, {v(b+1)}, {v(q1)}")
        e(f"v_fma_f32 {v(d)}, {v(a)}, {v(b)}, -{v(q0)}")
    Ak = [Areg + 2 * k for k in range(8)]
    unpack(Ak[0], pR)
    unpack(Ak[0] + 1, pC)
    e(f"v_mul_f32 {v(Ak[0])}, {v(Ak[0])}, {v(vDT+1)}")
    e(f"v_mul_f32 {v(Ak[0]+1)}, {v(Ak[0]+1)}, {v(vDT+1)}")
    put(Ak[0], 0)
    for k in range(1, 8):
        cmul(Ak[k], Ak[k - 1], E[1])
        put(Ak[k], k)
    for k, row in ((0, 8), (2, 9), (4, 12), (6, 13)):
        cmul(Ak[k], Ak[k], E[256])
        put(Ak[k], row)
    for k, row in ((0, 10), (4, 11), (0, 14), (4, 15), (0, 16), (0, 17), (0, 20), (0, 21), (0, 18)):
        cmul(Ak[k], Ak[k], E[256])
        put(Ak[k], row)
    for i in range(8):
        e(f"ds_read_b128 {v(AF+4*i,4)}, {v(vFA)} offset:{32*i}")
    k = pk + cnt[0] % 2
    cnt[0] += 1
    e(f"v_mov_b32 {v(k)}, 0x3f80")
    e(f"ds_write_addtid_b32 {v(k)} offset:0")
    put(E[8], 1)
    B = Ak[0]
    cmul(B, E[8], E[8])
    put(B, 2)
    for j in range(3, 32):
        cmul(B, B, E[8])
        put(B, j)
    for i in range(8):
        e(f"ds_read_b128 {v(BF+4*i,4)}, {v(vFA)} offset:{32*i}")
    for i in range(8):
        e(f"s_waitcnt lgkmcnt({7-i})")
        cc = "0" if (sl == 0 and i == 0) else v(DK, 16)
        e(f"v_mfma_f32_32x32x16_bf16 {v(DK,16)}, {v(AF+4*i,4)}, {v(BF+4*i,4)}, {cc}")
    return o


def xwave():
    A.label("L_xw")
    A.vm = 0
    sXW, sKT, sCH, sPH = sW1, sW2, sW3, sT5
    sWO, sXO = 69, 70
    vWO, vXO, vT, vT2, vT3 = 2, 3, 4, 5, 6
    vMine, vOther = 7, 8
    R = dict(pA=10, pI=11, pR=12, pC=13, dt=14, fa=16, tmp=20, AF=64, BF=96, DK=128)
    GA = 150
    A(f"s_sub_u32 {s(sXW)}, {s(sWAVE)}, 4")
    A(f"s_lshr_b32 {s(sT0)}, {s(sXW)}, 1")
    A(f"s_add_u32 {s(sCH)}, {s(sCH0)}, {s(sT0)}")
    A(f"s_and_b32 {s(sPH)}, {s(sXW)}, 1")
    A(f"s_lshl_b32 {s(sT0)}, {s(sCH0)}, 1")
    A(f"s_load_dword {s(sT4)}, {s(pLDT,2)}, {s(sT0)}")
    A(f"s_lshl_b32 {s(sT0)}, {s(sCH)}, 9")
    A(f"s_lshl_b32 {s(sT1)}, {s(sPH)}, 8")
    A(f"s_add_u32 {s(sT0)}, {s(sT0)}, {s(sT1)}")
    A(f"v_lshl_add_u32 {v(vT)}, {v(vLANE)}, 2, {s(sT0)}")
    for reg, p in ((R["pA"], pLA), (R["pI"], pAI), (R["pR"], pCR), (R["pC"], pCI)):
        par = A.vmem(f"global_load_dword {v(reg)}, {v(vT)}, {s(p,2)}")
    A(f"v_lshrrev_b32 {v(vT)}, 4, {v(vLANE)}")
    A(f"v_mul_u32_u24 {v(vWO)}, 3584, {v(vT)}")
    A(f"v_bfe_u32 {v(vT2)}, {v(vLANE)}, 2, 2")
    A(f"v_xor_b32 {v(vT2)}, {v(vT2)}, {v(vT)}")
    A(f"v_lshl_add_u32 {v(vWO)}, {v(vT2)}, 6, {v(vWO)}")
    A(f"v_and_b32 {v(vT2)}, 3, {v(vLANE)}")
    A(f"v_lshl_add_u32 {v(vWO)}, {v(vT2)}, 4, {v(vWO)}")
    A(f"s_mul_i32 {s(sT0)}, {s(sXW)}, {8*3584}")
    A(f"s_lshl_b32 {s(sT1)}, {s(sFB)}, 8")
    A(f"s_add_u32 {s(sT0)}, {s(sT0)}, {s(sT1)}")
    A(f"v_add_u32 {v(vWO)}, {s(sT0)}, {v(vWO)}")
    A(f"s_lshl_b32 {s(sT0)}, {s(sPH)}, 2")
    A(f"v_add_u32 {v(vT)}, {s(sT0)}, {v(vT)}")
    A(f"v_and_b32 {v(vT2)}, 7, {v(vLANE)}")
    A(f"v_xor_b32 {v(vT2)}, {v(vT2)}, {v(vT)}")
    A(f"v_lshrrev_b32 {v(vT)}, 3, {v(vLANE)}")
    A(f"v_mul_u32_u24 {v(vXO)}, 896, {v(vT)}")
    A(f"v_lshl_add_u32 {v(vXO)}, {v(vT2)}, 4, {v(vXO)}")
    A(f"s_lshl_b32 {s(sT0)}, {s(sRB)}, 4")
    A(f"s_add_u32 {s(sT0)}, {s(sT0)}, {s(sXW)}")
    A(f"s_mul_i32 {s(sT0)}, {s(sT0)}, {8*896}")
    A(f"v_add_u32 {v(vXO)}, {s(sT0)}, {v(vXO)}")
    A(f"s_lshl_b32 {s(sWO)}, {s(sXW)}, 11")
    A(f"s_lshl_b32 {s(sXO)}, {s(sXW)}, 10")
    A(f"s_mul_i32 {s(sKT)}, {s(sXW)}, {KT_SZ}")

    wid, xid = {}, {}

    def dma_w(c):
        for mat in range(2):
            for i in range(2):
                A(f"s_add_u32 m0, {s(sWO)}, {WR+(c%4)*16384+mat*8192+i*1024}")
                A(f"s_mov_b32 {s(sT0)}, {(32*c+4*i)*3584}")
                wid[c] = A.vmem(f"buffer_load_dwordx4 {v(vWO)}, {s(rWU if mat else rWG,4)}, {s(sT0)} offen lds")

    def dma_x(xc, iis):
        for ii in iis:
            A(f"s_add_u32 m0, {s(sXO)}, {XR+(xc%3)*16384+ii*4096}")
            A(f"s_mov_b32 {s(sT0)}, {ii*32*896+xc*128}")
            xid[xc] = A.vmem(f"buffer_load_dwordx4 {v(vXO)}, {s(rX,4)}, {s(sT0)} offen lds")
    dma_w(0); dma_x(0, range(4)); dma_w(1); dma_w(2); dma_x(1, range(4)); dma_w(3); dma_x(2, range(4))

    for i in range(4):
        A(f"v_mov_b32 {v(20+i)}, 0")
    A(f"v_and_b32 {v(vT)}, 255, v0")
    A(f"v_lshlrev_b32 {v(vT2)}, 4, {v(vT)}")
    A(f"ds_write_b128 {v(vT2)}, {v(20,4)} offset:{TB}")
    A(f"v_min_u32 {v(vT2)}, {67*16}, {v(vT2)}")
    A(f"ds_write_b128 {v(vT2)}, {v(20,4)} offset:{TB+4096}")
    A(f"v_min_u32 {v(vT2)}, 29, {v(vLANE)}")
    A(f"v_lshlrev_b32 {v(vT2)}, 4, {v(vT2)}")
    A(f"ds_write_b128 {v(vT2)}, {v(20,4)} offset:{UB}")
    A(f"ds_write_b128 {v(vT2)}, {v(20,4)} offset:{UB+UB_SZ}")
    A(f"v_and_b32 {v(vT)}, 31, {v(vLANE)}")
    A(f"v_mul_u32_u24 {v(R['fa'])}, 272, {v(vT)}")
    A(f"v_lshrrev_b32 {v(vT)}, 5, {v(vLANE)}")
    A(f"v_lshl_add_u32 {v(R['fa'])}, {v(vT)}, 4, {v(R['fa'])}")
    A(f"v_add_u32 {v(R['fa'])}, {s(sKT)}, {v(R['fa'])}")
    A(f"s_lshl_b32 {s(sT0)}, {s(sXW)}, 2")
    A(f"s_add_u32 {s(sT0)}, {s(sT0)}, {SF}")
    A(f"v_mov_b32 {v(vMine)}, {s(sT0)}")
    A(f"v_xor_b32 {v(vOther)}, 4, {v(vMine)}")
    A("s_waitcnt lgkmcnt(0)")
    A(f"s_lshl_b32 {s(sT0)}, {s(sT4)}, 16")
    A(f"s_and_b32 {s(sT1)}, {s(sT4)}, 0xffff0000")
    A(f"s_bitcmp1_b32 {s(sXW)}, 1")
    A(f"s_cselect_b32 {s(sT0)}, {s(sT1)}, {s(sT0)}")
    A(f"v_mov_b32 {v(vT)}, {LOG2E:#x}")
    A(f"v_mul_f32 {v(vT)}, {s(sT0)}, {v(vT)}")
    A(f"v_exp_f32 {v(vT)}, {v(vT)}")
    A("s_nop 0")
    A(f"v_cvt_pk_bf16_f32 {v(vT)}, {v(vT)}, {v(vT)}")
    A(f"v_lshlrev_b32 {v(R['dt'])}, 16, {v(vT)}")
    A(f"v_add_f32 {v(R['dt']+1)}, {v(R['dt'])}, {v(R['dt'])}")

    sTBc = 71
    pre = []
    e = pre.append
    e(f"s_lshr_b32 {s(sT1)}, {s(sXW)}, 1")
    e(f"s_mul_i32 {s(sTBc)}, {s(sT1)}, {TB_SZ}")
    e(f"s_add_u32 {s(sTBc)}, {s(sTBc)}, {TB+4}")
    e(f"s_lshl_b32 {s(sT1)}, {s(sPH)}, 10")
    e(f"s_sub_u32 {s(sT1)}, 2047, {s(sT1)}")
    e(f"v_lshlrev_b32 {v(vT)}, 4, {v(vLANE)}")
    e(f"v_sub_u32 {v(vT)}, {s(sT1)}, {v(vT)}")
    e(f"v_cmp_gt_u32 vcc, 256, {v(vT)}")
    e(f"v_subrev_u32 {v(vT2)}, 16, {v(vT)}")
    e(f"v_mov_b32 {v(vT3)}, 144")
    e(f"v_cndmask_b32 {v(vT)}, {v(vT)}, {v(vT3)}, vcc")
    e(f"v_mov_b32 {v(vT3)}, 128")
    e(f"v_cndmask_b32 {v(vT2)}, {v(vT3)}, {v(vT2)}, vcc")
    e(f"v_cvt_f32_u32 {v(vT)}, {v(vT)}")
    e(f"v_subrev_u32 {v(vT2)}, 0x4300, {v(vT2)}")
    e(f"v_lshl_add_u32 {v(vT2)}, {v(vT2)}, 2, {s(sTBc)}")
    for k in range(0, 17, 2):
        e(f"v_subrev_f32 {v(GA+k)}, {f2u(float(k)):#x}, {v(vT)}")
        e(f"v_subrev_f32 {v(GA+k+1)}, {f2u(float(k+1)):#x}, {v(vT)}")
        e(f"v_cvt_pk_bf16_f32 {v(vT3)}, {v(GA+k)}, {v(GA+k+1)}")
        e(f"v_mad_u32_u16 {v(GA+k)}, {v(vT3)}, 4, {v(vT2)}")
        if k < 16:
            e(f"v_mad_u32_u16 {v(GA+k+1)}, {v(vT3)}, 4, {v(vT2)} op_sel:[1,0,0,0]")
    for t in pre:
        A(t)

    work = kgen_list(0, R) + kgen_list(1, R)
    A.wait_vm(par)
    nint = 14
    per = (len(work) + nint - 1) // nint if OPT["interleave"] else 0

    def do_work(n):
        if n and work:
            A(f"s_mov_b32 m0, {s(sKT)}")
            A("s_nop 0")
            for _ in range(n):
                if work:
                    A(work.pop(0))
    stamp_done = False
    for b in range(15):
        if b >= 2:
            c = b - 2 + 4
            if c < 14:
                dma_w(c)
        if b >= 3:
            xc = (b - 3) // 2
            if xc + 3 < 7:
                dma_x(xc + 3, (0, 1) if (b - 3) % 2 == 0 else (2, 3))
        if b >= 1:
            do_work(per)
        if b < 14:
            need = wid[b]
            if b % 2 == 0:
                need = max(need, xid[b // 2])
            A.wait_vm(need)
        A("s_barrier")
        if b == 0:
            stamp(1)
    do_work(len(work))
    stamp(2)
    A(f"v_and_b32 {v(vT)}, 31, {v(vLANE)}")
    A(f"v_lshlrev_b32 {v(vT)}, 2, {v(vT)}")
    poll_global(vT, vT2, pDBG)
    U0 = 20
    A(f"v_mul_u32_u24 {v(vT)}, 7168, {v(vLANE)}")
    A(f"s_mul_i32 {s(sT0)}, {s(sPH)}, {128*7168}")
    A(f"s_lshl_b32 {s(sT1)}, {s(sCH)}, 4")
    A(f"s_add_u32 {s(sT0)}, {s(sT0)}, {s(sT1)}")
    A(f"s_add_u32 {s(sT1)}, {s(sT0)}, {64*7168}")
    A(f"buffer_load_dwordx4 {v(U0,4)}, {v(vT)}, {s(rWS,4)}, {s(sT0)} offen sc1")
    A(f"buffer_load_dwordx4 {v(U0+4,4)}, {v(vT)}, {s(rWS,4)}, {s(sT1)} offen sc1")
    DK = R["DK"]
    vN, vG = 30, 31
    A(f"v_and_b32 {v(vN)}, 31, {v(vLANE)}")
    A(f"v_lshrrev_b32 {v(vG)}, 5, {v(vLANE)}")
    A(f"v_lshl_add_u32 {v(vT)}, {v(vN)}, 1, {v(vG)}")
    A(f"v_lshl_add_u32 {v(vT2)}, {v(vT)}, 4, {s(sTBc)}")
    for r in range(4):
        A(f"ds_add_f32 {v(vT2)}, {v(DK+r)} offset:{4*r}")
    A(f"v_lshl_add_u32 {v(vT2)}, {v(vT)}, 3, {s(sTBc)}")
    for r in range(2):
        A(f"ds_add_f32 {v(vT2)}, {v(DK+4+r)} offset:{256*4+4*r}")
    A(f"v_lshl_add_u32 {v(vT2)}, {v(vLANE)}, 3, {s(sTBc)}")
    for r in range(2):
        A(f"ds_add_f32 {v(vT2)}, {v(DK+6+r)} offset:{384*4+4*r}")
    A(f"v_lshl_add_u32 {v(vT)}, {v(vG)}, 6, {v(vN)}")
    A(f"v_lshl_add_u32 {v(vT2)}, {v(vT)}, 2, {s(sTBc)}")
    for r in range(2):
        A(f"ds_add_f32 {v(vT2)}, {v(DK+8+r)} offset:{512*4+128*r}")
    A("s_mov_b64 exec, 1")
    A(f"ds_add_f32 {v(vT2)}, {v(DK+10)} offset:{640*4}")
    A("s_mov_b64 exec, -1")
    pair_sync(1, vMine, vOther, vT)
    GV, PK = 64, 84
    for k in range(17):
        A(f"ds_read_b32 {v(GV+k)}, {v(GA+k)}")
    sKR, sUBc = sKT, sXO
    A(f"s_lshr_b32 {s(sT1)}, {s(sXW)}, 1")
    A(f"s_mul_i32 {s(sKR)}, {s(sT1)}, {2*KT_SZ}")
    A(f"s_mul_i32 {s(sUBc)}, {s(sT1)}, {UB_SZ}")
    A(f"s_add_u32 {s(sUBc)}, {s(sUBc)}, {UB}")
    A(f"s_lshl_b32 {s(sT0)}, {s(sPH)}, 11")
    A(f"s_add_u32 {s(sT1)}, {s(sT0)}, {s(sKR)}")
    A(f"v_lshl_add_u32 {v(vT)}, {v(vLANE)}, 5, {s(sT1)}")
    A(f"s_add_u32 {s(sT1)}, {s(sT0)}, {s(sUBc)}")
    A(f"v_lshl_add_u32 {v(vT2)}, {v(vLANE)}, 4, {s(sT1)}")
    A("s_waitcnt vmcnt(0)")
    A(f"ds_write_b128 {v(vT2)}, {v(U0,4)} offset:480")
    A(f"ds_write_b128 {v(vT2)}, {v(U0+4,4)} offset:{480+1024}")
    A("s_waitcnt lgkmcnt(2)")
    for k in range(8):
        A(f"v_cvt_pk_bf16_f32 {v(PK+k)}, {v(GV+2*k)}, {v(GV+2*k+1)}")
    for k in range(8):
        A(f"v_cvt_pk_bf16_f32 {v(PK+8+k)}, {v(GV+2*k+1)}, {v(GV+2*k+2)}")
    A(f"ds_write_b128 {v(vT)}, {v(PK,4)}")
    A(f"ds_write_b128 {v(vT)}, {v(PK+4,4)} offset:16")
    A(f"ds_write_b128 {v(vT)}, {v(PK+8,4)} offset:{KR_PITCH}")
    A(f"ds_write_b128 {v(vT)}, {v(PK+12,4)} offset:{KR_PITCH+16}")
    for i in range(4):
        A(f"v_mov_b32 {v(GV+i)}, 0")
    A(f"v_and_b32 {v(vT2)}, 1, {v(vLANE)}")
    A(f"v_lshl_add_u32 {v(vT2)}, {v(vT2)}, 4, {s(sKR)}")
    A(f"ds_write_b128 {v(vT2)}, {v(GV,4)} offset:4096")
    A(f"ds_write_b128 {v(vT2)}, {v(GV,4)} offset:{KR_PITCH+4096}")
    vKA, vUA = 10, 14
    vB, vG4 = 30, 31
    A(f"v_and_b32 {v(vB)}, 15, {v(vLANE)}")
    A(f"v_lshrrev_b32 {v(vG4)}, 4, {v(vLANE)}")
    A(f"v_sub_u32 {v(vT)}, 2031, {v(vB)}")
    A(f"v_and_b32 {v(vT2)}, 1, {v(vT)}")
    A(f"v_mul_u32_u24 {v(vT2)}, {KR_PITCH}, {v(vT2)}")
    A(f"v_lshrrev_b32 {v(vT)}, 1, {v(vT)}")
    A(f"v_lshl_add_u32 {v(vT)}, {v(vT)}, 2, {v(vT2)}")
    A(f"v_lshl_add_u32 {v(vT)}, {v(vG4)}, 4, {v(vT)}")
    A(f"s_lshl_b32 {s(sT0)}, {s(sPH)}, 8")
    A(f"s_sub_u32 {s(sT1)}, {s(sKR)}, {s(sT0)}")
    A(f"v_add_u32 {v(vT)}, {s(sT1)}, {v(vT)}")
    for p in range(4):
        A(f"v_subrev_u32 {v(vKA+p)}, {512*(2*p+1)+192}, {v(vT)}")
    A(f"s_sub_u32 {s(sT1)}, {s(sUBc)}, {s(sT0)}")
    A(f"s_add_u32 {s(sT1)}, {s(sT1)}, {448-192}")
    A(f"v_lshl_add_u32 {v(vUA)}, {v(vB)}, 5, {s(sT1)}")
    A(f"v_lshl_add_u32 {v(vUA)}, {v(vG4)}, 4, {v(vUA)}")
    pair_sync(2, vMine, vOther, vT)
    stamp(3)
    CA, FS = 32, 64

    def fa(st, q): return FS + 64 * st + 4 * q
    def fb_(st, x): return FS + 64 * st + 32 + 4 * x

    def creads(st, kp):
        r = []
        for q in range(8):
            o = 128 * (1 - (q & 1)) + 16 * (3 - kp)
            r.append(f"ds_read_b128 {v(fb_(st,q),4)}, {v(vUA)} offset:{512*q+64*(3-kp)}")
            r.append(f"ds_read2_b32 {v(fa(st,q),2)}, {v(vKA+q//2)} offset0:{o} offset1:{o+1}")
            r.append(f"ds_read2_b32 {v(fa(st,q)+2,2)}, {v(vKA+q//2)} offset0:{o+2} offset1:{o+3}")
        return r
    for r in creads(0, 0):
        A(r)
    for kp in range(4):
        st = kp % 2
        A("s_waitcnt lgkmcnt(0)")
        rs = creads(1 - st, kp + 1) if kp < 3 else []
        for q in range(8):
            for t in range(q, 8):
                cc = "0" if (kp == 0 and q == 0) else v(CA + 4 * t, 4)
                A(f"v_mfma_f32_16x16x32_bf16 {v(CA+4*t,4)}, {v(fa(st,q),4)}, {v(fb_(st,t-q),4)}, {cc}")
                if rs:
                    A(rs.pop(0))
    A(f"s_lshl_b32 {s(sT0)}, {s(sPH)}, 12")
    A(f"s_add_u32 {s(sT0)}, {s(sT0)}, {s(sKR)}")
    A(f"v_lshl_add_u32 {v(vT2)}, {v(vLANE)}, 4, {s(sT0)}")
    A(f"s_xor_b32 {s(sT1)}, {s(sPH)}, 1")
    A(f"s_lshl_b32 {s(sT1)}, {s(sT1)}, 12")
    A(f"s_add_u32 {s(sT1)}, {s(sT1)}, {s(sKR)}")
    A(f"v_lshl_add_u32 {v(vT3)}, {v(vLANE)}, 4, {s(sT1)}")
    hi, join = A.new("xh"), A.new("xj")
    A(f"s_cmp_eq_u32 {s(sPH)}, 1")
    A("s_nop 3")
    A(f"s_cbranch_scc1 {hi}")
    for t in range(4):
        A(f"ds_write_b128 {v(vT2)}, {v(CA+16+4*t,4)} offset:{EX_OFF+1024*t}")
    A(f"s_branch {join}")
    A.label(hi)
    for t in range(4):
        A(f"ds_write_b128 {v(vT2)}, {v(CA+4*t,4)} offset:{EX_OFF+1024*t}")
    for r in range(16):
        A(f"v_mov_b32 {v(CA+r)}, {v(CA+16+r)}")
    A.label(join)
    pair_sync(3, vMine, vOther, vT)
    for t in range(4):
        A(f"ds_read_b128 {v(FS+4*t,4)}, {v(vT3)} offset:{EX_OFF+1024*t}")
    A(f"v_and_b32 {v(vT)}, 1, {v(vG4)}")
    A(f"v_lshlrev_b32 {v(vT)}, 9, {v(vT)}")
    A(f"v_lshl_add_u32 {v(vT)}, {v(vB)}, 5, {v(vT)}")
    A(f"v_lshrrev_b32 {v(vT2)}, 1, {v(vG4)}")
    A(f"v_lshl_add_u32 {v(vT)}, {v(vT2)}, 4, {v(vT)}")
    A(f"s_lshl_b32 {s(sT0)}, {s(sCH)}, 12")
    A(f"s_lshl_b32 {s(sT1)}, {s(sPH)}, 11")
    A(f"s_add_u32 {s(sT0)}, {s(sT0)}, {s(sT1)}")
    A(f"s_add_u32 {s(sT0)}, {s(sT0)}, {OFF_Y}")
    A("s_waitcnt lgkmcnt(0)")
    for r in range(16):
        A(f"v_add_f32 {v(CA+r)}, {v(CA+r)}, {v(FS+r)}")
    YP = 100
    for pr in range(2):
        for tt in range(2):
            for d in range(2):
                src = CA + 4 * (2 * pr + tt) + 2 * d
                A(f"v_cvt_pk_bf16_f32 {v(YP+4*pr+2*tt+d)}, {v(src)}, {v(src+1)}")
    A("s_nop 1")
    for pr in range(2):
        A(f"v_permlane16_swap_b32 {v(YP+4*pr)}, {v(YP+4*pr+2)}")
        A(f"v_permlane16_swap_b32 {v(YP+4*pr+1)}, {v(YP+4*pr+3)}")
    for pr in range(2):
        A(f"buffer_store_dwordx4 {v(YP+4*pr,4)}, {v(vT)}, {s(rWS,4)}, {s(sT0)} offen offset:{1024*pr} sc1")
    A(f"s_lshr_b32 {s(sT0)}, {s(sCH)}, 6")
    A(f"s_lshl_b32 {s(sT0)}, {s(sT0)}, 1")
    A(f"s_add_u32 {s(sT0)}, {s(sT0)}, {s(sPH)}")
    A(f"s_lshl_b32 {s(sT0)}, {s(sT0)}, 8")
    A(f"s_and_b32 {s(sT1)}, {s(sCH)}, 63")
    A(f"s_lshl_b32 {s(sT1)}, {s(sT1)}, 2")
    A(f"s_add_u32 {s(sT0)}, {s(sT0)}, {s(sT1)}")
    A(f"s_add_u32 {s(sT0)}, {s(sT0)}, {OFF_FL+4096}")
    A(f"v_mov_b32 {v(vT)}, {s(sT0)}")
    A(f"v_mov_b32 {v(vT2)}, 1")
    A("s_waitcnt vmcnt(0)")
    A("s_mov_b64 exec, 1")
    A(f"global_store_dword {v(vT)}, {v(vT2)}, {s(pWS,2)} sc1")
    A("s_mov_b64 exec, -1")
    stamp(4)
    XV, STV, YV, YT, TV = 20, 28, 64, 72, 80
    A(f"s_lshl_b32 {s(sT0)}, {s(sCB)}, 2")
    A(f"s_add_u32 {s(sT0)}, {s(sT0)}, {s(sXW)}")
    A(f"s_lshl_b32 {s(sT2)}, {s(sT0)}, 5")
    A(f"s_load_dwordx8 {s(sDK,8)}, {s(pDS,2)}, {s(sT2)}")
    A(f"s_mul_i32 {s(sT1)}, {s(sRB64)}, {64*896}")
    A(f"s_add_u32 {s(sT1)}, {s(sT1)}, {s(sT2)}")
    A(f"v_mul_u32_u24 {v(vT)}, 896, {v(vLANE)}")
    A(f"buffer_load_dwordx4 {v(XV,4)}, {v(vT)}, {s(rX,4)}, {s(sT1)} offen")
    A(f"buffer_load_dwordx4 {v(XV+4,4)}, {v(vT)}, {s(rX,4)}, {s(sT1)} offen offset:16")
    A(f"s_lshl_b32 {s(sT1)}, {s(sRB64)}, 9")
    A(f"s_add_u32 {s(sT1)}, {s(sT1)}, {OFF_ST}")
    A(f"v_lshlrev_b32 {v(vT)}, 3, {v(vLANE)}")
    A(f"buffer_load_dwordx2 {v(STV,2)}, {v(vT)}, {s(rWS,4)}, {s(sT1)} offen sc1")
    A(f"s_lshl_b32 {s(sT1)}, {s(sCB)}, 1")
    A(f"s_lshr_b32 {s(sT3)}, {s(sRB64)}, 4")
    A(f"s_add_u32 {s(sT1)}, {s(sT1)}, {s(sT3)}")
    A(f"s_lshl_b32 {s(sT1)}, {s(sT1)}, 8")
    A(f"s_lshl_b32 {s(sT3)}, {s(sXW)}, 6")
    A(f"s_add_u32 {s(sT1)}, {s(sT1)}, {s(sT3)}")
    A(f"s_add_u32 {s(sT1)}, {s(sT1)}, {OFF_FL+4096}")
    A(f"v_lshl_add_u32 {v(vT)}, {v(vB)}, 2, {s(sT1)}")
    poll_global(vT, vT2, pWS)
    A(f"s_lshl_b32 {s(sT0)}, {s(sT0)}, 16")
    A(f"s_lshl_b32 {s(sT1)}, {s(sRB64)}, 7")
    A(f"s_add_u32 {s(sT0)}, {s(sT0)}, {s(sT1)}")
    A(f"s_add_u32 {s(sT0)}, {s(sT0)}, {OFF_Y}")
    A(f"s_add_u32 {s(sT1)}, {s(sT0)}, {8*4096}")
    A(f"v_lshrrev_b32 {v(vT)}, 3, {v(vLANE)}")
    A(f"v_lshlrev_b32 {v(vT)}, 12, {v(vT)}")
    A(f"v_and_b32 {v(vT2)}, 7, {v(vLANE)}")
    A(f"v_lshl_add_u32 {v(vT)}, {v(vT2)}, 4, {v(vT)}")
    A(f"buffer_load_dwordx4 {v(YV,4)}, {v(vT)}, {s(rWS,4)}, {s(sT0)} offen sc1")
    A(f"buffer_load_dwordx4 {v(YV+4,4)}, {v(vT)}, {s(rWS,4)}, {s(sT1)} offen sc1")
    A(f"s_lshl_b32 {s(sT0)}, {s(sPH)}, 11")
    A(f"s_add_u32 {s(sT0)}, {s(sT0)}, {s(sUBc)}")
    A(f"v_lshl_add_u32 {v(vT)}, {v(vLANE)}, 4, {s(sT0)}")
    A(f"v_bfe_u32 {v(vT2)}, {v(vLANE)}, 2, 2")
    A(f"v_lshl_add_u32 {v(vT2)}, {v(vT2)}, 7, {s(sT0)}")
    A(f"v_lshl_add_u32 {v(vT2)}, {v(vG4)}, 5, {v(vT2)}")
    A(f"v_and_b32 {v(vT3)}, 3, {v(vLANE)}")
    A(f"v_lshl_add_u32 {v(vT2)}, {v(vT3)}, 3, {v(vT2)}")
    A("s_waitcnt lgkmcnt(0)")
    A(f"v_lshlrev_b32 {v(STV)}, 16, {v(STV)}")
    for d in range(8):
        A(f"s_lshl_b32 {s(sDK+8)}, {s(sDK+d)}, 16")
        A(f"s_and_b32 {s(sDK+9)}, {s(sDK+d)}, 0xffff0000")
        A(f"v_lshlrev_b32 {v(TV+2*d)}, 16, {v(XV+d)}")
        A(f"v_and_b32 {v(TV+2*d+1)}, 0xffff0000, {v(XV+d)}")
        for h in range(2):
            A(f"v_add_f32 {v(vT3)}, {v(TV+2*d+h)}, {v(STV)}")
            A(f"v_mul_f32 {v(vT3)}, {v(vT3)}, {v(STV+1)}")
            A(f"v_fmac_f32 {v(TV+2*d+h)}, {s(sDK+8+h)}, {v(vT3)}")
    A(f"v_mul_f32 {v(STV+1)}, {v(STV+1)}, {v(STV+1)}")
    A("s_waitcnt vmcnt(0)")
    A(f"ds_write_b128 {v(vT)}, {v(YV,4)}")
    A(f"ds_write_b128 {v(vT)}, {v(YV+4,4)} offset:1024")
    for k in range(4):
        A(f"ds_read_b64_tr_b16 {v(YT+2*k,2)}, {v(vT2)} offset:{512*k}")
    A(f"s_mul_i32 {s(sT0)}, {s(sPH)}, {KR_PITCH}")
    A(f"s_add_u32 {s(sT0)}, {s(sT0)}, {s(sKR)}")
    A(f"v_lshl_add_u32 {v(vT)}, {v(vLANE)}, 6, {s(sT0)}")
    A(f"v_lshlrev_b32 {v(vT2)}, 2, {v(vLANE)}")
    A("s_waitcnt lgkmcnt(0)")
    for d in range(8):
        A(f"v_lshlrev_b32 {v(vT3)}, 16, {v(YT+d)}")
        A(f"v_add_f32 {v(TV+2*d)}, {v(TV+2*d)}, {v(vT3)}")
        A(f"v_and_b32 {v(vT3)}, 0xffff0000, {v(YT+d)}")
        A(f"v_add_f32 {v(TV+2*d+1)}, {v(TV+2*d+1)}, {v(vT3)}")
    for k in range(4):
        A(f"ds_write_b128 {v(vT)}, {v(TV+4*k,4)} offset:{16*k}")
    skip = A.new("r2")
    A(f"s_cmp_lg_u32 {s(sXW)}, 0")
    A(f"s_cbranch_scc1 {skip}")
    A(f"ds_write_b32 {v(vT2)}, {v(STV+1)} offset:{TB}")
    A.label(skip)
    A("s_waitcnt lgkmcnt(0)")
    A("s_barrier")


def main():
    hdr = open("cdna_kernels/" + NAME + ".s.ref").read().split("\n")
    out = [l for l in hdr if l.startswith(";") and "@launch" not in l and "Override" not in l and "grid=ceil" not in l]
    out.append(f"; @launch grid=(256,1,1) block=(512,1,1) lds={LDS_BYTES}")
    out.append('.amdgcn_target "amdgcn-amd-amdhsa--gfx950"')
    out.append(".text")
    out.append(f".globl {NAME}_kernel")
    out.append(".p2align 8")
    out.append(f".type {NAME}_kernel,@function")
    out.append(f"{NAME}_kernel:")
    prologue()
    cwave()
    side()
    xwave()
    final()
    out += A.l
    out.append('.section .rodata,"a"')
    out.append(".p2align 6")
    out.append(f".amdhsa_kernel {NAME}_kernel")
    out.append("  .amdhsa_next_free_vgpr 256")
    out.append("  .amdhsa_next_free_sgpr 102")
    out.append("  .amdhsa_accum_offset 256")
    out.append("  .amdhsa_group_segment_fixed_size 0")
    out.append("  .amdhsa_kernarg_size 112")
    out.append("  .amdhsa_user_sgpr_count 2")
    out.append("  .amdhsa_user_sgpr_kernarg_segment_ptr 1")
    out.append("  .amdhsa_system_sgpr_workgroup_id_x 1")
    out.append(".end_amdhsa_kernel")
    open(sys.argv[1], "w").write("\n".join(out) + "\n")


main()
```

```python
import sys, struct

NAME = "parallel_sum__ssm_conv_s4d__glu_gated_reglu__prompt"
OPT = dict(diag=0, rot1=4, rot2=4, sidepf=1, pfearly=1, prio=0, lprio=3, lag=32, hd=6, nodma=0, nokg=0, kprio=1, nos=0, cvprio=0, psl=8, ktog=1, h1at=8)
for a in sys.argv[2:]:
    k, val = a.split("=")
    OPT[k] = int(val)

OFF_U = 0x0
OFF_ST = 0x200000
OFF_FL = 0x220000
OFF_Y = 0x240000
OFF_H = 0x400000
OFF_TS = 0xC00000
WS_BYTES = 0x1000000

KA, KA_SZ = 0, 8320
UB, UB_SZ = 16640, 4576
KM = 25792
TB, TB_SZ = 34112, 2568
TB2, TB2_SZ = 39248, 2816
MB = 44880
SX = 45392
R2 = 47440
STB = 47696
FG = 48208
F_FREE, F_FULL, F_MRDY, F_URDY, F_TB2, F_KDONE, F_SX = FG, FG + 16, FG + 20, FG + 24, FG + 28, FG + 32, FG + 48
F_HRDY = FG + 40
TT, T_PITCH = 0, 272
XR = 49152
WR = 98304
PR = 49152
PR_SZ = 20480
KR_PITCH = 4160
LDS_BYTES = 163840

LOG2E = 0x3fb8aa3b
NLOG2E = 0xbfb8aa3b
INV2PI = 0x3e22f983


def f2u(x):
    return struct.unpack("<I", struct.pack("<f", x))[0]


def v(n, c=1):
    return f"v{n}" if c == 1 else f"v[{n}:{n+c-1}]"


def s(n, c=1):
    return f"s{n}" if c == 1 else f"s[{n}:{n+c-1}]"


class Asm:
    def __init__(self):
        self.l = []
        self.vm = 0
        self.uid = 0

    def __call__(self, t):
        self.l.append("    " + t)

    def label(self, n):
        self.l.append(n + ":")

    def c(self, t):
        self.l.append("    ; " + t)

    def vmem(self, t):
        self(t)
        self.vm += 1
        return self.vm

    def wait_vm(self, ident):
        n = self.vm - ident
        assert 0 <= n <= 63, n
        self(f"s_waitcnt vmcnt({n})")

    def new(self, p):
        self.uid += 1
        return f"L_{p}{self.uid}"


A = Asm()

sWG, sWAVE = 2, 3
pX, pLA, pAI, pCR, pCI, pLDT, pDS = 4, 6, 8, 10, 12, 14, 16
pWG, pWU, pWD, pOUT, pDBG, pWS = 20, 22, 24, 26, 28, 30
rX, rWG, rWU, rWD, rWS = 32, 36, 40, 44, 48
sXCD, sJ, sRB, sFB, sRB64, sCB, sCH0 = 52, 53, 54, 55, 56, 57, 58
sT0, sT1, sT2, sT3, sT4, sT5 = 59, 60, 61, 62, 63, 64
sW1, sW2, sW3, sCNT = 65, 66, 67, 68
sGRP = 87
sDK = 72
sTS = 88
vLANE = 1


def stamp(i):
    if OPT["diag"]:
        A(f"{'s_memtime' if OPT['diag']==2 else 's_memrealtime'} {s(sTS,2)}")
        A("s_waitcnt lgkmcnt(0)")
        A(f"s_mov_b32 {s(sTS+2+i)}, {s(sTS)}")


def stamp_flush(n):
    if not OPT["diag"]:
        return
    A(f"s_lshl_b32 {s(sT0)}, {s(sWG)}, 3")
    A(f"s_add_u32 {s(sT0)}, {s(sT0)}, {s(sWAVE)}")
    A(f"s_lshl_b32 {s(sT0)}, {s(sT0)}, 6")
    A(f"s_add_u32 {s(sT0)}, {s(sT0)}, {OFF_TS}")
    A(f"v_mov_b32 v2, {s(sT0)}")
    for i in range(12):
        A(f"v_mov_b32 v3, {s(sTS+2+i)}")
        A(f"global_store_dword v2, v3, {s(pWS,2)} offset:{4*i}")
        A("s_nop 1")


def srd(r, p, nbytes):
    A(f"s_mov_b32 {s(r)}, {s(p)}")
    A(f"s_and_b32 {s(r+1)}, {s(p+1)}, 0xffff")
    A(f"s_mov_b32 {s(r+2)}, {nbytes}")
    A(f"s_mov_b32 {s(r+3)}, 0x20000")


SPIN_MAX = 1 << 16


def poll_global(vaddr, vtmp, base, first_issued=False, sleep=1):
    lp, done, chk = A.new("pl"), A.new("pd"), A.new("pc")
    A(f"s_mov_b32 {s(sCNT)}, 0")
    if first_issued:
        A(f"s_branch {chk}")
    A.label(lp)
    A(f"global_load_dword {v(vtmp)}, {v(vaddr)}, {s(base,2)} sc1")
    A.label(chk)
    A("s_waitcnt vmcnt(0)")
    A(f"v_cmp_ne_u32 vcc, 0, {v(vtmp)}")
    A(f"s_add_u32 {s(sCNT)}, {s(sCNT)}, 1")
    A("s_cmp_eq_u64 vcc, exec")
    A(f"s_cbranch_scc1 {done}")
    A(f"s_sleep {sleep}")
    A(f"s_cmp_lt_u32 {s(sCNT)}, {SPIN_MAX}")
    A(f"s_cbranch_scc1 {lp}")
    A.label(done)


def lds_wait(vaddr, off, val, vt, sleep=0):
    lp, done = A.new("sl"), A.new("sd")
    A(f"s_mov_b32 {s(sCNT)}, 0")
    A.label(lp)
    A(f"ds_read_b32 {v(vt)}, {v(vaddr)} offset:{off}")
    A(f"s_add_u32 {s(sCNT)}, {s(sCNT)}, 1")
    A("s_waitcnt lgkmcnt(0)")
    A(f"v_cmp_le_u32 vcc, {val}, {v(vt)}")
    A(f"s_cbranch_vccnz {done}")
    if sleep:
        A(f"s_sleep {sleep}")
    A(f"s_cmp_lt_u32 {s(sCNT)}, {SPIN_MAX*16}")
    A(f"s_cbranch_scc1 {lp}")
    A.label(done)


def lds_set(vaddr, off, val, vt):
    A(f"v_mov_b32 {v(vt)}, {val}")
    A(f"ds_write_b32 {v(vaddr)}, {v(vt)} offset:{off}")


def prologue():
    A(f"s_cmp_ge_u32 {s(sWG)}, 256")
    A("s_cbranch_scc1 L_end")
    A(f"s_load_dwordx16 {s(4,16)}, s[0:1], 0")
    A(f"s_load_dwordx8 {s(20,8)}, s[0:1], 64")
    A(f"s_load_dwordx4 {s(28,4)}, s[0:1], 96")
    if OPT["diag"]:
        A(f"{'s_memtime' if OPT['diag']==2 else 's_memrealtime'} {s(sTS,2)}")
    A("v_lshrrev_b32 v2, 6, v0")
    A(f"v_and_b32 {v(vLANE)}, 63, v0")
    A(f"v_readfirstlane_b32 {s(sWAVE)}, v2")
    A(f"s_and_b32 {s(sXCD)}, {s(sWG)}, 7")
    A(f"s_lshr_b32 {s(sJ)}, {s(sWG)}, 3")
    A(f"s_getpc_b64 {s(sT1,2)}")
    A.label("L_pc")
    A("v_and_b32 v2, 0x1e0, v0")
    A(f"v_add_u32 v2, {s(sJ)}, v2")
    A("v_lshlrev_b32 v2, 7, v2")
    A("v_min_u32 v2, L_end-L_pc, v2")
    A(f"global_load_dword v95, v2, {s(sT1,2)}")
    A(f"s_and_b32 {s(sT0)}, {s(sXCD)}, 3")
    A(f"s_lshr_b32 {s(sT1)}, {s(sXCD)}, 2")
    A(f"s_cmp_lt_u32 {s(sJ)}, 4")
    A("s_cbranch_scc1 L_side")
    A(f"s_sub_u32 {s(sJ)}, {s(sJ)}, 4")
    A(f"s_and_b32 {s(sT2)}, {s(sJ)}, 3")
    A(f"s_lshr_b32 {s(sCB)}, {s(sJ)}, 2")
    A(f"s_lshl_b32 {s(sRB)}, {s(sT0)}, 2")
    A(f"s_add_u32 {s(sRB)}, {s(sRB)}, {s(sT2)}")
    A(f"s_mul_i32 {s(sFB)}, {s(sT1)}, 7")
    A(f"s_add_u32 {s(sFB)}, {s(sFB)}, {s(sCB)}")
    A(f"s_lshl_b32 {s(sRB64)}, {s(sT0)}, 1")
    A(f"s_add_u32 {s(sRB64)}, {s(sRB64)}, {s(sT1)}")
    A(f"s_lshl_b32 {s(sRB64)}, {s(sRB64)}, 2")
    A(f"s_add_u32 {s(sRB64)}, {s(sRB64)}, {s(sT2)}")
    A(f"s_add_u32 {s(sGRP)}, {s(sT2)}, {s(sCB)}")
    A(f"s_and_b32 {s(sGRP)}, {s(sGRP)}, 1")
    A(f"s_cmp_lt_u32 {s(sWAVE)}, 4")
    A("s_cbranch_scc1 L_cw")
    A(f"s_cmp_gt_u32 {s(sWAVE)}, 4")
    A("s_cbranch_scc1 L_kw")


def kernarg_ready():
    A("s_waitcnt lgkmcnt(0)")
    if OPT["diag"]:
        for i in range(12):
            A(f"s_mov_b32 {s(sTS+2+i)}, {s(sTS)}")
        stamp(11)


def side():
    A.label("L_side")
    A.vm = 0
    XB, F, SA = 8, 40, 100
    vR, vQ, vOFF, vT, vT2, vRI = 2, 3, 4, 5, 6, 36
    vM = 38
    sRG, sR64 = sRB, sRB64
    A(f"s_lshl_b32 {s(sR64)}, {s(sT0)}, 1")
    A(f"s_add_u32 {s(sR64)}, {s(sR64)}, {s(sT1)}")
    A(f"s_lshl_b32 {s(sR64)}, {s(sR64)}, 2")
    A(f"s_add_u32 {s(sR64)}, {s(sR64)}, {s(sJ)}")
    A(f"s_lshl_b32 {s(sRG)}, {s(sR64)}, 3")
    A(f"s_add_u32 {s(sRG)}, {s(sRG)}, {s(sWAVE)}")
    A(f"v_lshrrev_b32 {v(vR)}, 3, {v(vLANE)}")
    A(f"v_and_b32 {v(vQ)}, 7, {v(vLANE)}")
    A(f"v_mul_u32_u24 {v(vOFF)}, 896, {v(vR)}")
    A(f"v_lshl_add_u32 {v(vOFF)}, {v(vQ)}, 4, {v(vOFF)}")
    A(f"s_mul_i32 {s(sT2)}, {s(sRG)}, {8*896}")
    A(f"v_add_u32 {v(vOFF)}, {s(sT2)}, {v(vOFF)}")
    kernarg_ready()
    xl = []
    for i in range(7):
        xl.append(A.vmem(f"global_load_dwordx4 {v(XB+4*i,4)}, {v(vOFF)}, {s(pX,2)} offset:{128*i}"))
    srd(rWS, pWS, WS_BYTES)
    skip = A.new("nc")
    A(f"s_cmp_lg_u32 {s(sWG)}, 31")
    A(f"s_cbranch_scc1 {skip}")
    for i in range(4):
        A(f"v_mov_b32 {v(SA+i)}, 0")
    A(f"v_lshlrev_b32 {v(vT2)}, 4, v0")
    A(f"s_mov_b32 {s(sT3)}, {OFF_FL}")
    A(f"buffer_store_dwordx4 {v(SA,4)}, {v(vT2)}, {s(rWS,4)}, {s(sT3)} offen sc1")
    A("s_waitcnt vmcnt(0)")
    A.label(skip)
    C = SA
    A(f"s_mov_b32 {s(sT3)}, 0x3f803f80")
    A(f"v_mov_b32 {v(C)}, 0")
    A(f"v_mov_b32 {v(C+1)}, 0")
    for i in range(7):
        A.wait_vm(xl[i])
        if i == 6:
            stamp(1)
        for d in range(4):
            k = 4 * i + d
            A(f"v_dot2c_f32_bf16 {v(C+k%2)}, {s(sT3)}, {v(XB+k)}")
            A(f"v_lshlrev_b32 {v(F+2*k)}, 16, {v(XB+k)}")
            A(f"v_and_b32 {v(F+2*k+1)}, 0xffff0000, {v(XB+k)}")

    def reduce8():
        for m in ("quad_perm:[1,0,3,2]", "quad_perm:[2,3,0,1]", "row_half_mirror"):
            A("s_nop 1")
            A(f"v_add_f32_dpp {v(C)}, {v(C)}, {v(C)} {m} row_mask:0xf bank_mask:0xf")
    A("s_nop 2")
    A(f"v_add_f32 {v(C)}, {v(C)}, {v(C+1)}")
    reduce8()
    A(f"v_mul_f32 {v(vM)}, {f2u(-1.0/448):#x}, {v(C)}")
    A(f"v_mov_b32 {v(vM+1)}, {v(vM)}")
    for k in range(28):
        A(f"v_pk_add_f32 {v(F+2*k,2)}, {v(F+2*k,2)}, {v(vM,2)}")
    for k in range(28):
        a = C + 2 * (k % 2)
        if k < 2:
            A(f"v_pk_mul_f32 {v(a,2)}, {v(F+2*k,2)}, {v(F+2*k,2)}")
        else:
            A(f"v_pk_fma_f32 {v(a,2)}, {v(F+2*k,2)}, {v(F+2*k,2)}, {v(a,2)}")
    A(f"v_pk_add_f32 {v(C,2)}, {v(C,2)}, {v(C+2,2)}")
    A("s_nop 0")
    A(f"v_add_f32 {v(C)}, {v(C)}, {v(C+1)}")
    reduce8()
    A(f"v_mul_f32 {v(C)}, {f2u(1.0/448):#x}, {v(C)}")
    A(f"v_cvt_pk_bf16_f32 {v(vRI)}, {v(vM)}, {v(vM)}")
    A(f"v_cvt_pk_bf16_f32 {v(C)}, {v(C)}, {v(C)}")
    A(f"v_lshlrev_b32 {v(C)}, 16, {v(C)}")
    A(f"v_add_f32 {v(C)}, {f2u(1e-5):#x}, {v(C)}")
    A(f"v_cvt_pk_bf16_f32 {v(C)}, {v(C)}, {v(C)}")
    A(f"v_lshlrev_b32 {v(C)}, 16, {v(C)}")
    A(f"v_sqrt_f32 {v(C)}, {v(C)}")
    A(f"v_lshlrev_b32 {v(C+2)}, 16, {v(vRI)}")
    A(f"v_cvt_pk_bf16_f32 {v(C)}, {v(C)}, {v(C)}")
    A(f"v_lshlrev_b32 {v(C)}, 16, {v(C)}")
    A(f"v_rcp_f32 {v(vRI+1)}, {v(C)}")
    A(f"v_sub_f32 {v(C+2)}, {v(C+2)}, {v(vM)}")
    A(f"v_mul_f32 {v(C+2)}, {v(C+2)}, {v(vRI+1)}")
    A(f"v_mov_b32 {v(C+3)}, {v(C+2)}")
    A(f"v_mov_b32 {v(C)}, {v(vRI+1)}")
    A(f"v_mov_b32 {v(C+1)}, {v(vRI+1)}")
    A(f"v_lshlrev_b32 {v(vT2)}, 3, {v(vR)}")
    A(f"s_lshl_b32 {s(sT3)}, {s(sRG)}, 6")
    A(f"s_add_u32 {s(sT3)}, {s(sT3)}, {OFF_ST}")
    A(f"s_mov_b32 exec_lo, 0x01010101")
    A(f"s_mov_b32 exec_hi, 0x01010101")
    A.vmem(f"buffer_store_dwordx2 {v(vRI,2)}, {v(vT2)}, {s(rWS,4)}, {s(sT3)} offen sc1")
    A("s_mov_b64 exec, -1")
    A(f"s_mul_i32 {s(sT3)}, {s(sWAVE)}, 7680")
    A(f"v_mul_u32_u24 {v(vT2)}, 960, {v(vR)}")
    A(f"v_lshl_add_u32 {v(vT2)}, {v(vQ)}, 4, {v(vT2)}")
    A(f"v_add_u32 {v(vT2)}, {s(sT3)}, {v(vT2)}")
    for k in range(28):
        A(f"v_pk_fma_f32 {v(F+2*k,2)}, {v(F+2*k,2)}, {v(C,2)}, {v(C+2,2)}")
    for i in range(7):
        for d in range(4):
            k = 4 * i + d
            A(f"v_cvt_pk_bf16_f32 {v(XB+k)}, {v(F+2*k)}, {v(F+2*k+1)}")
        A(f"ds_write_b128 {v(vT2)}, {v(XB+4*i,4)} offset:{128*i}")
    A(f"v_bfe_u32 {v(vT2)}, {v(vLANE)}, 2, 2")
    A(f"v_mul_u32_u24 {v(vT2)}, 960, {v(vT2)}")
    A(f"v_lshrrev_b32 {v(vOFF)}, 4, {v(vLANE)}")
    A(f"v_lshl_add_u32 {v(vT2)}, {v(vOFF)}, 5, {v(vT2)}")
    A(f"v_and_b32 {v(vOFF)}, 3, {v(vLANE)}")
    A(f"v_lshl_add_u32 {v(vT2)}, {v(vOFF)}, 3, {v(vT2)}")
    A(f"v_add_u32 {v(vT2)}, {s(sT3)}, {v(vT2)}")
    for i in range(7):
        A(f"ds_read_b64_tr_b16 {v(F+4*i,2)}, {v(vT2)} offset:{128*i}")
        A(f"ds_read_b64_tr_b16 {v(F+4*i+2,2)}, {v(vT2)} offset:{128*i+3840}")
    L2B = 65536
    A(f"s_lshl_b32 {s(sT3)}, {s(sWAVE)}, 4")
    A(f"s_add_u32 {s(sT3)}, {s(sT3)}, {L2B}")
    A(f"v_mul_u32_u24 {v(vT2)}, 144, {v(vLANE)}")
    A(f"v_add_u32 {v(vT2)}, {s(sT3)}, {v(vT2)}")
    for i in range(7):
        A(f"s_waitcnt lgkmcnt({min(15, 12-2*i+i)})")
        A(f"ds_write_b128 {v(vT2)}, {v(F+4*i,4)} offset:{64*144*i}")
    A(f"s_mul_i32 {s(sT3)}, {s(sWAVE)}, {56*144}")
    A(f"s_add_u32 {s(sT3)}, {s(sT3)}, {L2B}")
    A(f"v_mul_u32_u24 {v(vT2)}, 144, {v(vR)}")
    A(f"v_lshl_add_u32 {v(vT2)}, {v(vQ)}, 4, {v(vT2)}")
    A(f"v_add_u32 {v(vT2)}, {s(sT3)}, {v(vT2)}")
    A(f"v_lshlrev_b32 {v(vOFF)}, 12, {v(vR)}")
    A(f"v_lshl_add_u32 {v(vOFF)}, {v(vQ)}, 4, {v(vOFF)}")
    A(f"s_mul_i32 {s(sT3)}, {s(sWAVE)}, {56*4096}")
    A(f"s_lshl_b32 {s(sT4)}, {s(sR64)}, 7")
    A(f"s_add_u32 {s(sT3)}, {s(sT3)}, {s(sT4)}")
    A("s_waitcnt lgkmcnt(0)")
    A("s_barrier")
    for i in range(7):
        A(f"ds_read_b128 {v(XB+4*i,4)}, {v(vT2)} offset:{8*144*i}")
    for i in range(7):
        A(f"s_waitcnt lgkmcnt({6-i})")
        A.vmem(f"buffer_store_dwordx4 {v(XB+4*i,4)}, {v(vOFF)}, {s(rWS,4)}, {s(sT3)} offen sc1")
        if i < 6:
            A(f"s_add_u32 {s(sT3)}, {s(sT3)}, {8*4096}")
    stamp(2)
    A("s_waitcnt vmcnt(0)")
    A("s_barrier")
    stamp(3)
    skip = A.new("nf")
    A(f"s_cmp_lg_u32 {s(sWAVE)}, 0")
    A(f"s_cbranch_scc1 {skip}")
    A(f"s_lshl_b32 {s(sT3)}, {s(sWG)}, 2")
    A(f"v_mov_b32 {v(vT2)}, {s(sT3)}")
    A(f"v_mov_b32 {v(vT)}, 1")
    A("s_mov_b64 exec, 1")
    A(f"global_store_dword {v(vT2)}, {v(vT)}, {s(pDBG,2)} sc1")
    A("s_mov_b64 exec, -1")
    A.label(skip)
    if OPT["sidepf"]:
        A(f"s_mul_i32 {s(sT3)}, {s(sJ)}, {448*896}")
        A(f"v_lshlrev_b32 {v(vT)}, 7, v0")
        A(f"v_min_u32 {v(vT)}, {447*128}, {v(vT)}")
        A(f"v_add_u32 {v(vT)}, {s(sT3)}, {v(vT)}")
        order = []
        for g in range(7):
            for c in (g, (g + OPT["rot2"]) % 7):
                if c not in order:
                    order.append(c)
        for n, g in enumerate(order[:OPT["sidepf"] if OPT["sidepf"] > 1 else 7]):
            A(f"v_add_u32 {v(vT2)}, {g*64*896}, {v(vT)}")
            A(f"global_load_dword {v(F+n)}, {v(vT2)}, {s(pWD,2)}")
        A("s_waitcnt vmcnt(0)")
        stamp(4)
    stamp_flush(4)
    A("s_endpgm")


def final():
    A.label("L_final")
    A("s_barrier")
    vRow, vC8, vP, vT, vR2, vO = 2, 3, 4, 5, 6, 7
    P, T = 8, 48
    A(f"v_lshrrev_b32 {v(vRow)}, 3, v0")
    A(f"v_and_b32 {v(vC8)}, 7, v0")
    A(f"v_lshrrev_b32 {v(vP)}, 5, {v(vRow)}")
    A(f"v_mul_u32_u24 {v(vP)}, 10240, {v(vP)}")
    A(f"v_lshrrev_b32 {v(vT)}, 2, {v(vC8)}")
    A(f"v_mul_u32_u24 {v(vT)}, 5120, {v(vT)}")
    A(f"v_add_u32 {v(vP)}, {v(vP)}, {v(vT)}")
    A(f"v_bfe_u32 {v(vT)}, {v(vRow)}, 3, 2")
    A(f"v_mul_u32_u24 {v(vT)}, 1280, {v(vT)}")
    A(f"v_add_u32 {v(vP)}, {v(vP)}, {v(vT)}")
    A(f"v_and_b32 {v(vT)}, 1, {v(vRow)}")
    A(f"v_mul_u32_u24 {v(vT)}, 272, {v(vT)}")
    A(f"v_add_u32 {v(vP)}, {v(vP)}, {v(vT)}")
    A(f"v_bfe_u32 {v(vT)}, {v(vRow)}, 1, 1")
    A(f"v_mul_u32_u24 {v(vT)}, 640, {v(vT)}")
    A(f"v_add_u32 {v(vP)}, {v(vP)}, {v(vT)}")
    A(f"v_bfe_u32 {v(vT)}, {v(vRow)}, 2, 1")
    A(f"v_lshl_add_u32 {v(vP)}, {v(vT)}, 7, {v(vP)}")
    A(f"v_and_b32 {v(vT)}, 3, {v(vC8)}")
    A(f"v_lshl_add_u32 {v(vP)}, {v(vT)}, 5, {v(vP)}")
    A(f"v_add_u32 {v(vP)}, {PR}, {v(vP)}")
    for q in range(4):
        A(f"ds_read_b128 {v(P+8*q,4)}, {v(vP)} offset:{q*PR_SZ}")
        A(f"ds_read_b128 {v(P+8*q+4,4)}, {v(vP)} offset:{q*PR_SZ+16}")
    A(f"v_mul_u32_u24 {v(vO)}, {T_PITCH}, {v(vRow)}")
    A(f"v_lshl_add_u32 {v(vO)}, {v(vC8)}, 5, {v(vO)}")
    A(f"ds_read_b128 {v(T,4)}, {v(vO)} offset:{TT}")
    A(f"ds_read_b128 {v(T+4,4)}, {v(vO)} offset:{TT+16}")
    A(f"v_lshlrev_b32 {v(vT)}, 2, {v(vRow)}")
    A(f"ds_read_b32 {v(vR2)}, {v(vT)} offset:{R2}")
    A(f"v_mul_u32_u24 {v(vO)}, 896, {v(vRow)}")
    A(f"v_lshl_add_u32 {v(vO)}, {v(vC8)}, 4, {v(vO)}")
    A(f"s_mul_i32 {s(sT0)}, {s(sRB64)}, {64*896}")
    A(f"s_lshl_b32 {s(sT1)}, {s(sCB)}, 7")
    A(f"s_add_u32 {s(sT0)}, {s(sT0)}, {s(sT1)}")
    A(f"v_add_u32 {v(vO)}, {s(sT0)}, {v(vO)}")
    A("s_waitcnt lgkmcnt(7)")
    for e in range(8):
        A(f"v_add_f32 {v(P+e)}, {v(P+e)}, {v(P+8+e)}")
    A("s_waitcnt lgkmcnt(3)")
    for e in range(8):
        A(f"v_add_f32 {v(P+16+e)}, {v(P+16+e)}, {v(P+24+e)}")
    for e in range(8):
        A(f"v_add_f32 {v(P+e)}, {v(P+e)}, {v(P+16+e)}")
    A("s_waitcnt lgkmcnt(0)")
    for e in range(8):
        A(f"v_fmac_f32 {v(T+e)}, {v(P+e)}, {v(vR2)}")
    for e in range(4):
        A(f"v_cvt_pk_bf16_f32 {v(P+e)}, {v(T+2*e)}, {v(T+2*e+1)}")
    A(f"global_store_dwordx4 {v(vO)}, {v(P,4)}, {s(pOUT,2)}")
    if OPT["diag"]:
        A("s_waitcnt vmcnt(0)")
    stamp(5)
    stamp_flush(6)
    A.label("L_end")
    A("s_endpgm")


WD_SLOT = [XR + 16384, WR + 2 * 16384, WR + 3 * 16384, XR + 2 * 16384, WR, WR + 16384, XR]
WD_FREE = [10, 11, 12, 12, 13, 14, 14]


def lwave():
    A.vm = 0
    vW, vX, vD, vT, vT2, vZ, vF = 4, 8, 12, 2, 3, 16, 20
    sWoff, sXoff, sDoff, sFREE = 69, 70, 71, 72
    A(f"v_lshrrev_b32 {v(vT)}, 4, {v(vLANE)}")
    A(f"v_mul_u32_u24 {v(vW)}, 3584, {v(vT)}")
    A(f"v_bfe_u32 {v(vT2)}, {v(vLANE)}, 2, 2")
    A(f"v_xor_b32 {v(vT2)}, {v(vT2)}, {v(vT)}")
    A(f"v_lshl_add_u32 {v(vW)}, {v(vT2)}, 6, {v(vW)}")
    A(f"v_and_b32 {v(vZ)}, 3, {v(vLANE)}")
    A(f"v_lshl_add_u32 {v(vW)}, {v(vZ)}, 4, {v(vW)}")
    A(f"s_lshl_b32 {s(sT1)}, {s(sFB)}, 8")
    A(f"v_add_u32 {v(vW)}, {s(sT1)}, {v(vW)}")
    for k in range(1, 4):
        A(f"v_add_u32 {v(vW+k)}, {k*(4*3584-1024)}, {v(vW)}")
    A(f"v_and_b32 {v(vT2)}, 7, {v(vLANE)}")
    A(f"v_xor_b32 {v(vT2)}, {v(vT2)}, {v(vT)}")
    A(f"v_lshrrev_b32 {v(vD)}, 3, {v(vLANE)}")
    A(f"v_mul_u32_u24 {v(vD)}, 896, {v(vD)}")
    A(f"s_mul_i32 {s(sT0)}, {s(sRB)}, {128*896}")
    A(f"v_add_u32 {v(vX+1)}, {s(sT0)}, {v(vD)}")
    A(f"v_lshl_add_u32 {v(vX)}, {v(vT2)}, 4, {v(vX+1)}")
    A(f"v_xor_b32 {v(vT2)}, 4, {v(vT2)}")
    A(f"v_lshl_add_u32 {v(vX+1)}, {v(vT2)}, 4, {v(vX+1)}")
    A(f"v_add_u32 {v(vX+2)}, {2*(7168-1024)}, {v(vX)}")
    A(f"v_add_u32 {v(vX+3)}, {3*(7168-1024)}, {v(vX+1)}")
    A(f"v_add_u32 {v(vX+1)}, {7168-1024}, {v(vX+1)}")
    A(f"s_mul_i32 {s(sWoff)}, {s(sGRP)}, {OPT['rot1']*64*3584}")
    A(f"s_mul_i32 {s(sXoff)}, {s(sGRP)}, {OPT['rot1']*128}")
    if OPT["lprio"]:
        A(f"s_setprio {OPT['lprio']}")
    kernarg_ready()
    srd(rWG, pWG, 448 * 1792 * 2)
    srd(rWU, pWU, 448 * 1792 * 2)
    srd(rX, pX, 2048 * 448 * 2)

    def quad(vb, rs, lds, sbase, add):
        A(f"s_mov_b32 m0, {lds}")
        if add:
            A(f"s_add_u32 {s(sT0)}, {s(sbase)}, {add}")
        else:
            A("s_nop 0")
        for k in range(4):
            if OPT["nodma"]:
                A.vmem("s_nop 3")
            else:
                A.vmem(f"buffer_load_dwordx4 {v(vb+k)}, {s(rs,4)}, {s(sT0 if add else sbase)} offen offset:{1024*k} lds")

    def adv(sr, inc, wrap):
        A(f"s_add_u32 {s(sr)}, {s(sr)}, {inc}")
        if wrap:
            A(f"s_cmp_eq_u32 {s(sr)}, {wrap}")
            A(f"s_cselect_b32 {s(sr)}, 0, {s(sr)}")

    prog = []

    def item_w(c, full):
        for n, (i, mat) in enumerate(((0, 0), (0, 1), (1, 0), (1, 1))):
            def f(i=i, mat=mat, n=n):
                quad(vW, rWU if mat else rWG, WR + (c % 4) * 16384 + mat * 8192 + i * 4096, sWoff, i * 16 * 3584)
                if n == 3:
                    adv(sWoff, 32 * 3584, 448 * 3584 if c % 2 else 0)
            prog.append((c - 3, f, full if n == 3 else None))

    def item_x(xc, half, full=None):
        for m in (2 * half, 2 * half + 1):
            def f(m=m):
                quad(vX, rX, XR + (xc % 3) * 16384 + m * 4096, sXoff, m * 32 * 896)
                if m == 3:
                    adv(sXoff, 128, 896)
            prog.append((2 * xc - 4, f, full if m % 2 else None))

    def item_d(p):
        for q in range(4):
            def f(q=q):
                quad(vD, rWD, WD_SLOT[p % 7] + q * 4096, sDoff, q * 448 * 896)
                if q == 3:
                    adv(sDoff, 32 * 896, 448 * 896 if p % 2 else 0)
            prog.append((WD_FREE[p] if p < 7 else C_FREE[p - 7], f, 15 + p if q == 3 else None))

    item_w(0, None); item_x(0, 0); item_x(0, 1, 1)
    for c in range(1, 14):
        if c % 2:
            item_w(c, c + 1)
            if c < 13:
                item_x((c + 1) // 2, 0)
        else:
            item_x(c // 2, 1)
            item_w(c, c + 1)
    for p in range(14):
        item_d(p)

    pending = []
    known = 0

    def signal(upto_val=None, lag=None):
        last = None
        while pending and ((upto_val is not None and pending[0][1] <= upto_val) or
                           (lag is not None and A.vm - pending[0][0] >= lag)):
            last = pending.pop(0)
        if last:
            A.wait_vm(last[0])
            lds_set(vZ, F_FULL, last[1], vT)

    stamp(6)
    for n, (need, f, full) in enumerate(prog):
        if n == 8:
            srd(rWD, pWD, 448 * 1792 * 2)
            A(f"v_lshrrev_b32 {v(vT2)}, 2, {v(vLANE)}")
            A(f"v_xor_b32 {v(vT)}, {v(vT)}, {v(vT2)}")
            A(f"v_and_b32 {v(vT)}, 1, {v(vT)}")
            A(f"v_lshl_add_u32 {v(vD)}, {v(vT)}, 6, {v(vD)}")
            A(f"v_lshl_add_u32 {v(vD)}, {v(vZ)}, 4, {v(vD)}")
            A(f"s_lshl_b32 {s(sT1)}, {s(sCB)}, 7")
            A(f"v_add_u32 {v(vD)}, {s(sT1)}, {v(vD)}")
            for k in range(1, 4):
                A(f"v_add_u32 {v(vD+k)}, {k*(7168-1024)}, {v(vD)}")
            A(f"s_mul_i32 {s(sDoff)}, {s(sGRP)}, {OPT['rot2']*64*896}")
            A(f"v_mov_b32 {v(vZ)}, 0")
            A(f"s_mov_b32 {s(sFREE)}, 0")
            A("s_barrier")
            stamp(1)
        if need > known:
            known = need
            if need == 18:
                for val in sorted(set(x[1] for x in pending)):
                    signal(upto_val=val)
            else:
                signal(upto_val=need + 1)
            lp, ok = A.new("fl"), A.new("fo")
            A(f"s_cmp_ge_u32 {s(sFREE)}, {need}")
            A(f"s_cbranch_scc1 {ok}")
            A(f"s_mov_b32 {s(sCNT)}, 0")
            A.label(lp)
            A(f"ds_read_b128 {v(vF,4)}, {v(vZ)} offset:{F_FREE}")
            A(f"s_add_u32 {s(sCNT)}, {s(sCNT)}, 1")
            A("s_waitcnt lgkmcnt(0)")
            A(f"v_min_u32 {v(vF)}, {v(vF)}, {v(vF+1)}")
            A(f"v_min3_u32 {v(vF)}, {v(vF)}, {v(vF+2)}, {v(vF+3)}")
            A(f"s_cmp_lt_u32 {s(sCNT)}, {SPIN_MAX*16}")
            A(f"v_readfirstlane_b32 {s(sFREE)}, {v(vF)}")
            A(f"s_cbranch_scc0 {ok}")
            A(f"s_cmp_lt_u32 {s(sFREE)}, {need}")
            A(f"s_cbranch_scc1 {lp}")
            A.label(ok)
        f()
        if full:
            pending.append((A.vm, full))
            if full in (4, 8, 14, 21):
                stamp({4: 7, 8: 8, 14: 2, 21: 3}[full])
        if n >= 8:
            signal(lag=OPT["lag"])
        if full == 26:
            A(f"v_min_u32 {v(vF+4)}, 27, {v(vLANE)}")
            A(f"s_lshl_b32 {s(sT1)}, {s(sRB64)}, 7")
            A(f"s_add_u32 {s(sT1)}, {s(sT1)}, {OFF_FL}")
            A(f"v_lshl_add_u32 {v(vF+4)}, {v(vF+4)}, 2, {s(sT1)}")
            pl = A.vmem(f"global_load_dword {v(vF+5)}, {v(vF+4)}, {s(pWS,2)} sc1")
    stamp(4)
    ok = A.new("h2")
    A.wait_vm(pl)
    A(f"v_cmp_ne_u32 vcc, 0, {v(vF+5)}")
    A("s_nop 0")
    A("s_cmp_eq_u64 vcc, exec")
    A(f"s_cbranch_scc1 {ok}")
    poll_global(vF + 4, vF + 5, pWS, sleep=OPT["psl"])
    A.label(ok)
    lds_set(vZ, F_HRDY, 1, vT)
    stamp(10)
    while pending:
        signal(upto_val=pending[0][1])
    stamp(9)
    A("s_setprio 0")
    A("s_waitcnt lgkmcnt(0)")
    A("s_barrier")
    A("s_branch L_final")


C_FREE = [18, 18, 18, 18, 21, 21, 21]


def cwave():
    A.label("L_cw")
    A.vm = 0
    vXA, vWA, vL16, vT, vT2, vFL = 2, 6, 8, 9, 10, 11
    vZ, vFA, vFV, vFW = 12, 13, 14, 15
    FR = 16
    SM = 64
    SEL, SAC = 88, 96
    ACC = 128
    sRH, sFH = sW1, sW2
    sW4K, sFULL = 76, 77

    def xf(st, rbk): return FR + 24 * st + 4 * rbk
    def wf(st, mat, j): return FR + 24 * st + 8 + 4 * (2 * mat + j)
    def acc(mat, j, rbk): return ACC + 16 * ((mat * 2 + j) * 2 + rbk)

    A(f"s_and_b32 {s(sRH)}, {s(sWAVE)}, 1")
    A(f"s_lshr_b32 {s(sFH)}, {s(sWAVE)}, 1")
    A(f"v_and_b32 {v(vT)}, 31, {v(vLANE)}")
    A(f"s_lshl_b32 {s(sT0)}, {s(sRH)}, 13")
    A(f"s_add_u32 {s(sT0)}, {s(sT0)}, {XR}")
    A(f"v_lshl_add_u32 {v(vT)}, {v(vT)}, 7, {s(sT0)}")
    A(f"v_bfe_u32 {v(vT2)}, {v(vLANE)}, 1, 3")
    A(f"v_lshrrev_b32 {v(vFL)}, 5, {v(vLANE)}")
    A(f"v_xor_b32 {v(vT2)}, {v(vT2)}, {v(vFL)}")
    for k in range(4):
        A(f"v_xor_b32 {v(vXA+k)}, {2*k}, {v(vT2)}")
        A(f"v_lshl_add_u32 {v(vXA+k)}, {v(vXA+k)}, 4, {v(vT)}")
    A(f"v_bfe_u32 {v(vT2)}, {v(vLANE)}, 2, 2")
    A(f"v_lshl_add_u32 {v(vT)}, {v(vFL)}, 3, {v(vT2)}")
    A(f"v_lshlrev_b32 {v(vT)}, 8, {v(vT)}")
    A(f"v_bfe_u32 {v(vL16)}, {v(vLANE)}, 4, 1")
    A(f"v_lshl_add_u32 {v(vT)}, {v(vL16)}, 5, {v(vT)}")
    A(f"v_and_b32 {v(vL16)}, 3, {v(vLANE)}")
    A(f"v_lshl_add_u32 {v(vT)}, {v(vL16)}, 3, {v(vT)}")
    A(f"v_add_u32 {v(vT)}, {WR}, {v(vT)}")
    A(f"v_xor_b32 {v(vT2)}, {s(sWAVE)}, {v(vT2)}")
    A(f"v_lshl_add_u32 {v(vWA)}, {v(vT2)}, 6, {v(vT)}")
    A(f"v_xor_b32 {v(vWA+1)}, 64, {v(vWA)}")
    A(f"s_lshl_b32 {s(sW4K)}, {s(sWAVE)}, 12")
    A(f"v_lshlrev_b32 {v(vL16)}, 4, {v(vLANE)}")
    A(f"v_mov_b32 {v(vZ)}, 0")
    A(f"s_lshl_b32 {s(sT0)}, {s(sWAVE)}, 2")
    A(f"v_mov_b32 {v(vFA)}, {s(sT0)}")
    for i in range(28):
        A(f"v_mov_b32 {v(SM+i)}, 0")
    A("s_mov_b32 exec_lo, 0x00100001")
    A("s_mov_b32 exec_hi, 0x00100001")
    for i in range(4):
        A(f"v_mov_b32 {v(SEL+i)}, 0x3f803f80")
    A("s_mov_b64 exec, -1")
    kernarg_ready()
    srd(rWS, pWS, WS_BYTES)
    if OPT["prio"]:
        A(f"s_setprio {OPT['prio']}")

    def reads(st, c, ks):
        xs = ((c // 2) % 3) * 16384
        k4 = (c % 2) * 2 + ks
        ws_ = (c % 4) * 16384 + ks * 4096
        r = []
        r.append(f"ds_read_b128 {v(xf(st,0),4)}, {v(vXA+k4)} offset:{xs}")
        for j in range(2):
            for mat in range(2):
                for h in range(2):
                    r.append(f"ds_read_b64_tr_b16 {v(wf(st,mat,j)+2*h,2)}, {v(vWA+j)} offset:{ws_+mat*8192+h*1024}")
            if j == 0:
                r.append(f"ds_read_b128 {v(xf(st,1),4)}, {v(vXA+k4)} offset:{xs+4096}")
        return r

    def mf(st, first):
        m = []
        for j in range(2):
            for rbk in range(2):
                for mat in range(2):
                    a = acc(mat, j, rbk)
                    cc = "0" if first else v(a, 16)
                    m.append(f"v_mfma_f32_32x32x16_bf16 {v(a,16)}, {v(wf(st,mat,j),4)}, {v(xf(st,rbk),4)}, {cc}")
        return m

    def smf(st, first):
        return [f"v_mfma_f32_16x16x32_bf16 {v(SAC+4*mat,4)}, {v(SEL,4)}, {v(wf(st,mat,0),4)}, {'0' if first else v(SAC+4*mat,4)}"
                for mat in range(2)]

    def mix(st, first):
        b, sm = mf(st, first), smf(st, first)
        if OPT["nos"]:
            sm = ["s_nop 0", "s_nop 0"]
        return b[:5] + sm + b[5:]

    A("s_barrier")
    lds_wait(vZ, F_FULL, 1, vT, sleep=1)
    stamp(1)
    for r in reads(0, 0, 0):
        A(r)
    A("s_waitcnt lgkmcnt(0)")
    for c in range(14):
        ms = mix(0, c == 0)
        rs = reads(1, c, 1)
        for i, m in enumerate(ms):
            if i == 9:
                A("s_waitcnt lgkmcnt(0)")
                if c < 13:
                    A(f"v_readfirstlane_b32 {s(sFULL)}, {v(vFV)}")
            A(m)
            for _ in range(2):
                if rs:
                    A(rs.pop(0))
            if i == 4:
                A(f"v_mov_b32 {v(vFW)}, {c+1}")
            if i == 5:
                A(f"ds_write_b32 {v(vFA)}, {v(vFW)} offset:{F_FREE}")
            if i == 5 and c < 13:
                A(f"ds_read_b32 {v(vFV)}, {v(vZ)} offset:{F_FULL}")
        if c == 13:
            break
        ok = A.new("cf")
        A(f"s_cmp_ge_u32 {s(sFULL)}, {c+2}")
        A(f"s_cbranch_scc1 {ok}")
        lds_wait(vZ, F_FULL, c + 2, vT)
        A.label(ok)
        if c in (2, 5, 8):
            stamp({2: 8, 5: 9, 8: 10}[c])
        ms = mix(1, False)
        rs = reads(0, c + 1, 0)
        for i, m in enumerate(ms):
            if i == 9:
                A("s_waitcnt lgkmcnt(0)")
            A(m)
            for _ in range(2):
                if rs:
                    A(rs.pop(0))
    ms = mf(1, False)
    for m in smf(1, False) + ms[:3]:
        A(m)
    A(f"s_lshl_b32 {s(sT0)}, {s(sWAVE)}, 9")
    A(f"v_lshrrev_b32 {v(vT)}, 2, {v(vL16)}")
    A(f"v_add_u32 {v(vT)}, {s(sT0)}, {v(vT)}")
    A(f"v_mov_b32 {v(vFW)}, 1")
    A("s_nop 1")
    for mat in range(2):
        d = SM + 8 * mat
        A(f"v_cvt_pk_bf16_f32 {v(d)}, {v(SAC+4*mat)}, {v(SAC+4*mat)}")
        A(f"v_lshlrev_b32 {v(d)}, 16, {v(d)}")
        A(f"v_sub_f32 {v(vT2)}, {v(SAC+4*mat)}, {v(d)}")
        A(f"v_cvt_pk_bf16_f32 {v(d)}, {v(d)}, {v(vT2)}")
        A(f"ds_write_b32 {v(vT)}, {v(d)} offset:{SX+256*mat}")
        if mat == 0:
            A(ms[3])
    A(f"ds_write_b32 {v(vFA)}, {v(vFW)} offset:{F_SX}")
    A(ms[4])
    A(f"v_xor_b32 {v(vT)}, 512, {v(vT)}")
    A(f"v_xor_b32 {v(vFL)}, 4, {v(vFA)}")
    A(f"v_and_b32 {v(vT2)}, 31, {v(vLANE)}")
    A(f"s_lshl_b32 {s(sT0)}, {s(sRH)}, 8")
    A(f"v_lshl_add_u32 {v(vT2)}, {v(vT2)}, 2, {s(sT0)}")
    A(ms[5])
    again, ok = A.new("sx"), A.new("so")
    A(f"s_mov_b32 {s(sCNT)}, 0")

    def sm_reads():
        A(f"ds_read_b32 {v(vFV)}, {v(vFL)} offset:{F_SX}")
        A(f"ds_read_b32 {v(vFW)}, {v(vZ)} offset:{F_MRDY}")
        for mat in range(2):
            A(f"ds_read_b32 {v(SM+8*mat+4)}, {v(vT)} offset:{SX+256*mat}")
        for rbk in range(2):
            A(f"ds_read_b32 {v(SM+16+4*rbk)}, {v(vT2)} offset:{MB+128*rbk}")
    sm_reads()
    A(ms[6])
    A(ms[7])
    A.label(again)
    A("s_waitcnt lgkmcnt(0)")
    A(f"v_and_b32 {v(vFV)}, {v(vFV)}, {v(vFW)}")
    A(f"v_cmp_ne_u32 vcc, 0, {v(vFV)}")
    A(f"s_cbranch_vccnz {ok}")
    sm_reads()
    A(f"s_add_u32 {s(sCNT)}, {s(sCNT)}, 1")
    A(f"s_cmp_lt_u32 {s(sCNT)}, {SPIN_MAX*16}")
    A(f"s_cbranch_scc1 {again}")
    A("s_waitcnt lgkmcnt(0)")
    A.label(ok)
    for j in range(2):
        for rbk in range(2):
            for mat in range(2):
                a = acc(mat, j, rbk)
                A(f"v_mfma_f32_32x32x16_bf16 {v(a,16)}, {v(SM+4*(2*mat+j),4)}, {v(SM+16+4*rbk,4)}, {v(a,16)}")
    stamp(2)
    sHA = 78
    A(f"s_lshl_b32 {s(sT0)}, {s(sRB)}, 1")
    A(f"s_add_u32 {s(sT0)}, {s(sT0)}, {s(sRH)}")
    A(f"s_lshl_b32 {s(sT1)}, {s(sFB)}, 1")
    A(f"s_add_u32 {s(sT1)}, {s(sT1)}, {s(sFH)}")
    A(f"s_mul_i32 {s(sT2)}, {s(sT0)}, {224*1024}")
    A(f"s_lshl_b32 {s(sT3)}, {s(sT1)}, 12")
    A(f"s_add_u32 {s(sT2)}, {s(sT2)}, {s(sT3)}")
    A(f"s_add_u32 {s(sT2)}, {s(sT2)}, {OFF_H}")
    A(f"s_lshl_b32 {s(sT3)}, {s(sRH)}, 11")
    A(f"s_add_u32 {s(sHA)}, {s(sT2)}, {s(sT3)}")
    A(f"s_xor_b32 {s(sHA+1)}, {s(sHA)}, 2048")
    A(f"s_add_u32 {s(sHA+2)}, {s(sHA)}, {112*1024}")
    A(f"s_add_u32 {s(sHA+3)}, {s(sHA+1)}, {112*1024}")
    A(f"s_lshl_b32 {s(sT4)}, {s(sT0)}, 7")
    A(f"s_lshl_b32 {s(sT1)}, {s(sT1)}, 2")
    A(f"s_add_u32 {s(sT4)}, {s(sT4)}, {s(sT1)}")
    A(f"s_add_u32 {s(sT4)}, {s(sT4)}, {OFF_FL}")
    for j in range(2):
        for rbk in range(2):
            g_, u_ = acc(0, j, rbk), acc(1, j, rbk)
            for ab in range(2):
                b = 8 * ab
                for e in range(8):
                    A(f"v_max_f32 {v(g_+b+e)}, 0, {v(g_+b+e)}")
                for e in range(8):
                    A(f"v_mul_f32 {v(g_+b+e)}, {v(g_+b+e)}, {v(u_+b+e)}")
                for e in range(4):
                    A(f"v_cvt_pk_bf16_f32 {v(g_+b+e)}, {v(g_+b+2*e)}, {v(g_+b+2*e+1)}")
                hs = A.vmem(f"buffer_store_dwordx4 {v(g_+b,4)}, {v(vL16)}, {s(rWS,4)}, {s(sHA+2*rbk+j)} offen offset:{ab*1024} sc1")
    stamp(6)
    vDA = 2
    A(f"v_bfe_u32 {v(vT2)}, {v(vLANE)}, 2, 2")
    A(f"v_lshrrev_b32 {v(vT)}, 5, {v(vLANE)}")
    A(f"v_lshl_add_u32 {v(vT)}, {v(vT)}, 2, {v(vT2)}")
    A(f"v_lshl_add_u32 {v(vT)}, {v(vT)}, 7, {s(sW4K)}")
    A(f"v_bfe_u32 {v(vT2)}, {v(vLANE)}, 4, 1")
    A(f"v_lshl_add_u32 {v(vT)}, {v(vT2)}, 5, {v(vT)}")
    A(f"v_and_b32 {v(vT2)}, 3, {v(vLANE)}")
    A(f"v_lshl_add_u32 {v(vT)}, {v(vT2)}, 3, {v(vT)}")
    A(f"v_bfe_u32 {v(vT2)}, {v(vLANE)}, 3, 1")
    A(f"v_lshl_add_u32 {v(vT)}, {v(vT2)}, 6, {v(vT)}")
    A(f"v_add_u32 {v(vDA)}, {XR}, {v(vT)}")
    A(f"v_xor_b32 {v(vDA+1)}, 64, {v(vDA)}")
    A(f"v_add_u32 {v(vDA+2)}, {WR}, {v(vT)}")
    A(f"v_xor_b32 {v(vDA+3)}, 64, {v(vDA+2)}")
    ACC2, HB, W2 = 64, 16, 128
    HD = OPT["hd"]

    def w1(pos):
        return 192 + 8 * pos if pos < 8 else 144 + 8 * (pos - 8)

    def wd_reads(dst, pos):
        sl = WD_SLOT[(pos % 14) // 2]
        hi = sl >= WR
        off = sl - (WR if hi else XR) + (pos % 2) * 2048
        return [f"ds_read_b64_tr_b16 {v(dst+4*cj+2*h,2)}, {v(vDA+2*hi+cj)} offset:{off+h*1024}"
                for cj in range(2) for h in range(2)]
    lds_wait(vZ, F_FULL, 18, vT)
    for pos in range(8):
        for r in wd_reads(w1(pos), pos):
            A(r)
    lds_set(vFA, F_FREE, 18, vFW)
    A(f"v_mov_b32 {v(vT)}, {s(sT4)}")
    A(f"v_mov_b32 {v(vT2)}, 1")
    A.wait_vm(hs)
    A("s_mov_b64 exec, 1")
    A.vmem(f"global_store_dword {v(vT)}, {v(vT2)}, {s(pWS,2)} sc1")
    A("s_mov_b64 exec, -1")
    stamp(3)
    lds_wait(vZ, F_FULL, 21, vT)
    for pos in range(8, 14):
        for r in wd_reads(w1(pos), pos):
            A(r)
    lds_set(vFA, F_FREE, 21, vFW)
    sHB, sHoff, sH0, sH1 = 78, 79, 80, 81
    A(f"s_mul_i32 {s(sHB)}, {s(sRB64)}, {224*1024}")
    A(f"s_mul_i32 {s(sT0)}, {s(sWAVE)}, {28*1024}")
    A(f"s_add_u32 {s(sHB)}, {s(sHB)}, {s(sT0)}")
    A(f"s_add_u32 {s(sHB)}, {s(sHB)}, {OFF_H}")
    A(f"s_mul_i32 {s(sHoff)}, {s(sGRP)}, {OPT['rot2']*4096}")
    lds_wait(vZ, F_HRDY, 1, vT, sleep=1)
    stamp(4)
    hid = {}

    def h_load(ks):
        if ks % 4 == 0:
            if ks > 0:
                A(f"s_add_u32 {s(sHoff)}, {s(sHoff)}, 4096")
                A(f"s_cmp_eq_u32 {s(sHoff)}, {28*1024}")
                A(f"s_cselect_b32 {s(sHoff)}, 0, {s(sHoff)}")
            A(f"s_add_u32 {s(sH0)}, {s(sHB)}, {s(sHoff)}")
            A(f"s_add_u32 {s(sH1)}, {s(sH0)}, {112*1024}")
        for rbk in range(2):
            hid[ks] = A.vmem(f"buffer_load_dwordx4 {v(HB+8*(ks%HD)+4*rbk,4)}, {v(vL16)}, {s(rWS,4)}, {s(sH0+rbk)} offen offset:{(ks%4)*1024} sc1")
    for ks in range(HD):
        h_load(ks)
    A("s_waitcnt lgkmcnt(0)")
    for ks in range(28):
        if ks == 13:
            lds_wait(vZ, F_FULL, 28, vT)
        if ks >= 13 and ks + 1 < 28:
            for r in wd_reads(W2 + 8 * ((ks + 1) % 2), ks + 1):
                A(r)
        A.wait_vm(hid[ks])
        if ks >= 14:
            A(f"s_waitcnt lgkmcnt({4 if ks + 1 < 28 else 0})")
        wb = w1(ks) if ks < 14 else W2 + 8 * (ks % 2)
        for rbk in range(2):
            for cj in range(2):
                a = ACC2 + 16 * (2 * rbk + cj)
                cc = "0" if ks == 0 else v(a, 16)
                A(f"v_mfma_f32_32x32x16_bf16 {v(a,16)}, {v(HB+8*(ks%HD)+4*rbk,4)}, {v(wb+4*cj,4)}, {cc}")
        if ks + HD < 28:
            h_load(ks + HD)
    stamp(7)
    A("s_barrier")
    A(f"s_mul_i32 {s(sT0)}, {s(sWAVE)}, {PR_SZ}")
    A(f"s_add_u32 m0, {s(sT0)}, 4092")
    A("s_nop 9")
    pos = [0, 272, 640, 912]
    for t in range(4):
        for r in range(16):
            A(f"ds_write_addtid_b32 {v(ACC2+16*t+r)} offset:{PR-4092+t*5120+(r//4)*1280+pos[r%4]}")
    A("s_waitcnt lgkmcnt(0)")
    A("s_branch L_final")


def kgen_slot(R):
    e = A
    la, ai, cr, ci, dt, dt2 = [R["P"] + k for k in range(6)]
    t = R["tmp"]
    zr, zi = t, t + 1
    E = {1: t + 2, 8: t + 4, 256: t + 6}
    q0, q1, q2 = t + 8, t + 9, t + 10
    Ak = [t + 12 + 2 * k for k in range(8)]
    PK = R["PK"]
    AF, BF, DK, wa, ra = R["AF"], R["BF"], R["DK"], R["wa"], R["ra"]
    if OPT["ktog"]:
        e("s_setprio 0")
    e(f"v_mul_f32 {v(q0)}, {LOG2E:#x}, {v(la)}")
    e(f"v_exp_f32 {v(q0)}, {v(q0)}")
    e(f"v_mul_f32 {v(zi)}, {v(ai)}, {v(dt)}")
    e(f"v_cvt_pk_bf16_f32 {v(q0)}, {v(q0)}, {v(q0)}")
    e(f"v_lshlrev_b32 {v(q0)}, 16, {v(q0)}")
    e(f"v_mul_f32 {v(q0)}, {v(q0)}, {v(dt)}")
    e(f"v_mul_f32 {v(zr)}, {NLOG2E:#x}, {v(q0)}")
    e(f"v_mul_f32 {v(zi)}, {INV2PI:#x}, {v(zi)}")
    for p in (1, 8, 256):
        e(f"v_mul_f32 {v(q0)}, {f2u(float(p)):#x}, {v(zr)}")
        e(f"v_mul_f32 {v(q1)}, {f2u(float(p)):#x}, {v(zi)}")
        e(f"v_exp_f32 {v(q0)}, {v(q0)}")
        e(f"v_fract_f32 {v(q1)}, {v(q1)}")
        e(f"v_cos_f32 {v(q2)}, {v(q1)}")
        e(f"v_sin_f32 {v(q1)}, {v(q1)}")
        e(f"v_mul_f32 {v(E[p])}, {v(q0)}, {v(q2)}")
        if p == 8:
            e(f"v_mul_f32 {v(E[p]+1)}, -{v(q0)}, {v(q1)}")
        else:
            e(f"v_mul_f32 {v(E[p]+1)}, {v(q0)}, {v(q1)}")
    st = [0]

    def pack(dw, a, b):
        e(f"v_cvt_pk_bf16_f32 {v(PK+8*st[0]+dw)}, {v(a)}, {v(b)}")
        e(f"v_cvt_pk_bf16_f32 {v(PK+8*st[0]+4+dw)}, {v(a+1)}, {v(b+1)}")

    def hi():
        if OPT["ktog"]:
            e("s_setprio 2")

    def lo():
        if OPT["ktog"]:
            e("s_setprio 0")

    def flush(slot, keep=False):
        hi()
        e(f"ds_write_b128 {v(wa+slot)}, {v(PK+8*st[0],4)}")
        e(f"ds_write_b128 {v(wa+slot)}, {v(PK+8*st[0]+4,4)} offset:4096")
        if not keep:
            lo()
        st[0] ^= 1

    def cmul(d, a, b):
        e(f"v_mul_f32 {v(q0)}, {v(a+1)}, {v(b+1)}")
        e(f"v_mul_f32 {v(q1)}, {v(a+1)}, {v(b)}")
        e(f"v_fma_f32 {v(d+1)}, {v(a)}, {v(b+1)}, {v(q1)}")
        e(f"v_fma_f32 {v(d)}, {v(a)}, {v(b)}, -{v(q0)}")

    def frags(dst):
        for i in range(8):
            for h in range(2):
                e(f"ds_read_b64_tr_b16 {v(dst+4*i+2*h,2)}, {v(ra+h)} offset:{1024*i}")
    e(f"v_mul_f32 {v(Ak[0])}, {v(cr)}, {v(dt2)}")
    e(f"v_mul_f32 {v(Ak[0]+1)}, {v(ci)}, {v(dt2)}")
    for k in range(1, 8):
        cmul(Ak[k], Ak[k - 1], E[1])
        if k % 2:
            pack(k // 2, Ak[k - 1], Ak[k])
    flush(0)
    G = E[256]
    for k in (0, 2, 4, 6):
        cmul(Ak[k], Ak[k], G)
    pack(0, Ak[0], Ak[2]); pack(2, Ak[4], Ak[6])
    cmul(Ak[0], Ak[0], G); cmul(Ak[4], Ak[4], G); pack(1, Ak[0], Ak[4])
    cmul(Ak[0], Ak[0], G); cmul(Ak[4], Ak[4], G); pack(3, Ak[0], Ak[4])
    flush(1)
    cmul(Ak[0], Ak[0], G); cmul(Ak[1], Ak[0], G); pack(0, Ak[0], Ak[1])
    cmul(Ak[0], Ak[1], G); cmul(Ak[1], Ak[0], G); pack(2, Ak[0], Ak[1])
    cmul(Ak[0], Ak[1], G); pack(1, Ak[0], Ak[0])
    flush(2, True)
    frags(AF)
    lo()
    X, Y = Ak[2], Ak[3]
    e(f"v_mov_b32 {v(X)}, 1.0")
    e(f"v_mov_b32 {v(X+1)}, 0")
    pack(0, X, E[8])
    prev = E[8]
    for i in range(1, 16):
        cmul(X, prev, E[8])
        cmul(Y, X, E[8])
        prev = Y
        pack(i % 4, X, Y)
        if i % 4 == 3:
            flush(i // 4, i == 15)
    frags(BF)
    for i in range(8):
        e(f"s_waitcnt lgkmcnt({14-2*i})")
        e(f"v_mfma_f32_32x32x16_bf16 {v(DK,16)}, {v(AF+4*i,4)}, {v(BF+4*i,4)}, {v(DK,16)}")


def kwave():
    A.label("L_kw")
    A.vm = 0
    sCI, sCH, sKB, sIT, sUBc, sTBc = sW1, sW2, sW3, 69, 70, 71
    vT, vT2, vT3, vZ = 2, 3, 4, 5
    R = dict(P=8, tmp=28, PK=56, wa=72, ra=76, AF=80, BF=112, DK=144)
    P = R["P"]
    LD = 160
    GA = 170
    A(f"s_mul_i32 {s(sCH0)}, {s(sXCD)}, 28")
    A(f"s_add_u32 {s(sCH0)}, {s(sCH0)}, {s(sJ)}")
    A(f"s_lshl_b32 {s(sCH0)}, {s(sCH0)}, 1")
    A(f"s_and_b32 {s(sCI)}, {s(sWAVE)}, 1")
    A(f"s_add_u32 {s(sCH)}, {s(sCH0)}, {s(sCI)}")
    A(f"s_lshl_b32 {s(sT3)}, {s(sCH0)}, 1")
    isK, ld_done = A.new("ik"), A.new("ld")
    A(f"s_cmp_lg_u32 {s(sWAVE)}, 5")
    A(f"s_cbranch_scc1 {isK}")
    A(f"s_lshl_b32 {s(sT0)}, {s(sCH0)}, 9")
    A(f"v_lshl_add_u32 {v(vT)}, {v(vLANE)}, 3, {s(sT0)}")
    kernarg_ready()
    for k, p in enumerate((pLA, pAI, pCR, pCI)):
        A(f"global_load_dword {v(LD+2*k)}, {v(vT)}, {s(p,2)} offset:4")
        A(f"global_load_dword {v(LD+2*k+1)}, {v(vT)}, {s(p,2)} offset:516")
    A(f"s_mov_b32 {s(sKB)}, {KM}")
    A(f"s_mov_b32 {s(sIT)}, 2")
    for i in range(4):
        A(f"v_mov_b32 {v(28+i)}, 0")
    A(f"v_min_u32 {v(vT2)}, 29, {v(vLANE)}")
    A(f"v_lshlrev_b32 {v(vT2)}, 4, {v(vT2)}")
    A(f"ds_write_b128 {v(vT2)}, {v(28,4)} offset:{UB}")
    A(f"ds_write_b128 {v(vT2)}, {v(28,4)} offset:{UB+UB_SZ}")
    A(f"v_and_b32 {v(vT2)}, 48, {v(vT2)}")
    A(f"ds_write_b128 {v(vT2)}, {v(28,4)} offset:{FG}")
    A(f"ds_write_b32 {v(28)}, {v(28)} offset:{TB}")
    A(f"ds_write_b32 {v(28)}, {v(28)} offset:{TB+TB_SZ}")
    A(f"s_branch {ld_done}")
    A.label(isK)
    A(f"s_lshl_b32 {s(sT0)}, {s(sCH)}, 9")
    A(f"v_lshl_add_u32 {v(vT)}, {v(vLANE)}, 3, {s(sT0)}")
    kernarg_ready()
    for k, p in enumerate((pLA, pAI, pCR, pCI)):
        A(f"global_load_dwordx2 {v(LD+2*k,2)}, {v(vT)}, {s(p,2)}")
    A(f"s_mul_i32 {s(sKB)}, {s(sCI)}, {KA_SZ}")
    A(f"s_mov_b32 {s(sIT)}, 3")
    A.label(ld_done)
    A(f"s_load_dword {s(sT4)}, {s(pLDT,2)}, {s(sT3)}")
    srd(rWS, pWS, WS_BYTES)
    A(f"v_mov_b32 {v(vZ)}, 0")
    A(f"v_lshl_add_u32 {v(vT)}, {v(vLANE)}, 6, {s(sKB)}")
    A(f"v_bfe_u32 {v(vT2)}, {v(vLANE)}, 1, 2")
    for k in range(4):
        A(f"v_xor_b32 {v(vT3)}, {k}, {v(vT2)}")
        A(f"v_lshl_add_u32 {v(R['wa']+k)}, {v(vT3)}, 4, {v(vT)}")
    A(f"v_bfe_u32 {v(vT2)}, {v(vLANE)}, 2, 2")
    A(f"v_lshrrev_b32 {v(vT)}, 5, {v(vLANE)}")
    A(f"v_lshl_add_u32 {v(vT)}, {v(vT)}, 3, {v(vT2)}")
    A(f"v_lshl_add_u32 {v(vT)}, {v(vT)}, 6, {s(sKB)}")
    A(f"v_bfe_u32 {v(vT2)}, {v(vLANE)}, 4, 1")
    A(f"v_lshl_add_u32 {v(vT)}, {v(vT2)}, 5, {v(vT)}")
    A(f"v_lshrrev_b32 {v(vT2)}, 1, {v(vLANE)}")
    A(f"v_lshrrev_b32 {v(vT3)}, 3, {v(vLANE)}")
    A(f"v_xor_b32 {v(vT2)}, {v(vT2)}, {v(vT3)}")
    A(f"v_and_b32 {v(vT2)}, 1, {v(vT2)}")
    A(f"v_lshl_add_u32 {v(vT)}, {v(vT2)}, 4, {v(vT)}")
    A(f"v_and_b32 {v(vT2)}, 1, {v(vLANE)}")
    A(f"v_lshl_add_u32 {v(R['ra'])}, {v(vT2)}, 3, {v(vT)}")
    A(f"v_add_u32 {v(R['ra']+1)}, 256, {v(R['ra'])}")
    A(f"v_xor_b32 {v(R['ra']+1)}, 32, {v(R['ra']+1)}")
    DK = R["DK"]
    for r in range(16):
        A(f"v_mov_b32 {v(DK+r)}, 0")
    A(f"s_mul_i32 {s(sUBc)}, {s(sCI)}, {UB_SZ}")
    A(f"s_add_u32 {s(sUBc)}, {s(sUBc)}, {UB}")
    A(f"s_mul_i32 {s(sTBc)}, {s(sCI)}, {TB_SZ}")
    A(f"s_add_u32 {s(sTBc)}, {s(sTBc)}, {TB+4}")
    A("s_waitcnt lgkmcnt(0)")
    A("s_barrier")
    for ph in range(2):
        G = GA + 18 * ph
        A(f"v_lshlrev_b32 {v(vT)}, 4, {v(vLANE)}")
        A(f"v_sub_u32 {v(vT)}, {2047-1024*ph}, {v(vT)}")
        if ph:
            A(f"v_cmp_gt_u32 vcc, 256, {v(vT)}")
            A(f"v_subrev_u32 {v(vT2)}, 16, {v(vT)}")
            A(f"v_mov_b32 {v(vT3)}, 144")
            A(f"v_cndmask_b32 {v(vT)}, {v(vT)}, {v(vT3)}, vcc")
            A(f"v_mov_b32 {v(vT3)}, 128")
            A(f"v_cndmask_b32 {v(vT2)}, {v(vT3)}, {v(vT2)}, vcc")
        else:
            A(f"v_mov_b32 {v(vT2)}, 128")
        A(f"v_cvt_f32_u32 {v(vT)}, {v(vT)}")
        A(f"v_subrev_u32 {v(vT2)}, 0x4300, {v(vT2)}")
        A(f"v_lshl_add_u32 {v(vT2)}, {v(vT2)}, 2, {s(sTBc)}")
        ks = range(0, 17, 2) if ph else (0, 8, 16)
        for k in ks:
            A(f"v_subrev_f32 {v(G+k)}, {f2u(float(k)):#x}, {v(vT)}")
            A(f"v_subrev_f32 {v(G+k+1)}, {f2u(float(k+1)):#x}, {v(vT)}")
            A(f"v_cvt_pk_bf16_f32 {v(vT3)}, {v(G+k)}, {v(G+k+1)}")
            A(f"v_mad_u32_u16 {v(G+k)}, {v(vT3)}, 4, {v(vT2)}")
            if k < 16 and ph:
                A(f"v_mad_u32_u16 {v(G+k+1)}, {v(vT3)}, 4, {v(vT2)} op_sel:[1,0,0,0]")
    A(f"s_lshl_b32 {s(sT0)}, {s(sT4)}, 16")
    A(f"s_and_b32 {s(sT1)}, {s(sT4)}, 0xffff0000")
    A(f"v_mov_b32 {v(vT3)}, {LOG2E:#x}")
    A(f"v_mul_f32 {v(vT)}, {s(sT0)}, {v(vT3)}")
    A(f"v_mul_f32 {v(vT2)}, {s(sT1)}, {v(vT3)}")
    A(f"v_exp_f32 {v(vT)}, {v(vT)}")
    A(f"v_exp_f32 {v(vT2)}, {v(vT2)}")
    A("s_nop 0")
    A(f"v_cvt_pk_bf16_f32 {v(vT3)}, {v(vT)}, {v(vT2)}")
    A(f"v_lshlrev_b32 {v(vT)}, 16, {v(vT3)}")
    A(f"v_and_b32 {v(vT2)}, 0xffff0000, {v(vT3)}")
    isK, up_done = A.new("ik"), A.new("up")
    A("s_waitcnt vmcnt(0)")
    stamp(1)
    A(f"s_cmp_lg_u32 {s(sWAVE)}, 5")
    A(f"s_cbranch_scc1 {isK}")
    for st in range(2):
        for k in range(4):
            A(f"v_and_b32 {v(P+6*st+k)}, 0xffff0000, {v(LD+2*k+st)}")
        A(f"v_mov_b32 {v(P+6*st+4)}, {v(vT+st)}")
        A(f"v_add_f32 {v(P+6*st+5)}, {v(vT+st)}, {v(vT+st)}")
    A(f"s_branch {up_done}")
    A.label(isK)
    A(f"s_cmp_eq_u32 {s(sCI)}, 1")
    A("s_cselect_b64 vcc, -1, 0")
    A(f"v_cndmask_b32 {v(vT)}, {v(vT)}, {v(vT2)}, vcc")
    for st in range(3):
        for k in range(4):
            if st == 1:
                A(f"v_and_b32 {v(P+6*st+k)}, 0xffff0000, {v(LD+2*k)}")
            else:
                A(f"v_lshlrev_b32 {v(P+6*st+k)}, 16, {v(LD+2*k+st//2)}")
        A(f"v_mov_b32 {v(P+6*st+4)}, {v(vT)}")
        A(f"v_add_f32 {v(P+6*st+5)}, {v(vT)}, {v(vT)}")
    A.label(up_done)
    A(f"s_setprio {OPT['kprio']}")
    A(f"v_lshlrev_b32 {v(vT3)}, 2, {v(vLANE)}")
    A(f"v_mov_b32 {v(vT2)}, 0")
    loop, nof = A.new("kl"), A.new("kn")
    A.label(loop)
    if not OPT["nokg"]:
        kgen_slot(R)
    for k in range(12):
        A(f"v_mov_b32 {v(P+k)}, {v(P+6+k)}")
    A(f"s_cmp_lg_u32 {s(sWAVE)}, 5")
    A(f"s_cbranch_scc1 {nof}")
    A(f"v_add_u32 {v(vT2)}, 1, {v(vT2)}")
    for r in range(11):
        A(f"ds_write_b32 {v(vT3)}, {v(DK+r)} offset:{TB2+256*r}")
    A(f"ds_write_b32 {v(vZ)}, {v(vT2)} offset:{F_TB2}")
    A(f"v_add_u32 {v(vT3)}, {TB2_SZ}, {v(vT3)}")
    for r in range(16):
        A(f"v_mov_b32 {v(DK+r)}, 0")
    A.label(nof)
    A(f"s_sub_u32 {s(sIT)}, {s(sIT)}, 1")
    A(f"s_cmp_lg_u32 {s(sIT)}, 0")
    A(f"s_cbranch_scc1 {loop}")
    stamp(2)
    A(f"s_cmp_eq_u32 {s(sWAVE)}, 5")
    A("s_cbranch_scc1 L_mw")

    GV, PK = 80, 100
    lds_wait(vZ, F_TB2, 2, vT)
    A(f"s_mul_i32 {s(sT0)}, {s(sCI)}, {TB2_SZ}")
    A(f"v_lshl_add_u32 {v(vT)}, {v(vLANE)}, 2, {s(sT0)}")
    for r in range(11):
        A(f"ds_read_b32 {v(GV+r)}, {v(vT)} offset:{TB2+256*r}")
    vN, vG = 30, 31
    A(f"v_and_b32 {v(vN)}, 31, {v(vLANE)}")
    A(f"v_lshrrev_b32 {v(vG)}, 5, {v(vLANE)}")
    A(f"v_lshl_add_u32 {v(vT)}, {v(vN)}, 1, {v(vG)}")
    A(f"v_lshl_add_u32 {v(32)}, {v(vT)}, 4, {s(sTBc)}")
    A(f"v_lshl_add_u32 {v(33)}, {v(vT)}, 3, {s(sTBc)}")
    A(f"v_lshl_add_u32 {v(34)}, {v(vLANE)}, 3, {s(sTBc)}")
    A(f"v_lshl_add_u32 {v(vT)}, {v(vG)}, 6, {v(vN)}")
    A(f"v_lshl_add_u32 {v(35)}, {v(vT)}, 2, {s(sTBc)}")
    A("s_waitcnt lgkmcnt(0)")
    for r in range(11):
        A(f"v_add_f32 {v(DK+r)}, {v(DK+r)}, {v(GV+r)}")
    A(f"ds_write2_b32 {v(32)}, {v(DK)}, {v(DK+1)} offset0:0 offset1:1")
    A(f"ds_write2_b32 {v(32)}, {v(DK+2)}, {v(DK+3)} offset0:2 offset1:3")
    for r in range(2):
        A(f"ds_write_b32 {v(33)}, {v(DK+4+r)} offset:{256*4+4*r}")
        A(f"ds_write_b32 {v(34)}, {v(DK+6+r)} offset:{384*4+4*r}")
        A(f"ds_write_b32 {v(35)}, {v(DK+8+r)} offset:{512*4+128*r}")
    A("s_mov_b64 exec, 1")
    A(f"ds_write_b32 {v(35)}, {v(DK+10)} offset:{640*4}")
    A("s_mov_b64 exec, -1")
    for k in (0, 8, 16):
        A(f"ds_read_b32 {v(GV+17+k//8)}, {v(GA+k)}")
    for k in range(17):
        A(f"ds_read_b32 {v(GV+k)}, {v(GA+18+k)}")
    A(f"v_lshl_add_u32 {v(vT)}, {v(vLANE)}, 5, {s(sKB)}")
    A("s_waitcnt lgkmcnt(15)")
    a_, b_, c_ = GV + 17, GV + 18, GV + 19
    src = [a_] * 4 + [b_] * 7 + [c_] * 6
    for cp in range(2):
        for k in range(8):
            A(f"v_cvt_pk_bf16_f32 {v(PK+8*cp+k)}, {v(src[2*k+cp])}, {v(src[2*k+cp+1])}")
        A(f"ds_write_b128 {v(vT)}, {v(PK+8*cp,4)} offset:{cp*KR_PITCH}")
        A(f"ds_write_b128 {v(vT)}, {v(PK+8*cp+4,4)} offset:{cp*KR_PITCH+16}")
    A("s_waitcnt lgkmcnt(4)")
    for cp in range(2):
        for k in range(8):
            A(f"v_cvt_pk_bf16_f32 {v(PK+16+8*cp+k)}, {v(GV+2*k+cp)}, {v(GV+2*k+cp+1)}")
        A(f"ds_write_b128 {v(vT)}, {v(PK+16+8*cp,4)} offset:{2048+cp*KR_PITCH}")
        A(f"ds_write_b128 {v(vT)}, {v(PK+16+8*cp+4,4)} offset:{2048+cp*KR_PITCH+16}")
    CA, FS = 32, 64
    for r in range(32):
        A(f"v_mov_b32 {v(CA+r)}, 0")
    A(f"v_and_b32 {v(vT2)}, 1, {v(vLANE)}")
    A(f"v_lshl_add_u32 {v(vT2)}, {v(vT2)}, 4, {s(sKB)}")
    A(f"ds_write_b128 {v(vT2)}, {v(CA,4)} offset:4096")
    A(f"ds_write_b128 {v(vT2)}, {v(CA,4)} offset:{KR_PITCH+4096}")
    vKA, vUA = 10, 14
    vB, vG4 = 30, 31
    A(f"v_and_b32 {v(vB)}, 15, {v(vLANE)}")
    A(f"v_lshrrev_b32 {v(vG4)}, 4, {v(vLANE)}")
    A(f"v_sub_u32 {v(vT)}, 2031, {v(vB)}")
    A(f"v_and_b32 {v(vT2)}, 1, {v(vT)}")
    A(f"v_mul_u32_u24 {v(vT2)}, {KR_PITCH}, {v(vT2)}")
    A(f"v_lshrrev_b32 {v(vT)}, 1, {v(vT)}")
    A(f"v_lshl_add_u32 {v(vT)}, {v(vT)}, 2, {v(vT2)}")
    A(f"v_lshl_add_u32 {v(vT)}, {v(vG4)}, 4, {v(vT)}")
    A(f"v_add_u32 {v(vT)}, {s(sKB)}, {v(vT)}")
    for p in range(4):
        A(f"v_subrev_u32 {v(vKA+p)}, {512*(2*p+1)+64*7}, {v(vT)}")
    A(f"v_lshl_add_u32 {v(vUA)}, {v(vB)}, 5, {s(sUBc)}")
    A(f"v_lshl_add_u32 {v(vUA)}, {v(vG4)}, 4, {v(vUA)}")
    stamp(3)
    A(f"s_setprio {OPT['cvprio']}")
    lds_wait(vZ, F_URDY, 1, vT, sleep=2)
    stamp(4)

    def fa(st, q): return FS + 64 * st + 4 * q
    def fb_(st, x): return FS + 64 * st + 32 + 4 * x

    def creads(st, kp):
        r = []
        for q in range(8):
            o = 128 * (1 - (q & 1)) + 16 * (7 - kp)
            r.append(f"ds_read_b128 {v(fb_(st,q),4)}, {v(vUA)} offset:{512*q+64*(7-kp)}")
            r.append(f"ds_read2_b32 {v(fa(st,q),2)}, {v(vKA+q//2)} offset0:{o} offset1:{o+1}")
            r.append(f"ds_read2_b32 {v(fa(st,q)+2,2)}, {v(vKA+q//2)} offset0:{o+2} offset1:{o+3}")
        return r
    for r in creads(0, 0):
        A(r)
    for kp in range(8):
        st = kp % 2
        A("s_waitcnt lgkmcnt(0)")
        rs = creads(1 - st, kp + 1) if kp < 7 else []
        for q in range(8):
            for t in range(q, 8):
                A(f"v_mfma_f32_16x16x32_bf16 {v(CA+4*t,4)}, {v(fa(st,q),4)}, {v(fb_(st,t-q),4)}, {v(CA+4*t,4)}")
                if rs:
                    A(rs.pop(0))
    stamp(6)
    A(f"s_lshl_b32 {s(sT0)}, {s(sCI)}, 2")
    A(f"v_mov_b32 {v(vT)}, {s(sT0)}")
    lds_set(vT, F_KDONE, 1, vT2)
    A(f"v_and_b32 {v(vT)}, 1, {v(vG4)}")
    A(f"v_lshlrev_b32 {v(vT)}, 9, {v(vT)}")
    A(f"v_lshl_add_u32 {v(vT)}, {v(vB)}, 5, {v(vT)}")
    A(f"v_lshrrev_b32 {v(vT2)}, 1, {v(vG4)}")
    A(f"v_lshl_add_u32 {v(vT)}, {v(vT2)}, 4, {v(vT)}")
    A(f"s_lshl_b32 {s(sT0)}, {s(sCH)}, 12")
    A(f"s_add_u32 {s(sT0)}, {s(sT0)}, {OFF_Y}")
    YP = 100
    for pr in range(4):
        for tt in range(2):
            for d in range(2):
                src = CA + 4 * (2 * pr + tt) + 2 * d
                A(f"v_cvt_pk_bf16_f32 {v(YP+4*pr+2*tt+d)}, {v(src)}, {v(src+1)}")
    A("s_setprio 3")
    A("s_nop 0")
    for pr in range(4):
        A(f"v_permlane16_swap_b32 {v(YP+4*pr)}, {v(YP+4*pr+2)}")
        A(f"v_permlane16_swap_b32 {v(YP+4*pr+1)}, {v(YP+4*pr+3)}")
    for pr in range(4):
        A(f"buffer_store_dwordx4 {v(YP+4*pr,4)}, {v(vT)}, {s(rWS,4)}, {s(sT0)} offen offset:{1024*pr} sc1")
    A(f"s_lshl_b32 {s(sT0)}, {s(sCH)}, 2")
    A(f"s_add_u32 {s(sT0)}, {s(sT0)}, {OFF_FL+4096}")
    A(f"v_mov_b32 {v(vT)}, {s(sT0)}")
    A(f"v_mov_b32 {v(vT2)}, 1")
    A("s_waitcnt vmcnt(0)")
    A("s_mov_b64 exec, 1")
    A(f"global_store_dword {v(vT)}, {v(vT2)}, {s(pWS,2)} sc1")
    A("s_mov_b64 exec, -1")
    A("s_setprio 0")
    stamp(7)
    A("s_waitcnt lgkmcnt(0)")
    A("s_barrier")
    A("s_branch L_final")

    A.label("L_mw")
    A.vm = 0
    A("s_setprio 3")
    U0, XV, MV, SV, DV, DF, TV = 8, 40, 72, 76, 80, 84, 96
    vR8, vC8 = 6, 7
    A(f"v_lshrrev_b32 {v(vR8)}, 3, {v(vLANE)}")
    A(f"v_and_b32 {v(vC8)}, 7, {v(vLANE)}")
    A(f"v_mul_u32_u24 {v(vT)}, 896, {v(vR8)}")
    A(f"v_lshl_add_u32 {v(vT)}, {v(vC8)}, 4, {v(vT)}")
    A(f"s_mul_i32 {s(sT1)}, {s(sRB64)}, {64*896}")
    A(f"s_lshl_b32 {s(sT2)}, {s(sCB)}, 7")
    A(f"s_add_u32 {s(sT1)}, {s(sT1)}, {s(sT2)}")
    A(f"v_add_u32 {v(vT)}, {s(sT1)}, {v(vT)}")
    for i in range(8):
        A(f"global_load_dwordx4 {v(XV+4*i,4)}, {v(vT)}, {s(pX,2)}")
        if i < 7:
            A(f"v_add_u32 {v(vT)}, {8*896}, {v(vT)}")
    A(f"v_lshl_add_u32 {v(vT)}, {v(vC8)}, 4, {s(sT2)}")
    A(f"global_load_dwordx4 {v(DV,4)}, {v(vT)}, {s(pDS,2)}")
    A(f"v_and_b32 {v(vT)}, 31, {v(vLANE)}")
    A(f"v_lshlrev_b32 {v(vT)}, 2, {v(vT)}")
    lds_wait(vZ, F_FULL, OPT["h1at"], vT2, sleep=4)
    poll_global(vT, vT2, pDBG, sleep=16)
    stamp(3)
    A(f"v_lshlrev_b32 {v(vT)}, 4, {v(vLANE)}")
    A(f"s_lshl_b32 {s(sT0)}, {s(sCH0)}, 12")
    A(f"s_add_u32 {s(sT1)}, {s(sT0)}, 4096")
    for i in range(8):
        ul = A.vmem(f"buffer_load_dwordx4 {v(U0+4*i,4)}, {v(vT)}, {s(rWS,4)}, {s(sT0+i//4)} offen offset:{1024*(i%4)} sc1")
    A(f"s_lshl_b32 {s(sT2)}, {s(sRB)}, 10")
    A(f"s_add_u32 {s(sT2)}, {s(sT2)}, {OFF_ST}")
    ml = A.vmem(f"buffer_load_dwordx4 {v(MV,4)}, {v(vT)}, {s(rWS,4)}, {s(sT2)} offen sc1")
    A(f"s_lshl_b32 {s(sT2)}, {s(sRB64)}, 9")
    A(f"s_add_u32 {s(sT2)}, {s(sT2)}, {OFF_ST}")
    A(f"v_lshlrev_b32 {v(vT2)}, 3, {v(vLANE)}")
    sl = A.vmem(f"buffer_load_dwordx2 {v(SV,2)}, {v(vT2)}, {s(rWS,4)}, {s(sT2)} offen sc1")
    for d in range(4):
        A(f"v_lshlrev_b32 {v(DF+2*d)}, 16, {v(DV+d)}")
        A(f"v_and_b32 {v(DF+2*d+1)}, 0xffff0000, {v(DV+d)}")
    A.wait_vm(ul)
    for i in range(8):
        A(f"ds_write_b128 {v(vT)}, {v(U0+4*i,4)} offset:{UB+(i//4)*UB_SZ+480+1024*(i%4)}")
    lds_set(vZ, F_URDY, 1, vT3)
    A.wait_vm(sl)
    A(f"v_add_u32 {v(vT)}, {MB}, {v(vT2)}")
    A(f"ds_write2_b32 {v(vT)}, {v(MV)}, {v(MV+2)} offset0:0 offset1:1")
    A(f"ds_write_b32 {v(vZ)}, {v(vT3)} offset:{F_MRDY}")
    A("s_setprio 0")
    stamp(4)
    A(f"v_lshlrev_b32 {v(SV)}, 16, {v(SV)}")
    A(f"v_mul_f32 {v(vT3)}, {v(SV+1)}, {v(SV+1)}")
    A(f"ds_write_b64 {v(vT2)}, {v(SV,2)} offset:{STB}")
    A(f"v_lshlrev_b32 {v(vT)}, 2, {v(vLANE)}")
    A(f"ds_write_b32 {v(vT)}, {v(vT3)} offset:{R2}")
    A(f"v_lshlrev_b32 {v(vT)}, 3, {v(vR8)}")
    ST = 8
    for i in range(8):
        A(f"ds_read_b64 {v(ST+2*i,2)}, {v(vT)} offset:{STB+64*i}")
    A("s_waitcnt lgkmcnt(0)")
    for i in range(8):
        for d in range(4):
            A(f"v_lshlrev_b32 {v(TV+8*i+2*d)}, 16, {v(XV+4*i+d)}")
            A(f"v_and_b32 {v(TV+8*i+2*d+1)}, 0xffff0000, {v(XV+4*i+d)}")
        for k in range(8):
            A(f"v_add_f32 {v(vT3)}, {v(TV+8*i+k)}, {v(ST+2*i)}")
            A(f"v_mul_f32 {v(vT3)}, {v(vT3)}, {v(ST+2*i+1)}")
            A(f"v_fmac_f32 {v(TV+8*i+k)}, {v(DF+k)}, {v(vT3)}")
    YV, YE = 8, 160
    for k in range(64):
        A(f"v_mov_b32 {v(YE+k)}, 0")
    stamp(6)
    lds_wait(vZ, F_KDONE, 1, vT, sleep=4)
    lds_wait(vZ, F_KDONE + 4, 1, vT, sleep=4)
    lds_wait(vZ, F_HRDY, 1, vT, sleep=4)
    stamp(10)
    A("s_setprio 3")
    A(f"s_lshl_b32 {s(sT1)}, {s(sCB)}, 8")
    A(f"s_add_u32 {s(sT1)}, {s(sT1)}, {OFF_FL+4096}")
    A(f"v_lshl_add_u32 {v(vT)}, {v(vLANE)}, 2, {s(sT1)}")
    poll_global(vT, vT2, pWS, sleep=16)
    stamp(7)
    A(f"s_lshl_b32 {s(sT0)}, {s(sCB)}, 18")
    A(f"s_lshl_b32 {s(sT1)}, {s(sRB64)}, 7")
    A(f"s_add_u32 {s(sT0)}, {s(sT0)}, {s(sT1)}")
    A(f"s_add_u32 {s(sT0)}, {s(sT0)}, {OFF_Y}")
    A(f"v_lshlrev_b32 {v(vT)}, 12, {v(vR8)}")
    A(f"v_lshl_add_u32 {v(vT)}, {v(vC8)}, 4, {v(vT)}")
    for i in range(8):
        A(f"buffer_load_dwordx4 {v(YV+4*i,4)}, {v(vT)}, {s(rWS,4)}, {s(sT0)} offen sc1")
        if i < 7:
            A(f"s_add_u32 {s(sT0)}, {s(sT0)}, {8*4096}")
    A(f"v_lshlrev_b32 {v(vT)}, 4, {v(vLANE)}")
    A(f"v_mul_u32_u24 {v(vT2)}, 1040, {v(vC8)}")
    A(f"v_lshl_add_u32 {v(vT2)}, {v(vR8)}, 1, {v(vT2)}")
    A(f"v_mul_u32_u24 {v(vT3)}, {T_PITCH}, {v(vR8)}")
    A(f"v_lshl_add_u32 {v(vT3)}, {v(vC8)}, 5, {v(vT3)}")
    for i in range(8):
        A(f"s_waitcnt vmcnt({7-i})")
        A(f"ds_write_b128 {v(vT)}, {v(YV+4*i,4)} offset:{KM+1040*i}")
    stamp(8)

    def yreads(i):
        for k in range(8):
            A(f"ds_read_u16_d16_hi {v(YE+8*i+k)}, {v(vT2)} offset:{KM+128*k+16*i}")
    yreads(0)
    for i in range(8):
        if i < 7:
            yreads(i + 1)
        A(f"s_waitcnt lgkmcnt({8 if i < 7 else 0})")
        for k in range(8):
            A(f"v_add_f32 {v(TV+8*i+k)}, {v(TV+8*i+k)}, {v(YE+8*i+k)}")
        A(f"ds_write_b128 {v(vT3)}, {v(TV+8*i,4)} offset:{TT+8*T_PITCH*i}")
        A(f"ds_write_b128 {v(vT3)}, {v(TV+8*i+4,4)} offset:{TT+8*T_PITCH*i+16}")
    A("s_waitcnt lgkmcnt(0)")
    stamp(9)
    A("s_setprio 0")
    A("s_barrier")


def main():
    hdr = open("cdna_kernels/" + NAME + ".s.ref").read().split("\n")
    out = [l for l in hdr if l.startswith(";") and "@launch" not in l and "Override" not in l and "grid=ceil" not in l]
    out.append(f"; @launch grid=(256,1,1) block=(512,1,1) lds={LDS_BYTES}")
    out.append('.amdgcn_target "amdgcn-amd-amdhsa--gfx950"')
    out.append(".text")
    out.append(f".globl {NAME}_kernel")
    out.append(".p2align 8")
    out.append(f".type {NAME}_kernel,@function")
    out.append(f"{NAME}_kernel:")
    prologue()
    lwave()
    cwave()
    side()
    kwave()
    final()
    out += A.l
    out.append('.section .rodata,"a"')
    out.append(".p2align 6")
    out.append(f".amdhsa_kernel {NAME}_kernel")
    out.append("  .amdhsa_next_free_vgpr 256")
    out.append("  .amdhsa_next_free_sgpr 102")
    out.append("  .amdhsa_accum_offset 256")
    out.append("  .amdhsa_group_segment_fixed_size 0")
    out.append("  .amdhsa_kernarg_size 112")
    out.append("  .amdhsa_user_sgpr_count 2")
    out.append("  .amdhsa_user_sgpr_kernarg_segment_ptr 1")
    out.append("  .amdhsa_system_sgpr_workgroup_id_x 1")
    out.append(".end_amdhsa_kernel")
    open(sys.argv[1], "w").write("\n".join(out) + "\n")


main()
```

```python
import sys, struct

NAME = "parallel_sum__ssm_conv_s4d__glu_gated_reglu__prompt"
OPT = dict(diag=0, rot1=4, rot2=4, sidepf=1, pfearly=1, prio=0, lprio=3, lag=32, hd=6, nodma=0, nokg=0, kprio=1, nos=0, cvprio=0, psl=8, ktog=1, h1at=8, samek=0, dwg=100, dwave=0)
for a in sys.argv[2:]:
    k, val = a.split("=")
    OPT[k] = int(val)

OFF_U = 0x0
OFF_ST = 0x200000
OFF_FL = 0x220000
OFF_Y = 0x240000
OFF_H = 0x400000
OFF_TS = 0xC00000
WS_BYTES = 0x1000000

KA, KA_SZ = 0, 8320
UB, UB_SZ = 16640, 4576
KM = 25792
TB, TB_SZ = 34112, 2568
TB2, TB2_SZ = 39248, 2816
MB = 44880
SX = 45392
R2 = 47440
STB = 47696
FG = 48208
F_FREE, F_FULL, F_MRDY, F_URDY, F_TB2, F_KDONE, F_SX = FG, FG + 16, FG + 20, FG + 24, FG + 28, FG + 32, FG + 48
F_HRDY = FG + 40
TT, T_PITCH = 0, 272
XR = 49152
WR = 98304
PR = 49152
PR_SZ = 20480
KR_PITCH = 4160
LDS_BYTES = 163840

LOG2E = 0x3fb8aa3b
NLOG2E = 0xbfb8aa3b
INV2PI = 0x3e22f983


def f2u(x):
    return struct.unpack("<I", struct.pack("<f", x))[0]


def v(n, c=1):
    return f"v{n}" if c == 1 else f"v[{n}:{n+c-1}]"


def s(n, c=1):
    return f"s{n}" if c == 1 else f"s[{n}:{n+c-1}]"


class Asm:
    def __init__(self):
        self.l = []
        self.vm = 0
        self.uid = 0

    def __call__(self, t):
        self.l.append("    " + t)

    def label(self, n):
        self.l.append(n + ":")

    def c(self, t):
        self.l.append("    ; " + t)

    def vmem(self, t):
        self(t)
        self.vm += 1
        return self.vm

    def wait_vm(self, ident):
        n = self.vm - ident
        assert 0 <= n <= 63, n
        self(f"s_waitcnt vmcnt({n})")

    def new(self, p):
        self.uid += 1
        return f"L_{p}{self.uid}"


A = Asm()

sWG, sWAVE = 2, 3
pX, pLA, pAI, pCR, pCI, pLDT, pDS = 4, 6, 8, 10, 12, 14, 16
pWG, pWU, pWD, pOUT, pDBG, pWS = 20, 22, 24, 26, 28, 30
rX, rWG, rWU, rWD, rWS = 32, 36, 40, 44, 48
sXCD, sJ, sRB, sFB, sRB64, sCB, sCH0 = 52, 53, 54, 55, 56, 57, 58
sT0, sT1, sT2, sT3, sT4, sT5 = 59, 60, 61, 62, 63, 64
sW1, sW2, sW3, sCNT = 65, 66, 67, 68
sGRP = 87
sDK = 72
sTS = 88
vLANE = 1


def stamp(i):
    if OPT["diag"]:
        A(f"{'s_memtime' if OPT['diag']==2 else 's_memrealtime'} {s(sTS,2)}")
        A("s_waitcnt lgkmcnt(0)")
        A(f"s_mov_b32 {s(sTS+2+i)}, {s(sTS)}")


def stamp_flush(n):
    if not OPT["diag"]:
        return
    if OPT["diag"] == 3:
        sk = A.new("dg")
        A(f"s_lshl_b32 {s(sT0)}, {s(sWG)}, 3")
        A(f"s_add_u32 {s(sT0)}, {s(sT0)}, {s(sWAVE)}")
        A(f"s_cmp_lg_u32 {s(sT0)}, {OPT['dwg']*8+OPT['dwave']}")
        A(f"s_cbranch_scc1 {sk}")
        A("v_mov_b32 v2, 0")
        for i in range(12):
            A(f"s_sub_u32 {s(sT0)}, {s(sTS+2+i)}, {s(sTS+2)}")
            A(f"v_mov_b32 v3, {s(sT0)}")
            A(f"global_store_dword v2, v3, {s(pDBG,2)} offset:{4*i}")
            A("s_nop 1")
        A.label(sk)
        return
    A(f"s_lshl_b32 {s(sT0)}, {s(sWG)}, 3")
    A(f"s_add_u32 {s(sT0)}, {s(sT0)}, {s(sWAVE)}")
    A(f"s_lshl_b32 {s(sT0)}, {s(sT0)}, 6")
    A(f"s_add_u32 {s(sT0)}, {s(sT0)}, {OFF_TS}")
    A(f"v_mov_b32 v2, {s(sT0)}")
    for i in range(12):
        A(f"v_mov_b32 v3, {s(sTS+2+i)}")
        A(f"global_store_dword v2, v3, {s(pWS,2)} offset:{4*i}")
        A("s_nop 1")


def srd(r, p, nbytes):
    A(f"s_mov_b32 {s(r)}, {s(p)}")
    A(f"s_and_b32 {s(r+1)}, {s(p+1)}, 0xffff")
    A(f"s_mov_b32 {s(r+2)}, {nbytes}")
    A(f"s_mov_b32 {s(r+3)}, 0x20000")


SPIN_MAX = 1 << 16


def poll_global(vaddr, vtmp, base, first_issued=False, sleep=1):
    lp, done, chk = A.new("pl"), A.new("pd"), A.new("pc")
    A(f"s_mov_b32 {s(sCNT)}, 0")
    if first_issued:
        A(f"s_branch {chk}")
    A.label(lp)
    A(f"global_load_dword {v(vtmp)}, {v(vaddr)}, {s(base,2)} sc1")
    A.label(chk)
    A("s_waitcnt vmcnt(0)")
    A(f"v_cmp_ne_u32 vcc, 0, {v(vtmp)}")
    A(f"s_add_u32 {s(sCNT)}, {s(sCNT)}, 1")
    A("s_cmp_eq_u64 vcc, exec")
    A(f"s_cbranch_scc1 {done}")
    A(f"s_sleep {sleep}")
    A(f"s_cmp_lt_u32 {s(sCNT)}, {SPIN_MAX}")
    A(f"s_cbranch_scc1 {lp}")
    A.label(done)


def lds_wait(vaddr, off, val, vt, sleep=0):
    lp, done = A.new("sl"), A.new("sd")
    A(f"s_mov_b32 {s(sCNT)}, 0")
    A.label(lp)
    A(f"ds_read_b32 {v(vt)}, {v(vaddr)} offset:{off}")
    A(f"s_add_u32 {s(sCNT)}, {s(sCNT)}, 1")
    A("s_waitcnt lgkmcnt(0)")
    A(f"v_cmp_le_u32 vcc, {val}, {v(vt)}")
    A(f"s_cbranch_vccnz {done}")
    if sleep:
        A(f"s_sleep {sleep}")
    A(f"s_cmp_lt_u32 {s(sCNT)}, {SPIN_MAX*16}")
    A(f"s_cbranch_scc1 {lp}")
    A.label(done)


def lds_set(vaddr, off, val, vt):
    A(f"v_mov_b32 {v(vt)}, {val}")
    A(f"ds_write_b32 {v(vaddr)}, {v(vt)} offset:{off}")


def prologue():
    A(f"s_cmp_ge_u32 {s(sWG)}, 256")
    A("s_cbranch_scc1 L_end")
    A(f"s_load_dwordx16 {s(4,16)}, s[0:1], 0")
    A(f"s_load_dwordx8 {s(20,8)}, s[0:1], 64")
    A(f"s_load_dwordx4 {s(28,4)}, s[0:1], 96")
    if OPT["diag"]:
        A(f"{'s_memtime' if OPT['diag']==2 else 's_memrealtime'} {s(sTS,2)}")
    A("v_lshrrev_b32 v2, 6, v0")
    A(f"v_and_b32 {v(vLANE)}, 63, v0")
    A(f"v_readfirstlane_b32 {s(sWAVE)}, v2")
    A(f"s_and_b32 {s(sXCD)}, {s(sWG)}, 7")
    A(f"s_lshr_b32 {s(sJ)}, {s(sWG)}, 3")
    A(f"s_getpc_b64 {s(sT1,2)}")
    A.label("L_pc")
    A("v_and_b32 v2, 0x1e0, v0")
    A(f"v_add_u32 v2, {s(sJ)}, v2")
    A("v_lshlrev_b32 v2, 7, v2")
    A("v_min_u32 v2, L_end-L_pc, v2")
    A(f"global_load_dword v95, v2, {s(sT1,2)}")
    A(f"s_and_b32 {s(sT0)}, {s(sXCD)}, 3")
    A(f"s_lshr_b32 {s(sT1)}, {s(sXCD)}, 2")
    A(f"s_cmp_lt_u32 {s(sJ)}, 4")
    A("s_cbranch_scc1 L_side")
    A(f"s_sub_u32 {s(sJ)}, {s(sJ)}, 4")
    A(f"s_and_b32 {s(sT2)}, {s(sJ)}, 3")
    A(f"s_lshr_b32 {s(sCB)}, {s(sJ)}, 2")
    A(f"s_lshl_b32 {s(sRB)}, {s(sT0)}, 2")
    A(f"s_add_u32 {s(sRB)}, {s(sRB)}, {s(sT2)}")
    A(f"s_mul_i32 {s(sFB)}, {s(sT1)}, 7")
    A(f"s_add_u32 {s(sFB)}, {s(sFB)}, {s(sCB)}")
    A(f"s_lshl_b32 {s(sRB64)}, {s(sT0)}, 1")
    A(f"s_add_u32 {s(sRB64)}, {s(sRB64)}, {s(sT1)}")
    A(f"s_lshl_b32 {s(sRB64)}, {s(sRB64)}, 2")
    A(f"s_add_u32 {s(sRB64)}, {s(sRB64)}, {s(sT2)}")
    A(f"s_add_u32 {s(sGRP)}, {s(sT2)}, {s(sCB)}")
    A(f"s_and_b32 {s(sGRP)}, {s(sGRP)}, 1")
    A(f"s_cmp_lt_u32 {s(sWAVE)}, 4")
    A("s_cbranch_scc1 L_cw")
    A(f"s_cmp_gt_u32 {s(sWAVE)}, 4")
    A("s_cbranch_scc1 L_kw")


def kernarg_ready():
    A("s_waitcnt lgkmcnt(0)")
    if OPT["diag"]:
        for i in range(12):
            A(f"s_mov_b32 {s(sTS+2+i)}, {s(sTS)}")
        stamp(11)


def side():
    A.label("L_side")
    A.vm = 0
    XB, F, SA = 8, 40, 100
    vR, vQ, vOFF, vT, vT2, vRI = 2, 3, 4, 5, 6, 36
    vM = 38
    sRG, sR64 = sRB, sRB64
    A(f"s_lshl_b32 {s(sR64)}, {s(sT0)}, 1")
    A(f"s_add_u32 {s(sR64)}, {s(sR64)}, {s(sT1)}")
    A(f"s_lshl_b32 {s(sR64)}, {s(sR64)}, 2")
    A(f"s_add_u32 {s(sR64)}, {s(sR64)}, {s(sJ)}")
    A(f"s_lshl_b32 {s(sRG)}, {s(sR64)}, 3")
    A(f"s_add_u32 {s(sRG)}, {s(sRG)}, {s(sWAVE)}")
    A(f"v_lshrrev_b32 {v(vR)}, 3, {v(vLANE)}")
    A(f"v_and_b32 {v(vQ)}, 7, {v(vLANE)}")
    A(f"v_mul_u32_u24 {v(vOFF)}, 896, {v(vR)}")
    A(f"v_lshl_add_u32 {v(vOFF)}, {v(vQ)}, 4, {v(vOFF)}")
    A(f"s_mul_i32 {s(sT2)}, {s(sRG)}, {8*896}")
    A(f"v_add_u32 {v(vOFF)}, {s(sT2)}, {v(vOFF)}")
    kernarg_ready()
    xl = []
    for i in range(7):
        xl.append(A.vmem(f"global_load_dwordx4 {v(XB+4*i,4)}, {v(vOFF)}, {s(pX,2)} offset:{128*i}"))
    srd(rWS, pWS, WS_BYTES)
    skip = A.new("nc")
    A(f"s_cmp_lg_u32 {s(sWG)}, 31")
    A(f"s_cbranch_scc1 {skip}")
    for i in range(4):
        A(f"v_mov_b32 {v(SA+i)}, 0")
    A(f"v_lshlrev_b32 {v(vT2)}, 4, v0")
    A(f"s_mov_b32 {s(sT3)}, {OFF_FL}")
    A(f"buffer_store_dwordx4 {v(SA,4)}, {v(vT2)}, {s(rWS,4)}, {s(sT3)} offen sc1")
    A("s_waitcnt vmcnt(0)")
    A.label(skip)
    C = SA
    A(f"s_mov_b32 {s(sT3)}, 0x3f803f80")
    A(f"v_mov_b32 {v(C)}, 0")
    A(f"v_mov_b32 {v(C+1)}, 0")
    for i in range(7):
        A.wait_vm(xl[i])
        if i == 6:
            stamp(1)
        for d in range(4):
            k = 4 * i + d
            A(f"v_dot2c_f32_bf16 {v(C+k%2)}, {s(sT3)}, {v(XB+k)}")
            A(f"v_lshlrev_b32 {v(F+2*k)}, 16, {v(XB+k)}")
            A(f"v_and_b32 {v(F+2*k+1)}, 0xffff0000, {v(XB+k)}")

    def reduce8():
        for m in ("quad_perm:[1,0,3,2]", "quad_perm:[2,3,0,1]", "row_half_mirror"):
            A("s_nop 1")
            A(f"v_add_f32_dpp {v(C)}, {v(C)}, {v(C)} {m} row_mask:0xf bank_mask:0xf")
    A("s_nop 2")
    A(f"v_add_f32 {v(C)}, {v(C)}, {v(C+1)}")
    reduce8()
    A(f"v_mul_f32 {v(vM)}, {f2u(-1.0/448):#x}, {v(C)}")
    A(f"v_mov_b32 {v(vM+1)}, {v(vM)}")
    for k in range(28):
        A(f"v_pk_add_f32 {v(F+2*k,2)}, {v(F+2*k,2)}, {v(vM,2)}")
    for k in range(28):
        a = C + 2 * (k % 2)
        if k < 2:
            A(f"v_pk_mul_f32 {v(a,2)}, {v(F+2*k,2)}, {v(F+2*k,2)}")
        else:
            A(f"v_pk_fma_f32 {v(a,2)}, {v(F+2*k,2)}, {v(F+2*k,2)}, {v(a,2)}")
    A(f"v_pk_add_f32 {v(C,2)}, {v(C,2)}, {v(C+2,2)}")
    A("s_nop 0")
    A(f"v_add_f32 {v(C)}, {v(C)}, {v(C+1)}")
    reduce8()
    A(f"v_mul_f32 {v(C)}, {f2u(1.0/448):#x}, {v(C)}")
    A(f"v_cvt_pk_bf16_f32 {v(vRI)}, {v(vM)}, {v(vM)}")
    A(f"v_cvt_pk_bf16_f32 {v(C)}, {v(C)}, {v(C)}")
    A(f"v_lshlrev_b32 {v(C)}, 16, {v(C)}")
    A(f"v_add_f32 {v(C)}, {f2u(1e-5):#x}, {v(C)}")
    A(f"v_cvt_pk_bf16_f32 {v(C)}, {v(C)}, {v(C)}")
    A(f"v_lshlrev_b32 {v(C)}, 16, {v(C)}")
    A(f"v_sqrt_f32 {v(C)}, {v(C)}")
    A(f"v_lshlrev_b32 {v(C+2)}, 16, {v(vRI)}")
    A(f"v_cvt_pk_bf16_f32 {v(C)}, {v(C)}, {v(C)}")
    A(f"v_lshlrev_b32 {v(C)}, 16, {v(C)}")
    A(f"v_rcp_f32 {v(vRI+1)}, {v(C)}")
    A(f"v_sub_f32 {v(C+2)}, {v(C+2)}, {v(vM)}")
    A(f"v_mul_f32 {v(C+2)}, {v(C+2)}, {v(vRI+1)}")
    A(f"v_mov_b32 {v(C+3)}, {v(C+2)}")
    A(f"v_mov_b32 {v(C)}, {v(vRI+1)}")
    A(f"v_mov_b32 {v(C+1)}, {v(vRI+1)}")
    A(f"v_lshlrev_b32 {v(vT2)}, 3, {v(vR)}")
    A(f"s_lshl_b32 {s(sT3)}, {s(sRG)}, 6")
    A(f"s_add_u32 {s(sT3)}, {s(sT3)}, {OFF_ST}")
    A(f"s_mov_b32 exec_lo, 0x01010101")
    A(f"s_mov_b32 exec_hi, 0x01010101")
    A.vmem(f"buffer_store_dwordx2 {v(vRI,2)}, {v(vT2)}, {s(rWS,4)}, {s(sT3)} offen sc1")
    A("s_mov_b64 exec, -1")
    A(f"s_mul_i32 {s(sT3)}, {s(sWAVE)}, 7680")
    A(f"v_mul_u32_u24 {v(vT2)}, 960, {v(vR)}")
    A(f"v_lshl_add_u32 {v(vT2)}, {v(vQ)}, 4, {v(vT2)}")
    A(f"v_add_u32 {v(vT2)}, {s(sT3)}, {v(vT2)}")
    for k in range(28):
        A(f"v_pk_fma_f32 {v(F+2*k,2)}, {v(F+2*k,2)}, {v(C,2)}, {v(C+2,2)}")
    for i in range(7):
        for d in range(4):
            k = 4 * i + d
            A(f"v_cvt_pk_bf16_f32 {v(XB+k)}, {v(F+2*k)}, {v(F+2*k+1)}")
        A(f"ds_write_b128 {v(vT2)}, {v(XB+4*i,4)} offset:{128*i}")
    A(f"v_bfe_u32 {v(vT2)}, {v(vLANE)}, 2, 2")
    A(f"v_mul_u32_u24 {v(vT2)}, 960, {v(vT2)}")
    A(f"v_lshrrev_b32 {v(vOFF)}, 4, {v(vLANE)}")
    A(f"v_lshl_add_u32 {v(vT2)}, {v(vOFF)}, 5, {v(vT2)}")
    A(f"v_and_b32 {v(vOFF)}, 3, {v(vLANE)}")
    A(f"v_lshl_add_u32 {v(vT2)}, {v(vOFF)}, 3, {v(vT2)}")
    A(f"v_add_u32 {v(vT2)}, {s(sT3)}, {v(vT2)}")
    for i in range(7):
        A(f"ds_read_b64_tr_b16 {v(F+4*i,2)}, {v(vT2)} offset:{128*i}")
        A(f"ds_read_b64_tr_b16 {v(F+4*i+2,2)}, {v(vT2)} offset:{128*i+3840}")
    L2B = 65536
    A(f"s_lshl_b32 {s(sT3)}, {s(sWAVE)}, 4")
    A(f"s_add_u32 {s(sT3)}, {s(sT3)}, {L2B}")
    A(f"v_mul_u32_u24 {v(vT2)}, 144, {v(vLANE)}")
    A(f"v_add_u32 {v(vT2)}, {s(sT3)}, {v(vT2)}")
    for i in range(7):
        A(f"s_waitcnt lgkmcnt({min(15, 12-2*i+i)})")
        A(f"ds_write_b128 {v(vT2)}, {v(F+4*i,4)} offset:{64*144*i}")
    A(f"s_mul_i32 {s(sT3)}, {s(sWAVE)}, {56*144}")
    A(f"s_add_u32 {s(sT3)}, {s(sT3)}, {L2B}")
    A(f"v_mul_u32_u24 {v(vT2)}, 144, {v(vR)}")
    A(f"v_lshl_add_u32 {v(vT2)}, {v(vQ)}, 4, {v(vT2)}")
    A(f"v_add_u32 {v(vT2)}, {s(sT3)}, {v(vT2)}")
    A(f"v_lshlrev_b32 {v(vOFF)}, 12, {v(vR)}")
    A(f"v_lshl_add_u32 {v(vOFF)}, {v(vQ)}, 4, {v(vOFF)}")
    A(f"s_mul_i32 {s(sT3)}, {s(sWAVE)}, {56*4096}")
    A(f"s_lshl_b32 {s(sT4)}, {s(sR64)}, 7")
    A(f"s_add_u32 {s(sT3)}, {s(sT3)}, {s(sT4)}")
    A("s_waitcnt lgkmcnt(0)")
    A("s_barrier")
    for i in range(7):
        A(f"ds_read_b128 {v(XB+4*i,4)}, {v(vT2)} offset:{8*144*i}")
    for i in range(7):
        A(f"s_waitcnt lgkmcnt({6-i})")
        A.vmem(f"buffer_store_dwordx4 {v(XB+4*i,4)}, {v(vOFF)}, {s(rWS,4)}, {s(sT3)} offen sc1")
        if i < 6:
            A(f"s_add_u32 {s(sT3)}, {s(sT3)}, {8*4096}")
    stamp(2)
    A("s_waitcnt vmcnt(0)")
    A("s_barrier")
    stamp(3)
    skip = A.new("nf")
    A(f"s_cmp_lg_u32 {s(sWAVE)}, 0")
    A(f"s_cbranch_scc1 {skip}")
    A(f"s_lshl_b32 {s(sT3)}, {s(sWG)}, 2")
    A(f"v_mov_b32 {v(vT2)}, {s(sT3)}")
    A(f"v_mov_b32 {v(vT)}, 1")
    A("s_mov_b64 exec, 1")
    A(f"global_store_dword {v(vT2)}, {v(vT)}, {s(pDBG,2)} offset:128 sc1")
    A("s_mov_b64 exec, -1")
    A.label(skip)
    if OPT["sidepf"]:
        A(f"s_mul_i32 {s(sT3)}, {s(sJ)}, {448*896}")
        A(f"v_lshlrev_b32 {v(vT)}, 7, v0")
        A(f"v_min_u32 {v(vT)}, {447*128}, {v(vT)}")
        A(f"v_add_u32 {v(vT)}, {s(sT3)}, {v(vT)}")
        order = []
        for g in range(7):
            for c in (g, (g + OPT["rot2"]) % 7):
                if c not in order:
                    order.append(c)
        for n, g in enumerate(order[:OPT["sidepf"] if OPT["sidepf"] > 1 else 7]):
            A(f"v_add_u32 {v(vT2)}, {g*64*896}, {v(vT)}")
            A(f"global_load_dword {v(F+n)}, {v(vT2)}, {s(pWD,2)}")
        A("s_waitcnt vmcnt(0)")
        stamp(4)
    stamp_flush(4)
    A("s_endpgm")


def final():
    A.label("L_final")
    A("s_barrier")
    vRow, vC8, vP, vT, vR2, vO = 2, 3, 4, 5, 6, 7
    P, T = 8, 48
    A(f"v_lshrrev_b32 {v(vRow)}, 3, v0")
    A(f"v_and_b32 {v(vC8)}, 7, v0")
    A(f"v_lshrrev_b32 {v(vP)}, 5, {v(vRow)}")
    A(f"v_mul_u32_u24 {v(vP)}, 10240, {v(vP)}")
    A(f"v_lshrrev_b32 {v(vT)}, 2, {v(vC8)}")
    A(f"v_mul_u32_u24 {v(vT)}, 5120, {v(vT)}")
    A(f"v_add_u32 {v(vP)}, {v(vP)}, {v(vT)}")
    A(f"v_bfe_u32 {v(vT)}, {v(vRow)}, 3, 2")
    A(f"v_mul_u32_u24 {v(vT)}, 1280, {v(vT)}")
    A(f"v_add_u32 {v(vP)}, {v(vP)}, {v(vT)}")
    A(f"v_and_b32 {v(vT)}, 1, {v(vRow)}")
    A(f"v_mul_u32_u24 {v(vT)}, 272, {v(vT)}")
    A(f"v_add_u32 {v(vP)}, {v(vP)}, {v(vT)}")
    A(f"v_bfe_u32 {v(vT)}, {v(vRow)}, 1, 1")
    A(f"v_mul_u32_u24 {v(vT)}, 640, {v(vT)}")
    A(f"v_add_u32 {v(vP)}, {v(vP)}, {v(vT)}")
    A(f"v_bfe_u32 {v(vT)}, {v(vRow)}, 2, 1")
    A(f"v_lshl_add_u32 {v(vP)}, {v(vT)}, 7, {v(vP)}")
    A(f"v_and_b32 {v(vT)}, 3, {v(vC8)}")
    A(f"v_lshl_add_u32 {v(vP)}, {v(vT)}, 5, {v(vP)}")
    A(f"v_add_u32 {v(vP)}, {PR}, {v(vP)}")
    for q in range(4):
        A(f"ds_read_b128 {v(P+8*q,4)}, {v(vP)} offset:{q*PR_SZ}")
        A(f"ds_read_b128 {v(P+8*q+4,4)}, {v(vP)} offset:{q*PR_SZ+16}")
    A(f"v_mul_u32_u24 {v(vO)}, {T_PITCH}, {v(vRow)}")
    A(f"v_lshl_add_u32 {v(vO)}, {v(vC8)}, 5, {v(vO)}")
    A(f"ds_read_b128 {v(T,4)}, {v(vO)} offset:{TT}")
    A(f"ds_read_b128 {v(T+4,4)}, {v(vO)} offset:{TT+16}")
    A(f"v_lshlrev_b32 {v(vT)}, 2, {v(vRow)}")
    A(f"ds_read_b32 {v(vR2)}, {v(vT)} offset:{R2}")
    A(f"v_mul_u32_u24 {v(vO)}, 896, {v(vRow)}")
    A(f"v_lshl_add_u32 {v(vO)}, {v(vC8)}, 4, {v(vO)}")
    A(f"s_mul_i32 {s(sT0)}, {s(sRB64)}, {64*896}")
    A(f"s_lshl_b32 {s(sT1)}, {s(sCB)}, 7")
    A(f"s_add_u32 {s(sT0)}, {s(sT0)}, {s(sT1)}")
    A(f"v_add_u32 {v(vO)}, {s(sT0)}, {v(vO)}")
    A("s_waitcnt lgkmcnt(7)")
    for e in range(8):
        A(f"v_add_f32 {v(P+e)}, {v(P+e)}, {v(P+8+e)}")
    A("s_waitcnt lgkmcnt(3)")
    for e in range(8):
        A(f"v_add_f32 {v(P+16+e)}, {v(P+16+e)}, {v(P+24+e)}")
    for e in range(8):
        A(f"v_add_f32 {v(P+e)}, {v(P+e)}, {v(P+16+e)}")
    A("s_waitcnt lgkmcnt(0)")
    for e in range(8):
        A(f"v_fmac_f32 {v(T+e)}, {v(P+e)}, {v(vR2)}")
    for e in range(4):
        A(f"v_cvt_pk_bf16_f32 {v(P+e)}, {v(T+2*e)}, {v(T+2*e+1)}")
    A(f"global_store_dwordx4 {v(vO)}, {v(P,4)}, {s(pOUT,2)}")
    if OPT["diag"]:
        A("s_waitcnt vmcnt(0)")
    stamp(5)
    stamp_flush(6)
    A.label("L_end")
    A("s_endpgm")


WD_SLOT = [XR + 16384, WR + 2 * 16384, WR + 3 * 16384, XR + 2 * 16384, WR, WR + 16384, XR]
WD_FREE = [10, 11, 12, 12, 13, 14, 14]


def lwave():
    A.vm = 0
    vW, vX, vD, vT, vT2, vZ, vF = 4, 8, 12, 2, 3, 16, 20
    sWoff, sXoff, sDoff, sFREE = 69, 70, 71, 72
    A(f"v_lshrrev_b32 {v(vT)}, 4, {v(vLANE)}")
    A(f"v_mul_u32_u24 {v(vW)}, 3584, {v(vT)}")
    A(f"v_bfe_u32 {v(vT2)}, {v(vLANE)}, 2, 2")
    A(f"v_xor_b32 {v(vT2)}, {v(vT2)}, {v(vT)}")
    A(f"v_lshl_add_u32 {v(vW)}, {v(vT2)}, 6, {v(vW)}")
    A(f"v_and_b32 {v(vZ)}, 3, {v(vLANE)}")
    A(f"v_lshl_add_u32 {v(vW)}, {v(vZ)}, 4, {v(vW)}")
    A(f"s_lshl_b32 {s(sT1)}, {s(sFB)}, 8")
    A(f"v_add_u32 {v(vW)}, {s(sT1)}, {v(vW)}")
    for k in range(1, 4):
        A(f"v_add_u32 {v(vW+k)}, {k*(4*3584-1024)}, {v(vW)}")
    A(f"v_and_b32 {v(vT2)}, 7, {v(vLANE)}")
    A(f"v_xor_b32 {v(vT2)}, {v(vT2)}, {v(vT)}")
    A(f"v_lshrrev_b32 {v(vD)}, 3, {v(vLANE)}")
    A(f"v_mul_u32_u24 {v(vD)}, 896, {v(vD)}")
    A(f"s_mul_i32 {s(sT0)}, {s(sRB)}, {128*896}")
    A(f"v_add_u32 {v(vX+1)}, {s(sT0)}, {v(vD)}")
    A(f"v_lshl_add_u32 {v(vX)}, {v(vT2)}, 4, {v(vX+1)}")
    A(f"v_xor_b32 {v(vT2)}, 4, {v(vT2)}")
    A(f"v_lshl_add_u32 {v(vX+1)}, {v(vT2)}, 4, {v(vX+1)}")
    A(f"v_add_u32 {v(vX+2)}, {2*(7168-1024)}, {v(vX)}")
    A(f"v_add_u32 {v(vX+3)}, {3*(7168-1024)}, {v(vX+1)}")
    A(f"v_add_u32 {v(vX+1)}, {7168-1024}, {v(vX+1)}")
    A(f"s_mul_i32 {s(sWoff)}, {s(sGRP)}, {OPT['rot1']*64*3584}")
    A(f"s_mul_i32 {s(sXoff)}, {s(sGRP)}, {OPT['rot1']*128}")
    if OPT["lprio"]:
        A(f"s_setprio {OPT['lprio']}")
    kernarg_ready()
    srd(rWG, pWG, 448 * 1792 * 2)
    srd(rWU, pWU, 448 * 1792 * 2)
    srd(rX, pX, 2048 * 448 * 2)

    def quad(vb, rs, lds, sbase, add):
        A(f"s_mov_b32 m0, {lds}")
        if add:
            A(f"s_add_u32 {s(sT0)}, {s(sbase)}, {add}")
        else:
            A("s_nop 0")
        for k in range(4):
            if OPT["nodma"]:
                A.vmem("s_nop 3")
            else:
                A.vmem(f"buffer_load_dwordx4 {v(vb+k)}, {s(rs,4)}, {s(sT0 if add else sbase)} offen offset:{1024*k} lds")

    def adv(sr, inc, wrap):
        if OPT["samek"] == 1:
            return
        if OPT["samek"] == 2:
            A(f"s_xor_b32 {s(sr)}, {s(sr)}, {1 << (inc.bit_length() + 1) if inc > 128 else 256}")
            return
        A(f"s_add_u32 {s(sr)}, {s(sr)}, {inc}")
        if wrap:
            A(f"s_cmp_eq_u32 {s(sr)}, {wrap}")
            A(f"s_cselect_b32 {s(sr)}, 0, {s(sr)}")

    prog = []

    def item_w(c, full):
        for n, (i, mat) in enumerate(((0, 0), (0, 1), (1, 0), (1, 1))):
            def f(i=i, mat=mat, n=n):
                quad(vW, rWU if mat else rWG, WR + (c % 4) * 16384 + mat * 8192 + i * 4096, sWoff, i * 16 * 3584)
                if n == 3:
                    adv(sWoff, 32 * 3584, 448 * 3584 if c % 2 else 0)
            prog.append((c - 3, f, full if n == 3 else None))

    def item_x(xc, half, full=None):
        for m in (2 * half, 2 * half + 1):
            def f(m=m):
                quad(vX, rX, XR + (xc % 3) * 16384 + m * 4096, sXoff, m * 32 * 896)
                if m == 3:
                    adv(sXoff, 128, 896)
            prog.append((2 * xc - 4, f, full if m % 2 else None))

    def item_d(p):
        for q in range(4):
            def f(q=q):
                quad(vD, rWD, WD_SLOT[p % 7] + q * 4096, sDoff, q * 448 * 896)
                if q == 3:
                    adv(sDoff, 32 * 896, 448 * 896 if p % 2 else 0)
            prog.append((WD_FREE[p] if p < 7 else C_FREE[p - 7], f, 15 + p if q == 3 else None))

    item_w(0, None); item_x(0, 0); item_x(0, 1, 1)
    for c in range(1, 14):
        if c % 2:
            item_w(c, c + 1)
            if c < 13:
                item_x((c + 1) // 2, 0)
        else:
            item_x(c // 2, 1)
            item_w(c, c + 1)
    for p in range(14):
        item_d(p)

    pending = []
    known = 0

    def signal(upto_val=None, lag=None):
        last = None
        while pending and ((upto_val is not None and pending[0][1] <= upto_val) or
                           (lag is not None and A.vm - pending[0][0] >= lag)):
            last = pending.pop(0)
        if last:
            A.wait_vm(last[0])
            lds_set(vZ, F_FULL, last[1], vT)

    stamp(6)
    for n, (need, f, full) in enumerate(prog):
        if n == 8:
            srd(rWD, pWD, 448 * 1792 * 2)
            A(f"v_lshrrev_b32 {v(vT2)}, 2, {v(vLANE)}")
            A(f"v_xor_b32 {v(vT)}, {v(vT)}, {v(vT2)}")
            A(f"v_and_b32 {v(vT)}, 1, {v(vT)}")
            A(f"v_lshl_add_u32 {v(vD)}, {v(vT)}, 6, {v(vD)}")
            A(f"v_lshl_add_u32 {v(vD)}, {v(vZ)}, 4, {v(vD)}")
            A(f"s_lshl_b32 {s(sT1)}, {s(sCB)}, 7")
            A(f"v_add_u32 {v(vD)}, {s(sT1)}, {v(vD)}")
            for k in range(1, 4):
                A(f"v_add_u32 {v(vD+k)}, {k*(7168-1024)}, {v(vD)}")
            A(f"s_mul_i32 {s(sDoff)}, {s(sGRP)}, {OPT['rot2']*64*896}")
            A(f"v_mov_b32 {v(vZ)}, 0")
            A(f"s_mov_b32 {s(sFREE)}, 0")
            A("s_barrier")
            stamp(1)
        if need > known:
            known = need
            if need == 18:
                for val in sorted(set(x[1] for x in pending)):
                    signal(upto_val=val)
            else:
                signal(upto_val=need + 1)
            lp, ok = A.new("fl"), A.new("fo")
            A(f"s_cmp_ge_u32 {s(sFREE)}, {need}")
            A(f"s_cbranch_scc1 {ok}")
            A(f"s_mov_b32 {s(sCNT)}, 0")
            A.label(lp)
            A(f"ds_read_b128 {v(vF,4)}, {v(vZ)} offset:{F_FREE}")
            A(f"s_add_u32 {s(sCNT)}, {s(sCNT)}, 1")
            A("s_waitcnt lgkmcnt(0)")
            A(f"v_min_u32 {v(vF)}, {v(vF)}, {v(vF+1)}")
            A(f"v_min3_u32 {v(vF)}, {v(vF)}, {v(vF+2)}, {v(vF+3)}")
            A(f"s_cmp_lt_u32 {s(sCNT)}, {SPIN_MAX*16}")
            A(f"v_readfirstlane_b32 {s(sFREE)}, {v(vF)}")
            A(f"s_cbranch_scc0 {ok}")
            A(f"s_cmp_lt_u32 {s(sFREE)}, {need}")
            A(f"s_cbranch_scc1 {lp}")
            A.label(ok)
        f()
        if full:
            pending.append((A.vm, full))
            if full in (4, 8, 14, 21):
                stamp({4: 7, 8: 8, 14: 2, 21: 3}[full])
        if n >= 8:
            signal(lag=OPT["lag"])
        if full == 26:
            A(f"v_min_u32 {v(vF+4)}, 27, {v(vLANE)}")
            A(f"s_lshl_b32 {s(sT1)}, {s(sRB64)}, 7")
            A(f"s_add_u32 {s(sT1)}, {s(sT1)}, {OFF_FL}")
            A(f"v_lshl_add_u32 {v(vF+4)}, {v(vF+4)}, 2, {s(sT1)}")
            pl = A.vmem(f"global_load_dword {v(vF+5)}, {v(vF+4)}, {s(pWS,2)} sc1")
    stamp(4)
    ok = A.new("h2")
    A.wait_vm(pl)
    A(f"v_cmp_ne_u32 vcc, 0, {v(vF+5)}")
    A("s_nop 0")
    A("s_cmp_eq_u64 vcc, exec")
    A(f"s_cbranch_scc1 {ok}")
    poll_global(vF + 4, vF + 5, pWS, sleep=OPT["psl"])
    A.label(ok)
    lds_set(vZ, F_HRDY, 1, vT)
    stamp(10)
    while pending:
        signal(upto_val=pending[0][1])
    stamp(9)
    A("s_setprio 0")
    A("s_waitcnt lgkmcnt(0)")
    A("s_barrier")
    A("s_branch L_final")


C_FREE = [18, 18, 18, 18, 21, 21, 21]


def cwave():
    A.label("L_cw")
    A.vm = 0
    vXA, vWA, vL16, vT, vT2, vFL = 2, 6, 8, 9, 10, 11
    vZ, vFA, vFV, vFW = 12, 13, 14, 15
    FR = 16
    SM = 64
    SEL, SAC = 88, 96
    ACC = 128
    sRH, sFH = sW1, sW2
    sW4K, sFULL = 76, 77

    def xf(st, rbk): return FR + 24 * st + 4 * rbk
    def wf(st, mat, j): return FR + 24 * st + 8 + 4 * (2 * mat + j)
    def acc(mat, j, rbk): return ACC + 16 * ((mat * 2 + j) * 2 + rbk)

    A(f"s_and_b32 {s(sRH)}, {s(sWAVE)}, 1")
    A(f"s_lshr_b32 {s(sFH)}, {s(sWAVE)}, 1")
    A(f"v_and_b32 {v(vT)}, 31, {v(vLANE)}")
    A(f"s_lshl_b32 {s(sT0)}, {s(sRH)}, 13")
    A(f"s_add_u32 {s(sT0)}, {s(sT0)}, {XR}")
    A(f"v_lshl_add_u32 {v(vT)}, {v(vT)}, 7, {s(sT0)}")
    A(f"v_bfe_u32 {v(vT2)}, {v(vLANE)}, 1, 3")
    A(f"v_lshrrev_b32 {v(vFL)}, 5, {v(vLANE)}")
    A(f"v_xor_b32 {v(vT2)}, {v(vT2)}, {v(vFL)}")
    for k in range(4):
        A(f"v_xor_b32 {v(vXA+k)}, {2*k}, {v(vT2)}")
        A(f"v_lshl_add_u32 {v(vXA+k)}, {v(vXA+k)}, 4, {v(vT)}")
    A(f"v_bfe_u32 {v(vT2)}, {v(vLANE)}, 2, 2")
    A(f"v_lshl_add_u32 {v(vT)}, {v(vFL)}, 3, {v(vT2)}")
    A(f"v_lshlrev_b32 {v(vT)}, 8, {v(vT)}")
    A(f"v_bfe_u32 {v(vL16)}, {v(vLANE)}, 4, 1")
    A(f"v_lshl_add_u32 {v(vT)}, {v(vL16)}, 5, {v(vT)}")
    A(f"v_and_b32 {v(vL16)}, 3, {v(vLANE)}")
    A(f"v_lshl_add_u32 {v(vT)}, {v(vL16)}, 3, {v(vT)}")
    A(f"v_add_u32 {v(vT)}, {WR}, {v(vT)}")
    A(f"v_xor_b32 {v(vT2)}, {s(sWAVE)}, {v(vT2)}")
    A(f"v_lshl_add_u32 {v(vWA)}, {v(vT2)}, 6, {v(vT)}")
    A(f"v_xor_b32 {v(vWA+1)}, 64, {v(vWA)}")
    A(f"s_lshl_b32 {s(sW4K)}, {s(sWAVE)}, 12")
    A(f"v_lshlrev_b32 {v(vL16)}, 4, {v(vLANE)}")
    A(f"v_mov_b32 {v(vZ)}, 0")
    A(f"s_lshl_b32 {s(sT0)}, {s(sWAVE)}, 2")
    A(f"v_mov_b32 {v(vFA)}, {s(sT0)}")
    for i in range(28):
        A(f"v_mov_b32 {v(SM+i)}, 0")
    A("s_mov_b32 exec_lo, 0x00100001")
    A("s_mov_b32 exec_hi, 0x00100001")
    for i in range(4):
        A(f"v_mov_b32 {v(SEL+i)}, 0x3f803f80")
    A("s_mov_b64 exec, -1")
    kernarg_ready()
    srd(rWS, pWS, WS_BYTES)
    if OPT["prio"]:
        A(f"s_setprio {OPT['prio']}")

    def reads(st, c, ks):
        xs = ((c // 2) % 3) * 16384
        k4 = (c % 2) * 2 + ks
        ws_ = (c % 4) * 16384 + ks * 4096
        r = []
        r.append(f"ds_read_b128 {v(xf(st,0),4)}, {v(vXA+k4)} offset:{xs}")
        for j in range(2):
            for mat in range(2):
                for h in range(2):
                    r.append(f"ds_read_b64_tr_b16 {v(wf(st,mat,j)+2*h,2)}, {v(vWA+j)} offset:{ws_+mat*8192+h*1024}")
            if j == 0:
                r.append(f"ds_read_b128 {v(xf(st,1),4)}, {v(vXA+k4)} offset:{xs+4096}")
        return r

    def mf(st, first):
        m = []
        for j in range(2):
            for rbk in range(2):
                for mat in range(2):
                    a = acc(mat, j, rbk)
                    cc = "0" if first else v(a, 16)
                    m.append(f"v_mfma_f32_32x32x16_bf16 {v(a,16)}, {v(wf(st,mat,j),4)}, {v(xf(st,rbk),4)}, {cc}")
        return m

    def smf(st, first):
        return [f"v_mfma_f32_16x16x32_bf16 {v(SAC+4*mat,4)}, {v(SEL,4)}, {v(wf(st,mat,0),4)}, {'0' if first else v(SAC+4*mat,4)}"
                for mat in range(2)]

    def mix(st, first):
        b, sm = mf(st, first), smf(st, first)
        if OPT["nos"]:
            sm = ["s_nop 0", "s_nop 0"]
        return b[:5] + sm + b[5:]

    A("s_barrier")
    lds_wait(vZ, F_FULL, 1, vT, sleep=1)
    stamp(1)
    for r in reads(0, 0, 0):
        A(r)
    A("s_waitcnt lgkmcnt(0)")
    for c in range(14):
        ms = mix(0, c == 0)
        rs = reads(1, c, 1)
        for i, m in enumerate(ms):
            if i == 9:
                A("s_waitcnt lgkmcnt(0)")
                if c < 13:
                    A(f"v_readfirstlane_b32 {s(sFULL)}, {v(vFV)}")
            A(m)
            for _ in range(2):
                if rs:
                    A(rs.pop(0))
            if i == 4:
                A(f"v_mov_b32 {v(vFW)}, {c+1}")
            if i == 5:
                A(f"ds_write_b32 {v(vFA)}, {v(vFW)} offset:{F_FREE}")
            if i == 5 and c < 13:
                A(f"ds_read_b32 {v(vFV)}, {v(vZ)} offset:{F_FULL}")
        if c == 13:
            break
        ok = A.new("cf")
        A(f"s_cmp_ge_u32 {s(sFULL)}, {c+2}")
        A(f"s_cbranch_scc1 {ok}")
        lds_wait(vZ, F_FULL, c + 2, vT)
        A.label(ok)
        if c in (2, 5, 8):
            stamp({2: 8, 5: 9, 8: 10}[c])
        ms = mix(1, False)
        rs = reads(0, c + 1, 0)
        for i, m in enumerate(ms):
            if i == 9:
                A("s_waitcnt lgkmcnt(0)")
            A(m)
            for _ in range(2):
                if rs:
                    A(rs.pop(0))
    ms = mf(1, False)
    for m in smf(1, False) + ms[:3]:
        A(m)
    A(f"s_lshl_b32 {s(sT0)}, {s(sWAVE)}, 9")
    A(f"v_lshrrev_b32 {v(vT)}, 2, {v(vL16)}")
    A(f"v_add_u32 {v(vT)}, {s(sT0)}, {v(vT)}")
    A(f"v_mov_b32 {v(vFW)}, 1")
    A("s_nop 1")
    for mat in range(2):
        d = SM + 8 * mat
        A(f"v_cvt_pk_bf16_f32 {v(d)}, {v(SAC+4*mat)}, {v(SAC+4*mat)}")
        A(f"v_lshlrev_b32 {v(d)}, 16, {v(d)}")
        A(f"v_sub_f32 {v(vT2)}, {v(SAC+4*mat)}, {v(d)}")
        A(f"v_cvt_pk_bf16_f32 {v(d)}, {v(d)}, {v(vT2)}")
        A(f"ds_write_b32 {v(vT)}, {v(d)} offset:{SX+256*mat}")
        if mat == 0:
            A(ms[3])
    A(f"ds_write_b32 {v(vFA)}, {v(vFW)} offset:{F_SX}")
    A(ms[4])
    A(f"v_xor_b32 {v(vT)}, 512, {v(vT)}")
    A(f"v_xor_b32 {v(vFL)}, 4, {v(vFA)}")
    A(f"v_and_b32 {v(vT2)}, 31, {v(vLANE)}")
    A(f"s_lshl_b32 {s(sT0)}, {s(sRH)}, 8")
    A(f"v_lshl_add_u32 {v(vT2)}, {v(vT2)}, 2, {s(sT0)}")
    A(ms[5])
    again, ok = A.new("sx"), A.new("so")
    A(f"s_mov_b32 {s(sCNT)}, 0")

    def sm_reads():
        A(f"ds_read_b32 {v(vFV)}, {v(vFL)} offset:{F_SX}")
        A(f"ds_read_b32 {v(vFW)}, {v(vZ)} offset:{F_MRDY}")
        for mat in range(2):
            A(f"ds_read_b32 {v(SM+8*mat+4)}, {v(vT)} offset:{SX+256*mat}")
        for rbk in range(2):
            A(f"ds_read_b32 {v(SM+16+4*rbk)}, {v(vT2)} offset:{MB+128*rbk}")
    sm_reads()
    A(ms[6])
    A(ms[7])
    A.label(again)
    A("s_waitcnt lgkmcnt(0)")
    A(f"v_and_b32 {v(vFV)}, {v(vFV)}, {v(vFW)}")
    A(f"v_cmp_ne_u32 vcc, 0, {v(vFV)}")
    A(f"s_cbranch_vccnz {ok}")
    sm_reads()
    A(f"s_add_u32 {s(sCNT)}, {s(sCNT)}, 1")
    A(f"s_cmp_lt_u32 {s(sCNT)}, {SPIN_MAX*16}")
    A(f"s_cbranch_scc1 {again}")
    A("s_waitcnt lgkmcnt(0)")
    A.label(ok)
    for j in range(2):
        for rbk in range(2):
            for mat in range(2):
                a = acc(mat, j, rbk)
                A(f"v_mfma_f32_32x32x16_bf16 {v(a,16)}, {v(SM+4*(2*mat+j),4)}, {v(SM+16+4*rbk,4)}, {v(a,16)}")
    stamp(2)
    sHA = 78
    A(f"s_lshl_b32 {s(sT0)}, {s(sRB)}, 1")
    A(f"s_add_u32 {s(sT0)}, {s(sT0)}, {s(sRH)}")
    A(f"s_lshl_b32 {s(sT1)}, {s(sFB)}, 1")
    A(f"s_add_u32 {s(sT1)}, {s(sT1)}, {s(sFH)}")
    A(f"s_mul_i32 {s(sT2)}, {s(sT0)}, {224*1024}")
    A(f"s_lshl_b32 {s(sT3)}, {s(sT1)}, 12")
    A(f"s_add_u32 {s(sT2)}, {s(sT2)}, {s(sT3)}")
    A(f"s_add_u32 {s(sT2)}, {s(sT2)}, {OFF_H}")
    A(f"s_lshl_b32 {s(sT3)}, {s(sRH)}, 11")
    A(f"s_add_u32 {s(sHA)}, {s(sT2)}, {s(sT3)}")
    A(f"s_xor_b32 {s(sHA+1)}, {s(sHA)}, 2048")
    A(f"s_add_u32 {s(sHA+2)}, {s(sHA)}, {112*1024}")
    A(f"s_add_u32 {s(sHA+3)}, {s(sHA+1)}, {112*1024}")
    A(f"s_lshl_b32 {s(sT4)}, {s(sT0)}, 7")
    A(f"s_lshl_b32 {s(sT1)}, {s(sT1)}, 2")
    A(f"s_add_u32 {s(sT4)}, {s(sT4)}, {s(sT1)}")
    A(f"s_add_u32 {s(sT4)}, {s(sT4)}, {OFF_FL}")
    for j in range(2):
        for rbk in range(2):
            g_, u_ = acc(0, j, rbk), acc(1, j, rbk)
            for ab in range(2):
                b = 8 * ab
                for e in range(8):
                    A(f"v_max_f32 {v(g_+b+e)}, 0, {v(g_+b+e)}")
                for e in range(8):
                    A(f"v_mul_f32 {v(g_+b+e)}, {v(g_+b+e)}, {v(u_+b+e)}")
                for e in range(4):
                    A(f"v_cvt_pk_bf16_f32 {v(g_+b+e)}, {v(g_+b+2*e)}, {v(g_+b+2*e+1)}")
                hs = A.vmem(f"buffer_store_dwordx4 {v(g_+b,4)}, {v(vL16)}, {s(rWS,4)}, {s(sHA+2*rbk+j)} offen offset:{ab*1024} sc1")
    stamp(6)
    vDA = 2
    A(f"v_bfe_u32 {v(vT2)}, {v(vLANE)}, 2, 2")
    A(f"v_lshrrev_b32 {v(vT)}, 5, {v(vLANE)}")
    A(f"v_lshl_add_u32 {v(vT)}, {v(vT)}, 2, {v(vT2)}")
    A(f"v_lshl_add_u32 {v(vT)}, {v(vT)}, 7, {s(sW4K)}")
    A(f"v_bfe_u32 {v(vT2)}, {v(vLANE)}, 4, 1")
    A(f"v_lshl_add_u32 {v(vT)}, {v(vT2)}, 5, {v(vT)}")
    A(f"v_and_b32 {v(vT2)}, 3, {v(vLANE)}")
    A(f"v_lshl_add_u32 {v(vT)}, {v(vT2)}, 3, {v(vT)}")
    A(f"v_bfe_u32 {v(vT2)}, {v(vLANE)}, 3, 1")
    A(f"v_lshl_add_u32 {v(vT)}, {v(vT2)}, 6, {v(vT)}")
    A(f"v_add_u32 {v(vDA)}, {XR}, {v(vT)}")
    A(f"v_xor_b32 {v(vDA+1)}, 64, {v(vDA)}")
    A(f"v_add_u32 {v(vDA+2)}, {WR}, {v(vT)}")
    A(f"v_xor_b32 {v(vDA+3)}, 64, {v(vDA+2)}")
    ACC2, HB, W2 = 64, 16, 128
    HD = OPT["hd"]

    def w1(pos):
        return 192 + 8 * pos if pos < 8 else 144 + 8 * (pos - 8)

    def wd_reads(dst, pos):
        sl = WD_SLOT[(pos % 14) // 2]
        hi = sl >= WR
        off = sl - (WR if hi else XR) + (pos % 2) * 2048
        return [f"ds_read_b64_tr_b16 {v(dst+4*cj+2*h,2)}, {v(vDA+2*hi+cj)} offset:{off+h*1024}"
                for cj in range(2) for h in range(2)]
    lds_wait(vZ, F_FULL, 18, vT)
    for pos in range(8):
        for r in wd_reads(w1(pos), pos):
            A(r)
    lds_set(vFA, F_FREE, 18, vFW)
    A(f"v_mov_b32 {v(vT)}, {s(sT4)}")
    A(f"v_mov_b32 {v(vT2)}, 1")
    A.wait_vm(hs)
    A("s_mov_b64 exec, 1")
    A.vmem(f"global_store_dword {v(vT)}, {v(vT2)}, {s(pWS,2)} sc1")
    A("s_mov_b64 exec, -1")
    stamp(3)
    lds_wait(vZ, F_FULL, 21, vT)
    for pos in range(8, 14):
        for r in wd_reads(w1(pos), pos):
            A(r)
    lds_set(vFA, F_FREE, 21, vFW)
    sHB, sHoff, sH0, sH1 = 78, 79, 80, 81
    A(f"s_mul_i32 {s(sHB)}, {s(sRB64)}, {224*1024}")
    A(f"s_mul_i32 {s(sT0)}, {s(sWAVE)}, {28*1024}")
    A(f"s_add_u32 {s(sHB)}, {s(sHB)}, {s(sT0)}")
    A(f"s_add_u32 {s(sHB)}, {s(sHB)}, {OFF_H}")
    A(f"s_mul_i32 {s(sHoff)}, {s(sGRP)}, {OPT['rot2']*4096}")
    lds_wait(vZ, F_HRDY, 1, vT, sleep=1)
    stamp(4)
    hid = {}

    def h_load(ks):
        if ks % 4 == 0:
            if ks > 0:
                A(f"s_add_u32 {s(sHoff)}, {s(sHoff)}, 4096")
                A(f"s_cmp_eq_u32 {s(sHoff)}, {28*1024}")
                A(f"s_cselect_b32 {s(sHoff)}, 0, {s(sHoff)}")
            A(f"s_add_u32 {s(sH0)}, {s(sHB)}, {s(sHoff)}")
            A(f"s_add_u32 {s(sH1)}, {s(sH0)}, {112*1024}")
        for rbk in range(2):
            hid[ks] = A.vmem(f"buffer_load_dwordx4 {v(HB+8*(ks%HD)+4*rbk,4)}, {v(vL16)}, {s(rWS,4)}, {s(sH0+rbk)} offen offset:{(ks%4)*1024} sc1")
    for ks in range(HD):
        h_load(ks)
    A("s_waitcnt lgkmcnt(0)")
    for ks in range(28):
        if ks == 13:
            lds_wait(vZ, F_FULL, 28, vT)
        if ks >= 13 and ks + 1 < 28:
            for r in wd_reads(W2 + 8 * ((ks + 1) % 2), ks + 1):
                A(r)
        A.wait_vm(hid[ks])
        if ks >= 14:
            A(f"s_waitcnt lgkmcnt({4 if ks + 1 < 28 else 0})")
        wb = w1(ks) if ks < 14 else W2 + 8 * (ks % 2)
        for rbk in range(2):
            for cj in range(2):
                a = ACC2 + 16 * (2 * rbk + cj)
                cc = "0" if ks == 0 else v(a, 16)
                A(f"v_mfma_f32_32x32x16_bf16 {v(a,16)}, {v(HB+8*(ks%HD)+4*rbk,4)}, {v(wb+4*cj,4)}, {cc}")
        if ks + HD < 28:
            h_load(ks + HD)
    stamp(7)
    A("s_barrier")
    A(f"s_mul_i32 {s(sT0)}, {s(sWAVE)}, {PR_SZ}")
    A(f"s_add_u32 m0, {s(sT0)}, 4092")
    A("s_nop 9")
    pos = [0, 272, 640, 912]
    for t in range(4):
        for r in range(16):
            A(f"ds_write_addtid_b32 {v(ACC2+16*t+r)} offset:{PR-4092+t*5120+(r//4)*1280+pos[r%4]}")
    A("s_waitcnt lgkmcnt(0)")
    A("s_branch L_final")


def kgen_slot(R):
    e = A
    la, ai, cr, ci, dt, dt2 = [R["P"] + k for k in range(6)]
    t = R["tmp"]
    zr, zi = t, t + 1
    E = {1: t + 2, 8: t + 4, 256: t + 6}
    q0, q1, q2 = t + 8, t + 9, t + 10
    Ak = [t + 12 + 2 * k for k in range(8)]
    PK = R["PK"]
    AF, BF, DK, wa, ra = R["AF"], R["BF"], R["DK"], R["wa"], R["ra"]
    if OPT["ktog"]:
        e("s_setprio 0")
    e(f"v_mul_f32 {v(q0)}, {LOG2E:#x}, {v(la)}")
    e(f"v_exp_f32 {v(q0)}, {v(q0)}")
    e(f"v_mul_f32 {v(zi)}, {v(ai)}, {v(dt)}")
    e(f"v_cvt_pk_bf16_f32 {v(q0)}, {v(q0)}, {v(q0)}")
    e(f"v_lshlrev_b32 {v(q0)}, 16, {v(q0)}")
    e(f"v_mul_f32 {v(q0)}, {v(q0)}, {v(dt)}")
    e(f"v_mul_f32 {v(zr)}, {NLOG2E:#x}, {v(q0)}")
    e(f"v_mul_f32 {v(zi)}, {INV2PI:#x}, {v(zi)}")
    for p in (1, 8, 256):
        e(f"v_mul_f32 {v(q0)}, {f2u(float(p)):#x}, {v(zr)}")
        e(f"v_mul_f32 {v(q1)}, {f2u(float(p)):#x}, {v(zi)}")
        e(f"v_exp_f32 {v(q0)}, {v(q0)}")
        e(f"v_fract_f32 {v(q1)}, {v(q1)}")
        e(f"v_cos_f32 {v(q2)}, {v(q1)}")
        e(f"v_sin_f32 {v(q1)}, {v(q1)}")
        e(f"v_mul_f32 {v(E[p])}, {v(q0)}, {v(q2)}")
        if p == 8:
            e(f"v_mul_f32 {v(E[p]+1)}, -{v(q0)}, {v(q1)}")
        else:
            e(f"v_mul_f32 {v(E[p]+1)}, {v(q0)}, {v(q1)}")
    st = [0]

    def pack(dw, a, b):
        e(f"v_cvt_pk_bf16_f32 {v(PK+8*st[0]+dw)}, {v(a)}, {v(b)}")
        e(f"v_cvt_pk_bf16_f32 {v(PK+8*st[0]+4+dw)}, {v(a+1)}, {v(b+1)}")

    def hi():
        if OPT["ktog"]:
            e("s_setprio 2")

    def lo():
        if OPT["ktog"]:
            e("s_setprio 0")

    def flush(slot, keep=False):
        hi()
        e(f"ds_write_b128 {v(wa+slot)}, {v(PK+8*st[0],4)}")
        e(f"ds_write_b128 {v(wa+slot)}, {v(PK+8*st[0]+4,4)} offset:4096")
        if not keep:
            lo()
        st[0] ^= 1

    def cmul(d, a, b):
        e(f"v_mul_f32 {v(q0)}, {v(a+1)}, {v(b+1)}")
        e(f"v_mul_f32 {v(q1)}, {v(a+1)}, {v(b)}")
        e(f"v_fma_f32 {v(d+1)}, {v(a)}, {v(b+1)}, {v(q1)}")
        e(f"v_fma_f32 {v(d)}, {v(a)}, {v(b)}, -{v(q0)}")

    def frags(dst):
        for i in range(8):
            for h in range(2):
                e(f"ds_read_b64_tr_b16 {v(dst+4*i+2*h,2)}, {v(ra+h)} offset:{1024*i}")
    e(f"v_mul_f32 {v(Ak[0])}, {v(cr)}, {v(dt2)}")
    e(f"v_mul_f32 {v(Ak[0]+1)}, {v(ci)}, {v(dt2)}")
    for k in range(1, 8):
        cmul(Ak[k], Ak[k - 1], E[1])
        if k % 2:
            pack(k // 2, Ak[k - 1], Ak[k])
    flush(0)
    G = E[256]
    for k in (0, 2, 4, 6):
        cmul(Ak[k], Ak[k], G)
    pack(0, Ak[0], Ak[2]); pack(2, Ak[4], Ak[6])
    cmul(Ak[0], Ak[0], G); cmul(Ak[4], Ak[4], G); pack(1, Ak[0], Ak[4])
    cmul(Ak[0], Ak[0], G); cmul(Ak[4], Ak[4], G); pack(3, Ak[0], Ak[4])
    flush(1)
    cmul(Ak[0], Ak[0], G); cmul(Ak[1], Ak[0], G); pack(0, Ak[0], Ak[1])
    cmul(Ak[0], Ak[1], G); cmul(Ak[1], Ak[0], G); pack(2, Ak[0], Ak[1])
    cmul(Ak[0], Ak[1], G); pack(1, Ak[0], Ak[0])
    flush(2, True)
    frags(AF)
    lo()
    X, Y = Ak[2], Ak[3]
    e(f"v_mov_b32 {v(X)}, 1.0")
    e(f"v_mov_b32 {v(X+1)}, 0")
    pack(0, X, E[8])
    prev = E[8]
    for i in range(1, 16):
        cmul(X, prev, E[8])
        cmul(Y, X, E[8])
        prev = Y
        pack(i % 4, X, Y)
        if i % 4 == 3:
            flush(i // 4, i == 15)
    frags(BF)
    for i in range(8):
        e(f"s_waitcnt lgkmcnt({14-2*i})")
        e(f"v_mfma_f32_32x32x16_bf16 {v(DK,16)}, {v(AF+4*i,4)}, {v(BF+4*i,4)}, {v(DK,16)}")


def kwave():
    A.label("L_kw")
    A.vm = 0
    sCI, sCH, sKB, sIT, sUBc, sTBc = sW1, sW2, sW3, 69, 70, 71
    vT, vT2, vT3, vZ = 2, 3, 4, 5
    R = dict(P=8, tmp=28, PK=56, wa=72, ra=76, AF=80, BF=112, DK=144)
    P = R["P"]
    LD = 160
    GA = 170
    A(f"s_mul_i32 {s(sCH0)}, {s(sXCD)}, 28")
    A(f"s_add_u32 {s(sCH0)}, {s(sCH0)}, {s(sJ)}")
    A(f"s_lshl_b32 {s(sCH0)}, {s(sCH0)}, 1")
    A(f"s_and_b32 {s(sCI)}, {s(sWAVE)}, 1")
    A(f"s_add_u32 {s(sCH)}, {s(sCH0)}, {s(sCI)}")
    A(f"s_lshl_b32 {s(sT3)}, {s(sCH0)}, 1")
    isK, ld_done = A.new("ik"), A.new("ld")
    A(f"s_cmp_lg_u32 {s(sWAVE)}, 5")
    A(f"s_cbranch_scc1 {isK}")
    A(f"s_lshl_b32 {s(sT0)}, {s(sCH0)}, 9")
    A(f"v_lshl_add_u32 {v(vT)}, {v(vLANE)}, 3, {s(sT0)}")
    kernarg_ready()
    for k, p in enumerate((pLA, pAI, pCR, pCI)):
        A(f"global_load_dword {v(LD+2*k)}, {v(vT)}, {s(p,2)} offset:4")
        A(f"global_load_dword {v(LD+2*k+1)}, {v(vT)}, {s(p,2)} offset:516")
    A(f"s_mov_b32 {s(sKB)}, {KM}")
    A(f"s_mov_b32 {s(sIT)}, 2")
    for i in range(4):
        A(f"v_mov_b32 {v(28+i)}, 0")
    A(f"v_min_u32 {v(vT2)}, 29, {v(vLANE)}")
    A(f"v_lshlrev_b32 {v(vT2)}, 4, {v(vT2)}")
    A(f"ds_write_b128 {v(vT2)}, {v(28,4)} offset:{UB}")
    A(f"ds_write_b128 {v(vT2)}, {v(28,4)} offset:{UB+UB_SZ}")
    A(f"v_and_b32 {v(vT2)}, 48, {v(vT2)}")
    A(f"ds_write_b128 {v(vT2)}, {v(28,4)} offset:{FG}")
    A(f"ds_write_b32 {v(28)}, {v(28)} offset:{TB}")
    A(f"ds_write_b32 {v(28)}, {v(28)} offset:{TB+TB_SZ}")
    A(f"s_branch {ld_done}")
    A.label(isK)
    A(f"s_lshl_b32 {s(sT0)}, {s(sCH)}, 9")
    A(f"v_lshl_add_u32 {v(vT)}, {v(vLANE)}, 3, {s(sT0)}")
    kernarg_ready()
    for k, p in enumerate((pLA, pAI, pCR, pCI)):
        A(f"global_load_dwordx2 {v(LD+2*k,2)}, {v(vT)}, {s(p,2)}")
    A(f"s_mul_i32 {s(sKB)}, {s(sCI)}, {KA_SZ}")
    A(f"s_mov_b32 {s(sIT)}, 3")
    A.label(ld_done)
    A(f"s_load_dword {s(sT4)}, {s(pLDT,2)}, {s(sT3)}")
    srd(rWS, pWS, WS_BYTES)
    A(f"v_mov_b32 {v(vZ)}, 0")
    A(f"v_lshl_add_u32 {v(vT)}, {v(vLANE)}, 6, {s(sKB)}")
    A(f"v_bfe_u32 {v(vT2)}, {v(vLANE)}, 1, 2")
    for k in range(4):
        A(f"v_xor_b32 {v(vT3)}, {k}, {v(vT2)}")
        A(f"v_lshl_add_u32 {v(R['wa']+k)}, {v(vT3)}, 4, {v(vT)}")
    A(f"v_bfe_u32 {v(vT2)}, {v(vLANE)}, 2, 2")
    A(f"v_lshrrev_b32 {v(vT)}, 5, {v(vLANE)}")
    A(f"v_lshl_add_u32 {v(vT)}, {v(vT)}, 3, {v(vT2)}")
    A(f"v_lshl_add_u32 {v(vT)}, {v(vT)}, 6, {s(sKB)}")
    A(f"v_bfe_u32 {v(vT2)}, {v(vLANE)}, 4, 1")
    A(f"v_lshl_add_u32 {v(vT)}, {v(vT2)}, 5, {v(vT)}")
    A(f"v_lshrrev_b32 {v(vT2)}, 1, {v(vLANE)}")
    A(f"v_lshrrev_b32 {v(vT3)}, 3, {v(vLANE)}")
    A(f"v_xor_b32 {v(vT2)}, {v(vT2)}, {v(vT3)}")
    A(f"v_and_b32 {v(vT2)}, 1, {v(vT2)}")
    A(f"v_lshl_add_u32 {v(vT)}, {v(vT2)}, 4, {v(vT)}")
    A(f"v_and_b32 {v(vT2)}, 1, {v(vLANE)}")
    A(f"v_lshl_add_u32 {v(R['ra'])}, {v(vT2)}, 3, {v(vT)}")
    A(f"v_add_u32 {v(R['ra']+1)}, 256, {v(R['ra'])}")
    A(f"v_xor_b32 {v(R['ra']+1)}, 32, {v(R['ra']+1)}")
    DK = R["DK"]
    for r in range(16):
        A(f"v_mov_b32 {v(DK+r)}, 0")
    A(f"s_mul_i32 {s(sUBc)}, {s(sCI)}, {UB_SZ}")
    A(f"s_add_u32 {s(sUBc)}, {s(sUBc)}, {UB}")
    A(f"s_mul_i32 {s(sTBc)}, {s(sCI)}, {TB_SZ}")
    A(f"s_add_u32 {s(sTBc)}, {s(sTBc)}, {TB+4}")
    A("s_waitcnt lgkmcnt(0)")
    A("s_barrier")
    for ph in range(2):
        G = GA + 18 * ph
        A(f"v_lshlrev_b32 {v(vT)}, 4, {v(vLANE)}")
        A(f"v_sub_u32 {v(vT)}, {2047-1024*ph}, {v(vT)}")
        if ph:
            A(f"v_cmp_gt_u32 vcc, 256, {v(vT)}")
            A(f"v_subrev_u32 {v(vT2)}, 16, {v(vT)}")
            A(f"v_mov_b32 {v(vT3)}, 144")
            A(f"v_cndmask_b32 {v(vT)}, {v(vT)}, {v(vT3)}, vcc")
            A(f"v_mov_b32 {v(vT3)}, 128")
            A(f"v_cndmask_b32 {v(vT2)}, {v(vT3)}, {v(vT2)}, vcc")
        else:
            A(f"v_mov_b32 {v(vT2)}, 128")
        A(f"v_cvt_f32_u32 {v(vT)}, {v(vT)}")
        A(f"v_subrev_u32 {v(vT2)}, 0x4300, {v(vT2)}")
        A(f"v_lshl_add_u32 {v(vT2)}, {v(vT2)}, 2, {s(sTBc)}")
        ks = range(0, 17, 2) if ph else (0, 8, 16)
        for k in ks:
            A(f"v_subrev_f32 {v(G+k)}, {f2u(float(k)):#x}, {v(vT)}")
            A(f"v_subrev_f32 {v(G+k+1)}, {f2u(float(k+1)):#x}, {v(vT)}")
            A(f"v_cvt_pk_bf16_f32 {v(vT3)}, {v(G+k)}, {v(G+k+1)}")
            A(f"v_mad_u32_u16 {v(G+k)}, {v(vT3)}, 4, {v(vT2)}")
            if k < 16 and ph:
                A(f"v_mad_u32_u16 {v(G+k+1)}, {v(vT3)}, 4, {v(vT2)} op_sel:[1,0,0,0]")
    A(f"s_lshl_b32 {s(sT0)}, {s(sT4)}, 16")
    A(f"s_and_b32 {s(sT1)}, {s(sT4)}, 0xffff0000")
    A(f"v_mov_b32 {v(vT3)}, {LOG2E:#x}")
    A(f"v_mul_f32 {v(vT)}, {s(sT0)}, {v(vT3)}")
    A(f"v_mul_f32 {v(vT2)}, {s(sT1)}, {v(vT3)}")
    A(f"v_exp_f32 {v(vT)}, {v(vT)}")
    A(f"v_exp_f32 {v(vT2)}, {v(vT2)}")
    A("s_nop 0")
    A(f"v_cvt_pk_bf16_f32 {v(vT3)}, {v(vT)}, {v(vT2)}")
    A(f"v_lshlrev_b32 {v(vT)}, 16, {v(vT3)}")
    A(f"v_and_b32 {v(vT2)}, 0xffff0000, {v(vT3)}")
    isK, up_done = A.new("ik"), A.new("up")
    A("s_waitcnt vmcnt(0)")
    stamp(1)
    A(f"s_cmp_lg_u32 {s(sWAVE)}, 5")
    A(f"s_cbranch_scc1 {isK}")
    for st in range(2):
        for k in range(4):
            A(f"v_and_b32 {v(P+6*st+k)}, 0xffff0000, {v(LD+2*k+st)}")
        A(f"v_mov_b32 {v(P+6*st+4)}, {v(vT+st)}")
        A(f"v_add_f32 {v(P+6*st+5)}, {v(vT+st)}, {v(vT+st)}")
    A(f"s_branch {up_done}")
    A.label(isK)
    A(f"s_cmp_eq_u32 {s(sCI)}, 1")
    A("s_cselect_b64 vcc, -1, 0")
    A(f"v_cndmask_b32 {v(vT)}, {v(vT)}, {v(vT2)}, vcc")
    for st in range(3):
        for k in range(4):
            if st == 1:
                A(f"v_and_b32 {v(P+6*st+k)}, 0xffff0000, {v(LD+2*k)}")
            else:
                A(f"v_lshlrev_b32 {v(P+6*st+k)}, 16, {v(LD+2*k+st//2)}")
        A(f"v_mov_b32 {v(P+6*st+4)}, {v(vT)}")
        A(f"v_add_f32 {v(P+6*st+5)}, {v(vT)}, {v(vT)}")
    A.label(up_done)
    A(f"s_setprio {OPT['kprio']}")
    A(f"v_lshlrev_b32 {v(vT3)}, 2, {v(vLANE)}")
    A(f"v_mov_b32 {v(vT2)}, 0")
    loop, nof = A.new("kl"), A.new("kn")
    A.label(loop)
    if not OPT["nokg"]:
        kgen_slot(R)
    for k in range(12):
        A(f"v_mov_b32 {v(P+k)}, {v(P+6+k)}")
    A(f"s_cmp_lg_u32 {s(sWAVE)}, 5")
    A(f"s_cbranch_scc1 {nof}")
    A(f"v_add_u32 {v(vT2)}, 1, {v(vT2)}")
    for r in range(11):
        A(f"ds_write_b32 {v(vT3)}, {v(DK+r)} offset:{TB2+256*r}")
    A(f"ds_write_b32 {v(vZ)}, {v(vT2)} offset:{F_TB2}")
    A(f"v_add_u32 {v(vT3)}, {TB2_SZ}, {v(vT3)}")
    for r in range(16):
        A(f"v_mov_b32 {v(DK+r)}, 0")
    A.label(nof)
    A(f"s_sub_u32 {s(sIT)}, {s(sIT)}, 1")
    A(f"s_cmp_lg_u32 {s(sIT)}, 0")
    A(f"s_cbranch_scc1 {loop}")
    stamp(2)
    A(f"s_cmp_eq_u32 {s(sWAVE)}, 5")
    A("s_cbranch_scc1 L_mw")

    GV, PK = 80, 100
    lds_wait(vZ, F_TB2, 2, vT)
    A(f"s_mul_i32 {s(sT0)}, {s(sCI)}, {TB2_SZ}")
    A(f"v_lshl_add_u32 {v(vT)}, {v(vLANE)}, 2, {s(sT0)}")
    for r in range(11):
        A(f"ds_read_b32 {v(GV+r)}, {v(vT)} offset:{TB2+256*r}")
    vN, vG = 30, 31
    A(f"v_and_b32 {v(vN)}, 31, {v(vLANE)}")
    A(f"v_lshrrev_b32 {v(vG)}, 5, {v(vLANE)}")
    A(f"v_lshl_add_u32 {v(vT)}, {v(vN)}, 1, {v(vG)}")
    A(f"v_lshl_add_u32 {v(32)}, {v(vT)}, 4, {s(sTBc)}")
    A(f"v_lshl_add_u32 {v(33)}, {v(vT)}, 3, {s(sTBc)}")
    A(f"v_lshl_add_u32 {v(34)}, {v(vLANE)}, 3, {s(sTBc)}")
    A(f"v_lshl_add_u32 {v(vT)}, {v(vG)}, 6, {v(vN)}")
    A(f"v_lshl_add_u32 {v(35)}, {v(vT)}, 2, {s(sTBc)}")
    A("s_waitcnt lgkmcnt(0)")
    for r in range(11):
        A(f"v_add_f32 {v(DK+r)}, {v(DK+r)}, {v(GV+r)}")
    A(f"ds_write2_b32 {v(32)}, {v(DK)}, {v(DK+1)} offset0:0 offset1:1")
    A(f"ds_write2_b32 {v(32)}, {v(DK+2)}, {v(DK+3)} offset0:2 offset1:3")
    for r in range(2):
        A(f"ds_write_b32 {v(33)}, {v(DK+4+r)} offset:{256*4+4*r}")
        A(f"ds_write_b32 {v(34)}, {v(DK+6+r)} offset:{384*4+4*r}")
        A(f"ds_write_b32 {v(35)}, {v(DK+8+r)} offset:{512*4+128*r}")
    A("s_mov_b64 exec, 1")
    A(f"ds_write_b32 {v(35)}, {v(DK+10)} offset:{640*4}")
    A("s_mov_b64 exec, -1")
    for k in (0, 8, 16):
        A(f"ds_read_b32 {v(GV+17+k//8)}, {v(GA+k)}")
    for k in range(17):
        A(f"ds_read_b32 {v(GV+k)}, {v(GA+18+k)}")
    A(f"v_lshl_add_u32 {v(vT)}, {v(vLANE)}, 5, {s(sKB)}")
    A("s_waitcnt lgkmcnt(15)")
    a_, b_, c_ = GV + 17, GV + 18, GV + 19
    src = [a_] * 4 + [b_] * 7 + [c_] * 6
    for cp in range(2):
        for k in range(8):
            A(f"v_cvt_pk_bf16_f32 {v(PK+8*cp+k)}, {v(src[2*k+cp])}, {v(src[2*k+cp+1])}")
        A(f"ds_write_b128 {v(vT)}, {v(PK+8*cp,4)} offset:{cp*KR_PITCH}")
        A(f"ds_write_b128 {v(vT)}, {v(PK+8*cp+4,4)} offset:{cp*KR_PITCH+16}")
    A("s_waitcnt lgkmcnt(4)")
    for cp in range(2):
        for k in range(8):
            A(f"v_cvt_pk_bf16_f32 {v(PK+16+8*cp+k)}, {v(GV+2*k+cp)}, {v(GV+2*k+cp+1)}")
        A(f"ds_write_b128 {v(vT)}, {v(PK+16+8*cp,4)} offset:{2048+cp*KR_PITCH}")
        A(f"ds_write_b128 {v(vT)}, {v(PK+16+8*cp+4,4)} offset:{2048+cp*KR_PITCH+16}")
    CA, FS = 32, 64
    for r in range(32):
        A(f"v_mov_b32 {v(CA+r)}, 0")
    A(f"v_and_b32 {v(vT2)}, 1, {v(vLANE)}")
    A(f"v_lshl_add_u32 {v(vT2)}, {v(vT2)}, 4, {s(sKB)}")
    A(f"ds_write_b128 {v(vT2)}, {v(CA,4)} offset:4096")
    A(f"ds_write_b128 {v(vT2)}, {v(CA,4)} offset:{KR_PITCH+4096}")
    vKA, vUA = 10, 14
    vB, vG4 = 30, 31
    A(f"v_and_b32 {v(vB)}, 15, {v(vLANE)}")
    A(f"v_lshrrev_b32 {v(vG4)}, 4, {v(vLANE)}")
    A(f"v_sub_u32 {v(vT)}, 2031, {v(vB)}")
    A(f"v_and_b32 {v(vT2)}, 1, {v(vT)}")
    A(f"v_mul_u32_u24 {v(vT2)}, {KR_PITCH}, {v(vT2)}")
    A(f"v_lshrrev_b32 {v(vT)}, 1, {v(vT)}")
    A(f"v_lshl_add_u32 {v(vT)}, {v(vT)}, 2, {v(vT2)}")
    A(f"v_lshl_add_u32 {v(vT)}, {v(vG4)}, 4, {v(vT)}")
    A(f"v_add_u32 {v(vT)}, {s(sKB)}, {v(vT)}")
    for p in range(4):
        A(f"v_subrev_u32 {v(vKA+p)}, {512*(2*p+1)+64*7}, {v(vT)}")
    A(f"v_lshl_add_u32 {v(vUA)}, {v(vB)}, 5, {s(sUBc)}")
    A(f"v_lshl_add_u32 {v(vUA)}, {v(vG4)}, 4, {v(vUA)}")
    stamp(3)
    A(f"s_setprio {OPT['cvprio']}")
    lds_wait(vZ, F_URDY, 1, vT, sleep=2)
    stamp(4)

    def fa(st, q): return FS + 64 * st + 4 * q
    def fb_(st, x): return FS + 64 * st + 32 + 4 * x

    def creads(st, kp):
        r = []
        for q in range(8):
            o = 128 * (1 - (q & 1)) + 16 * (7 - kp)
            r.append(f"ds_read_b128 {v(fb_(st,q),4)}, {v(vUA)} offset:{512*q+64*(7-kp)}")
            r.append(f"ds_read2_b32 {v(fa(st,q),2)}, {v(vKA+q//2)} offset0:{o} offset1:{o+1}")
            r.append(f"ds_read2_b32 {v(fa(st,q)+2,2)}, {v(vKA+q//2)} offset0:{o+2} offset1:{o+3}")
        return r
    for r in creads(0, 0):
        A(r)
    for kp in range(8):
        st = kp % 2
        A("s_waitcnt lgkmcnt(0)")
        rs = creads(1 - st, kp + 1) if kp < 7 else []
        for q in range(8):
            for t in range(q, 8):
                A(f"v_mfma_f32_16x16x32_bf16 {v(CA+4*t,4)}, {v(fa(st,q),4)}, {v(fb_(st,t-q),4)}, {v(CA+4*t,4)}")
                if rs:
                    A(rs.pop(0))
    stamp(6)
    A(f"s_lshl_b32 {s(sT0)}, {s(sCI)}, 2")
    A(f"v_mov_b32 {v(vT)}, {s(sT0)}")
    lds_set(vT, F_KDONE, 1, vT2)
    A(f"v_and_b32 {v(vT)}, 1, {v(vG4)}")
    A(f"v_lshlrev_b32 {v(vT)}, 9, {v(vT)}")
    A(f"v_lshl_add_u32 {v(vT)}, {v(vB)}, 5, {v(vT)}")
    A(f"v_lshrrev_b32 {v(vT2)}, 1, {v(vG4)}")
    A(f"v_lshl_add_u32 {v(vT)}, {v(vT2)}, 4, {v(vT)}")
    A(f"s_lshl_b32 {s(sT0)}, {s(sCH)}, 12")
    A(f"s_add_u32 {s(sT0)}, {s(sT0)}, {OFF_Y}")
    YP = 100
    for pr in range(4):
        for tt in range(2):
            for d in range(2):
                src = CA + 4 * (2 * pr + tt) + 2 * d
                A(f"v_cvt_pk_bf16_f32 {v(YP+4*pr+2*tt+d)}, {v(src)}, {v(src+1)}")
    A("s_setprio 3")
    A("s_nop 0")
    for pr in range(4):
        A(f"v_permlane16_swap_b32 {v(YP+4*pr)}, {v(YP+4*pr+2)}")
        A(f"v_permlane16_swap_b32 {v(YP+4*pr+1)}, {v(YP+4*pr+3)}")
    for pr in range(4):
        A(f"buffer_store_dwordx4 {v(YP+4*pr,4)}, {v(vT)}, {s(rWS,4)}, {s(sT0)} offen offset:{1024*pr} sc1")
    A(f"s_lshl_b32 {s(sT0)}, {s(sCH)}, 2")
    A(f"s_add_u32 {s(sT0)}, {s(sT0)}, {OFF_FL+4096}")
    A(f"v_mov_b32 {v(vT)}, {s(sT0)}")
    A(f"v_mov_b32 {v(vT2)}, 1")
    A("s_waitcnt vmcnt(0)")
    A("s_mov_b64 exec, 1")
    A(f"global_store_dword {v(vT)}, {v(vT2)}, {s(pWS,2)} sc1")
    A("s_mov_b64 exec, -1")
    A("s_setprio 0")
    stamp(7)
    A("s_waitcnt lgkmcnt(0)")
    A("s_barrier")
    A("s_branch L_final")

    A.label("L_mw")
    A.vm = 0
    A("s_setprio 3")
    U0, XV, MV, SV, DV, DF, TV = 8, 40, 72, 76, 80, 84, 96
    vR8, vC8 = 6, 7
    A(f"v_lshrrev_b32 {v(vR8)}, 3, {v(vLANE)}")
    A(f"v_and_b32 {v(vC8)}, 7, {v(vLANE)}")
    A(f"v_mul_u32_u24 {v(vT)}, 896, {v(vR8)}")
    A(f"v_lshl_add_u32 {v(vT)}, {v(vC8)}, 4, {v(vT)}")
    A(f"s_mul_i32 {s(sT1)}, {s(sRB64)}, {64*896}")
    A(f"s_lshl_b32 {s(sT2)}, {s(sCB)}, 7")
    A(f"s_add_u32 {s(sT1)}, {s(sT1)}, {s(sT2)}")
    A(f"v_add_u32 {v(vT)}, {s(sT1)}, {v(vT)}")
    for i in range(8):
        A(f"global_load_dwordx4 {v(XV+4*i,4)}, {v(vT)}, {s(pX,2)}")
        if i < 7:
            A(f"v_add_u32 {v(vT)}, {8*896}, {v(vT)}")
    A(f"v_lshl_add_u32 {v(vT)}, {v(vC8)}, 4, {s(sT2)}")
    A(f"global_load_dwordx4 {v(DV,4)}, {v(vT)}, {s(pDS,2)}")
    A(f"v_or_b32 {v(vT)}, 32, {v(vLANE)}")
    A(f"v_lshlrev_b32 {v(vT)}, 2, {v(vT)}")
    lds_wait(vZ, F_FULL, OPT["h1at"], vT2, sleep=4)
    poll_global(vT, vT2, pDBG, sleep=16)
    stamp(3)
    A(f"v_lshlrev_b32 {v(vT)}, 4, {v(vLANE)}")
    A(f"s_lshl_b32 {s(sT0)}, {s(sCH0)}, 12")
    A(f"s_add_u32 {s(sT1)}, {s(sT0)}, 4096")
    for i in range(8):
        ul = A.vmem(f"buffer_load_dwordx4 {v(U0+4*i,4)}, {v(vT)}, {s(rWS,4)}, {s(sT0+i//4)} offen offset:{1024*(i%4)} sc1")
    A(f"s_lshl_b32 {s(sT2)}, {s(sRB)}, 10")
    A(f"s_add_u32 {s(sT2)}, {s(sT2)}, {OFF_ST}")
    ml = A.vmem(f"buffer_load_dwordx4 {v(MV,4)}, {v(vT)}, {s(rWS,4)}, {s(sT2)} offen sc1")
    A(f"s_lshl_b32 {s(sT2)}, {s(sRB64)}, 9")
    A(f"s_add_u32 {s(sT2)}, {s(sT2)}, {OFF_ST}")
    A(f"v_lshlrev_b32 {v(vT2)}, 3, {v(vLANE)}")
    sl = A.vmem(f"buffer_load_dwordx2 {v(SV,2)}, {v(vT2)}, {s(rWS,4)}, {s(sT2)} offen sc1")
    for d in range(4):
        A(f"v_lshlrev_b32 {v(DF+2*d)}, 16, {v(DV+d)}")
        A(f"v_and_b32 {v(DF+2*d+1)}, 0xffff0000, {v(DV+d)}")
    A.wait_vm(ul)
    for i in range(8):
        A(f"ds_write_b128 {v(vT)}, {v(U0+4*i,4)} offset:{UB+(i//4)*UB_SZ+480+1024*(i%4)}")
    lds_set(vZ, F_URDY, 1, vT3)
    A.wait_vm(sl)
    A(f"v_add_u32 {v(vT)}, {MB}, {v(vT2)}")
    A(f"ds_write2_b32 {v(vT)}, {v(MV)}, {v(MV+2)} offset0:0 offset1:1")
    A(f"ds_write_b32 {v(vZ)}, {v(vT3)} offset:{F_MRDY}")
    A("s_setprio 0")
    stamp(4)
    A(f"v_lshlrev_b32 {v(SV)}, 16, {v(SV)}")
    A(f"v_mul_f32 {v(vT3)}, {v(SV+1)}, {v(SV+1)}")
    A(f"ds_write_b64 {v(vT2)}, {v(SV,2)} offset:{STB}")
    A(f"v_lshlrev_b32 {v(vT)}, 2, {v(vLANE)}")
    A(f"ds_write_b32 {v(vT)}, {v(vT3)} offset:{R2}")
    A(f"v_lshlrev_b32 {v(vT)}, 3, {v(vR8)}")
    ST = 8
    for i in range(8):
        A(f"ds_read_b64 {v(ST+2*i,2)}, {v(vT)} offset:{STB+64*i}")
    A("s_waitcnt lgkmcnt(0)")
    for i in range(8):
        for d in range(4):
            A(f"v_lshlrev_b32 {v(TV+8*i+2*d)}, 16, {v(XV+4*i+d)}")
            A(f"v_and_b32 {v(TV+8*i+2*d+1)}, 0xffff0000, {v(XV+4*i+d)}")
        for k in range(8):
            A(f"v_add_f32 {v(vT3)}, {v(TV+8*i+k)}, {v(ST+2*i)}")
            A(f"v_mul_f32 {v(vT3)}, {v(vT3)}, {v(ST+2*i+1)}")
            A(f"v_fmac_f32 {v(TV+8*i+k)}, {v(DF+k)}, {v(vT3)}")
    YV, YE = 8, 160
    for k in range(64):
        A(f"v_mov_b32 {v(YE+k)}, 0")
    stamp(6)
    lds_wait(vZ, F_KDONE, 1, vT, sleep=4)
    lds_wait(vZ, F_KDONE + 4, 1, vT, sleep=4)
    lds_wait(vZ, F_HRDY, 1, vT, sleep=4)
    stamp(10)
    A("s_setprio 3")
    A(f"s_lshl_b32 {s(sT1)}, {s(sCB)}, 8")
    A(f"s_add_u32 {s(sT1)}, {s(sT1)}, {OFF_FL+4096}")
    A(f"v_lshl_add_u32 {v(vT)}, {v(vLANE)}, 2, {s(sT1)}")
    poll_global(vT, vT2, pWS, sleep=16)
    stamp(7)
    A(f"s_lshl_b32 {s(sT0)}, {s(sCB)}, 18")
    A(f"s_lshl_b32 {s(sT1)}, {s(sRB64)}, 7")
    A(f"s_add_u32 {s(sT0)}, {s(sT0)}, {s(sT1)}")
    A(f"s_add_u32 {s(sT0)}, {s(sT0)}, {OFF_Y}")
    A(f"v_lshlrev_b32 {v(vT)}, 12, {v(vR8)}")
    A(f"v_lshl_add_u32 {v(vT)}, {v(vC8)}, 4, {v(vT)}")
    for i in range(8):
        A(f"buffer_load_dwordx4 {v(YV+4*i,4)}, {v(vT)}, {s(rWS,4)}, {s(sT0)} offen sc1")
        if i < 7:
            A(f"s_add_u32 {s(sT0)}, {s(sT0)}, {8*4096}")
    A(f"v_lshlrev_b32 {v(vT)}, 4, {v(vLANE)}")
    A(f"v_mul_u32_u24 {v(vT2)}, 1040, {v(vC8)}")
    A(f"v_lshl_add_u32 {v(vT2)}, {v(vR8)}, 1, {v(vT2)}")
    A(f"v_mul_u32_u24 {v(vT3)}, {T_PITCH}, {v(vR8)}")
    A(f"v_lshl_add_u32 {v(vT3)}, {v(vC8)}, 5, {v(vT3)}")
    for i in range(8):
        A(f"s_waitcnt vmcnt({7-i})")
        A(f"ds_write_b128 {v(vT)}, {v(YV+4*i,4)} offset:{KM+1040*i}")
    stamp(8)

    def yreads(i):
        for k in range(8):
            A(f"ds_read_u16_d16_hi {v(YE+8*i+k)}, {v(vT2)} offset:{KM+128*k+16*i}")
    yreads(0)
    for i in range(8):
        if i < 7:
            yreads(i + 1)
        A(f"s_waitcnt lgkmcnt({8 if i < 7 else 0})")
        for k in range(8):
            A(f"v_add_f32 {v(TV+8*i+k)}, {v(TV+8*i+k)}, {v(YE+8*i+k)}")
        A(f"ds_write_b128 {v(vT3)}, {v(TV+8*i,4)} offset:{TT+8*T_PITCH*i}")
        A(f"ds_write_b128 {v(vT3)}, {v(TV+8*i+4,4)} offset:{TT+8*T_PITCH*i+16}")
    A("s_waitcnt lgkmcnt(0)")
    stamp(9)
    A("s_setprio 0")
    A("s_barrier")


def main():
    hdr = open("cdna_kernels/" + NAME + ".s.ref").read().split("\n")
    out = [l for l in hdr if l.startswith(";") and "@launch" not in l and "Override" not in l and "grid=ceil" not in l]
    out.append(f"; @launch grid=(256,1,1) block=(512,1,1) lds={LDS_BYTES}")
    out.append('.amdgcn_target "amdgcn-amd-amdhsa--gfx950"')
    out.append(".text")
    out.append(f".globl {NAME}_kernel")
    out.append(".p2align 8")
    out.append(f".type {NAME}_kernel,@function")
    out.append(f"{NAME}_kernel:")
    prologue()
    lwave()
    cwave()
    side()
    kwave()
    final()
    out += A.l
    out.append('.section .rodata,"a"')
    out.append(".p2align 6")
    out.append(f".amdhsa_kernel {NAME}_kernel")
    out.append("  .amdhsa_next_free_vgpr 256")
    out.append("  .amdhsa_next_free_sgpr 102")
    out.append("  .amdhsa_accum_offset 256")
    out.append("  .amdhsa_group_segment_fixed_size 0")
    out.append("  .amdhsa_kernarg_size 112")
    out.append("  .amdhsa_user_sgpr_count 2")
    out.append("  .amdhsa_user_sgpr_kernarg_segment_ptr 1")
    out.append("  .amdhsa_system_sgpr_workgroup_id_x 1")
    out.append(".end_amdhsa_kernel")
    open(sys.argv[1], "w").write("\n".join(out) + "\n")


main()
```

```python
import sys, struct

NAME = "parallel_sum__ssm_conv_s4d__glu_gated_reglu__prompt"
OPT = dict(diag=0, rot1=4, rot2=4, sidepf=1, pfearly=1, prio=0, lprio=3, lag=32, hd=6, nodma=0, nokg=0, kprio=1, nos=0, cvprio=0, psl=8, ktog=1, h1at=8, samek=0, dwg=100, dwave=0, dst=5, amp=10, base=5000)
for a in sys.argv[2:]:
    k, val = a.split("=")
    OPT[k] = int(val)

OFF_U = 0x0
OFF_ST = 0x200000
OFF_FL = 0x220000
OFF_Y = 0x240000
OFF_H = 0x400000
OFF_TS = 0xC00000
WS_BYTES = 0x1000000

KA, KA_SZ = 0, 8320
UB, UB_SZ = 16640, 4576
KM = 25792
TB, TB_SZ = 34112, 2568
TB2, TB2_SZ = 39248, 2816
MB = 44880
SX = 45392
R2 = 47440
STB = 47696
FG = 48208
F_FREE, F_FULL, F_MRDY, F_URDY, F_TB2, F_KDONE, F_SX = FG, FG + 16, FG + 20, FG + 24, FG + 28, FG + 32, FG + 48
F_HRDY = FG + 40
TT, T_PITCH = 0, 272
XR = 49152
WR = 98304
PR = 49152
PR_SZ = 20480
KR_PITCH = 4160
LDS_BYTES = 163840

LOG2E = 0x3fb8aa3b
NLOG2E = 0xbfb8aa3b
INV2PI = 0x3e22f983


def f2u(x):
    return struct.unpack("<I", struct.pack("<f", x))[0]


def v(n, c=1):
    return f"v{n}" if c == 1 else f"v[{n}:{n+c-1}]"


def s(n, c=1):
    return f"s{n}" if c == 1 else f"s[{n}:{n+c-1}]"


class Asm:
    def __init__(self):
        self.l = []
        self.vm = 0
        self.uid = 0

    def __call__(self, t):
        self.l.append("    " + t)

    def label(self, n):
        self.l.append(n + ":")

    def c(self, t):
        self.l.append("    ; " + t)

    def vmem(self, t):
        self(t)
        self.vm += 1
        return self.vm

    def wait_vm(self, ident):
        n = self.vm - ident
        assert 0 <= n <= 63, n
        self(f"s_waitcnt vmcnt({n})")

    def new(self, p):
        self.uid += 1
        return f"L_{p}{self.uid}"


A = Asm()

sWG, sWAVE = 2, 3
pX, pLA, pAI, pCR, pCI, pLDT, pDS = 4, 6, 8, 10, 12, 14, 16
pWG, pWU, pWD, pOUT, pDBG, pWS = 20, 22, 24, 26, 28, 30
rX, rWG, rWU, rWD, rWS = 32, 36, 40, 44, 48
sXCD, sJ, sRB, sFB, sRB64, sCB, sCH0 = 52, 53, 54, 55, 56, 57, 58
sT0, sT1, sT2, sT3, sT4, sT5 = 59, 60, 61, 62, 63, 64
sW1, sW2, sW3, sCNT = 65, 66, 67, 68
sGRP = 87
sDK = 72
sTS = 88
vLANE = 1


def stamp(i):
    if OPT["diag"]:
        A(f"{'s_memtime' if OPT['diag']==2 else 's_memrealtime'} {s(sTS,2)}")
        A("s_waitcnt lgkmcnt(0)")
        A(f"s_mov_b32 {s(sTS+2+i)}, {s(sTS)}")


def stamp_flush(n):
    if not OPT["diag"]:
        return
    if OPT["diag"] == 4:
        sk, lp = A.new("dg"), A.new("dl")
        A(f"s_lshl_b32 {s(sT0)}, {s(sWG)}, 3")
        A(f"s_add_u32 {s(sT0)}, {s(sT0)}, {s(sWAVE)}")
        A(f"s_cmp_lg_u32 {s(sT0)}, {OPT['dwg']*8+OPT['dwave']}")
        A(f"s_cbranch_scc1 {sk}")
        A(f"s_sub_u32 {s(sT0)}, {s(sTS+2+OPT['dst'])}, {s(sTS+2)}")
        A(f"s_min_u32 {s(sT0)}, {s(sT0)}, 10000")
        A(f"s_mul_i32 {s(sT0)}, {s(sT0)}, {OPT['amp']}")
        A(f"s_add_u32 {s(sT0)}, {s(sT0)}, {OPT['base']}")
        A.label(lp)
        A(f"s_memrealtime {s(sTS,2)}")
        A("s_waitcnt lgkmcnt(0)")
        A(f"s_sub_u32 {s(sT1)}, {s(sTS)}, {s(sTS+2)}")
        A(f"s_cmp_lt_u32 {s(sT1)}, {s(sT0)}")
        A(f"s_cbranch_scc1 {lp}")
        A.label(sk)
        return
    if OPT["diag"] == 3:
        sk = A.new("dg")
        A(f"s_lshl_b32 {s(sT0)}, {s(sWG)}, 3")
        A(f"s_add_u32 {s(sT0)}, {s(sT0)}, {s(sWAVE)}")
        A(f"s_cmp_lg_u32 {s(sT0)}, {OPT['dwg']*8+OPT['dwave']}")
        A(f"s_cbranch_scc1 {sk}")
        A("v_mov_b32 v2, 0")
        for i in range(12):
            A(f"s_sub_u32 {s(sT0)}, {s(sTS+2+i)}, {s(sTS+2)}")
            A(f"v_mov_b32 v3, {s(sT0)}")
            A(f"global_store_dword v2, v3, {s(pDBG,2)} offset:{4*i}")
            A("s_nop 1")
        A.label(sk)
        return
    A(f"s_lshl_b32 {s(sT0)}, {s(sWG)}, 3")
    A(f"s_add_u32 {s(sT0)}, {s(sT0)}, {s(sWAVE)}")
    A(f"s_lshl_b32 {s(sT0)}, {s(sT0)}, 6")
    A(f"s_add_u32 {s(sT0)}, {s(sT0)}, {OFF_TS}")
    A(f"v_mov_b32 v2, {s(sT0)}")
    for i in range(12):
        A(f"v_mov_b32 v3, {s(sTS+2+i)}")
        A(f"global_store_dword v2, v3, {s(pWS,2)} offset:{4*i}")
        A("s_nop 1")


def srd(r, p, nbytes):
    A(f"s_mov_b32 {s(r)}, {s(p)}")
    A(f"s_and_b32 {s(r+1)}, {s(p+1)}, 0xffff")
    A(f"s_mov_b32 {s(r+2)}, {nbytes}")
    A(f"s_mov_b32 {s(r+3)}, 0x20000")


SPIN_MAX = 1 << 16


def poll_global(vaddr, vtmp, base, first_issued=False, sleep=1):
    lp, done, chk = A.new("pl"), A.new("pd"), A.new("pc")
    A(f"s_mov_b32 {s(sCNT)}, 0")
    if first_issued:
        A(f"s_branch {chk}")
    A.label(lp)
    A(f"global_load_dword {v(vtmp)}, {v(vaddr)}, {s(base,2)} sc1")
    A.label(chk)
    A("s_waitcnt vmcnt(0)")
    A(f"v_cmp_ne_u32 vcc, 0, {v(vtmp)}")
    A(f"s_add_u32 {s(sCNT)}, {s(sCNT)}, 1")
    A("s_cmp_eq_u64 vcc, exec")
    A(f"s_cbranch_scc1 {done}")
    A(f"s_sleep {sleep}")
    A(f"s_cmp_lt_u32 {s(sCNT)}, {SPIN_MAX}")
    A(f"s_cbranch_scc1 {lp}")
    A.label(done)


def lds_wait(vaddr, off, val, vt, sleep=0):
    lp, done = A.new("sl"), A.new("sd")
    A(f"s_mov_b32 {s(sCNT)}, 0")
    A.label(lp)
    A(f"ds_read_b32 {v(vt)}, {v(vaddr)} offset:{off}")
    A(f"s_add_u32 {s(sCNT)}, {s(sCNT)}, 1")
    A("s_waitcnt lgkmcnt(0)")
    A(f"v_cmp_le_u32 vcc, {val}, {v(vt)}")
    A(f"s_cbranch_vccnz {done}")
    if sleep:
        A(f"s_sleep {sleep}")
    A(f"s_cmp_lt_u32 {s(sCNT)}, {SPIN_MAX*16}")
    A(f"s_cbranch_scc1 {lp}")
    A.label(done)


def lds_set(vaddr, off, val, vt):
    A(f"v_mov_b32 {v(vt)}, {val}")
    A(f"ds_write_b32 {v(vaddr)}, {v(vt)} offset:{off}")


def prologue():
    A(f"s_cmp_ge_u32 {s(sWG)}, 256")
    A("s_cbranch_scc1 L_end")
    A(f"s_load_dwordx16 {s(4,16)}, s[0:1], 0")
    A(f"s_load_dwordx8 {s(20,8)}, s[0:1], 64")
    A(f"s_load_dwordx4 {s(28,4)}, s[0:1], 96")
    if OPT["diag"]:
        A(f"{'s_memtime' if OPT['diag']==2 else 's_memrealtime'} {s(sTS,2)}")
    A("v_lshrrev_b32 v2, 6, v0")
    A(f"v_and_b32 {v(vLANE)}, 63, v0")
    A(f"v_readfirstlane_b32 {s(sWAVE)}, v2")
    A(f"s_and_b32 {s(sXCD)}, {s(sWG)}, 7")
    A(f"s_lshr_b32 {s(sJ)}, {s(sWG)}, 3")
    A(f"s_getpc_b64 {s(sT1,2)}")
    A.label("L_pc")
    A("v_and_b32 v2, 0x1e0, v0")
    A(f"v_add_u32 v2, {s(sJ)}, v2")
    A("v_lshlrev_b32 v2, 7, v2")
    A("v_min_u32 v2, L_end-L_pc, v2")
    A(f"global_load_dword v95, v2, {s(sT1,2)}")
    A(f"s_and_b32 {s(sT0)}, {s(sXCD)}, 3")
    A(f"s_lshr_b32 {s(sT1)}, {s(sXCD)}, 2")
    A(f"s_cmp_lt_u32 {s(sJ)}, 4")
    A("s_cbranch_scc1 L_side")
    A(f"s_sub_u32 {s(sJ)}, {s(sJ)}, 4")
    A(f"s_and_b32 {s(sT2)}, {s(sJ)}, 3")
    A(f"s_lshr_b32 {s(sCB)}, {s(sJ)}, 2")
    A(f"s_lshl_b32 {s(sRB)}, {s(sT0)}, 2")
    A(f"s_add_u32 {s(sRB)}, {s(sRB)}, {s(sT2)}")
    A(f"s_mul_i32 {s(sFB)}, {s(sT1)}, 7")
    A(f"s_add_u32 {s(sFB)}, {s(sFB)}, {s(sCB)}")
    A(f"s_lshl_b32 {s(sRB64)}, {s(sT0)}, 1")
    A(f"s_add_u32 {s(sRB64)}, {s(sRB64)}, {s(sT1)}")
    A(f"s_lshl_b32 {s(sRB64)}, {s(sRB64)}, 2")
    A(f"s_add_u32 {s(sRB64)}, {s(sRB64)}, {s(sT2)}")
    A(f"s_add_u32 {s(sGRP)}, {s(sT2)}, {s(sCB)}")
    A(f"s_and_b32 {s(sGRP)}, {s(sGRP)}, 1")
    A(f"s_cmp_lt_u32 {s(sWAVE)}, 4")
    A("s_cbranch_scc1 L_cw")
    A(f"s_cmp_gt_u32 {s(sWAVE)}, 4")
    A("s_cbranch_scc1 L_kw")


def kernarg_ready():
    A("s_waitcnt lgkmcnt(0)")
    if OPT["diag"]:
        for i in range(12):
            A(f"s_mov_b32 {s(sTS+2+i)}, {s(sTS)}")
        stamp(11)


def side():
    A.label("L_side")
    A.vm = 0
    XB, F, SA = 8, 40, 100
    vR, vQ, vOFF, vT, vT2, vRI = 2, 3, 4, 5, 6, 36
    vM = 38
    sRG, sR64 = sRB, sRB64
    A(f"s_lshl_b32 {s(sR64)}, {s(sT0)}, 1")
    A(f"s_add_u32 {s(sR64)}, {s(sR64)}, {s(sT1)}")
    A(f"s_lshl_b32 {s(sR64)}, {s(sR64)}, 2")
    A(f"s_add_u32 {s(sR64)}, {s(sR64)}, {s(sJ)}")
    A(f"s_lshl_b32 {s(sRG)}, {s(sR64)}, 3")
    A(f"s_add_u32 {s(sRG)}, {s(sRG)}, {s(sWAVE)}")
    A(f"v_lshrrev_b32 {v(vR)}, 3, {v(vLANE)}")
    A(f"v_and_b32 {v(vQ)}, 7, {v(vLANE)}")
    A(f"v_mul_u32_u24 {v(vOFF)}, 896, {v(vR)}")
    A(f"v_lshl_add_u32 {v(vOFF)}, {v(vQ)}, 4, {v(vOFF)}")
    A(f"s_mul_i32 {s(sT2)}, {s(sRG)}, {8*896}")
    A(f"v_add_u32 {v(vOFF)}, {s(sT2)}, {v(vOFF)}")
    kernarg_ready()
    xl = []
    for i in range(7):
        xl.append(A.vmem(f"global_load_dwordx4 {v(XB+4*i,4)}, {v(vOFF)}, {s(pX,2)} offset:{128*i}"))
    srd(rWS, pWS, WS_BYTES)
    skip = A.new("nc")
    A(f"s_cmp_lg_u32 {s(sWG)}, 31")
    A(f"s_cbranch_scc1 {skip}")
    for i in range(4):
        A(f"v_mov_b32 {v(SA+i)}, 0")
    A(f"v_lshlrev_b32 {v(vT2)}, 4, v0")
    A(f"s_mov_b32 {s(sT3)}, {OFF_FL}")
    A(f"buffer_store_dwordx4 {v(SA,4)}, {v(vT2)}, {s(rWS,4)}, {s(sT3)} offen sc1")
    A("s_waitcnt vmcnt(0)")
    A.label(skip)
    C = SA
    A(f"s_mov_b32 {s(sT3)}, 0x3f803f80")
    A(f"v_mov_b32 {v(C)}, 0")
    A(f"v_mov_b32 {v(C+1)}, 0")
    for i in range(7):
        A.wait_vm(xl[i])
        if i == 6:
            stamp(1)
        for d in range(4):
            k = 4 * i + d
            A(f"v_dot2c_f32_bf16 {v(C+k%2)}, {s(sT3)}, {v(XB+k)}")
            A(f"v_lshlrev_b32 {v(F+2*k)}, 16, {v(XB+k)}")
            A(f"v_and_b32 {v(F+2*k+1)}, 0xffff0000, {v(XB+k)}")

    def reduce8():
        for m in ("quad_perm:[1,0,3,2]", "quad_perm:[2,3,0,1]", "row_half_mirror"):
            A("s_nop 1")
            A(f"v_add_f32_dpp {v(C)}, {v(C)}, {v(C)} {m} row_mask:0xf bank_mask:0xf")
    A("s_nop 2")
    A(f"v_add_f32 {v(C)}, {v(C)}, {v(C+1)}")
    reduce8()
    A(f"v_mul_f32 {v(vM)}, {f2u(-1.0/448):#x}, {v(C)}")
    A(f"v_mov_b32 {v(vM+1)}, {v(vM)}")
    for k in range(28):
        A(f"v_pk_add_f32 {v(F+2*k,2)}, {v(F+2*k,2)}, {v(vM,2)}")
    for k in range(28):
        a = C + 2 * (k % 2)
        if k < 2:
            A(f"v_pk_mul_f32 {v(a,2)}, {v(F+2*k,2)}, {v(F+2*k,2)}")
        else:
            A(f"v_pk_fma_f32 {v(a,2)}, {v(F+2*k,2)}, {v(F+2*k,2)}, {v(a,2)}")
    A(f"v_pk_add_f32 {v(C,2)}, {v(C,2)}, {v(C+2,2)}")
    A("s_nop 0")
    A(f"v_add_f32 {v(C)}, {v(C)}, {v(C+1)}")
    reduce8()
    A(f"v_mul_f32 {v(C)}, {f2u(1.0/448):#x}, {v(C)}")
    A(f"v_cvt_pk_bf16_f32 {v(vRI)}, {v(vM)}, {v(vM)}")
    A(f"v_cvt_pk_bf16_f32 {v(C)}, {v(C)}, {v(C)}")
    A(f"v_lshlrev_b32 {v(C)}, 16, {v(C)}")
    A(f"v_add_f32 {v(C)}, {f2u(1e-5):#x}, {v(C)}")
    A(f"v_cvt_pk_bf16_f32 {v(C)}, {v(C)}, {v(C)}")
    A(f"v_lshlrev_b32 {v(C)}, 16, {v(C)}")
    A(f"v_sqrt_f32 {v(C)}, {v(C)}")
    A(f"v_lshlrev_b32 {v(C+2)}, 16, {v(vRI)}")
    A(f"v_cvt_pk_bf16_f32 {v(C)}, {v(C)}, {v(C)}")
    A(f"v_lshlrev_b32 {v(C)}, 16, {v(C)}")
    A(f"v_rcp_f32 {v(vRI+1)}, {v(C)}")
    A(f"v_sub_f32 {v(C+2)}, {v(C+2)}, {v(vM)}")
    A(f"v_mul_f32 {v(C+2)}, {v(C+2)}, {v(vRI+1)}")
    A(f"v_mov_b32 {v(C+3)}, {v(C+2)}")
    A(f"v_mov_b32 {v(C)}, {v(vRI+1)}")
    A(f"v_mov_b32 {v(C+1)}, {v(vRI+1)}")
    A(f"v_lshlrev_b32 {v(vT2)}, 3, {v(vR)}")
    A(f"s_lshl_b32 {s(sT3)}, {s(sRG)}, 6")
    A(f"s_add_u32 {s(sT3)}, {s(sT3)}, {OFF_ST}")
    A(f"s_mov_b32 exec_lo, 0x01010101")
    A(f"s_mov_b32 exec_hi, 0x01010101")
    A.vmem(f"buffer_store_dwordx2 {v(vRI,2)}, {v(vT2)}, {s(rWS,4)}, {s(sT3)} offen sc1")
    A("s_mov_b64 exec, -1")
    A(f"s_mul_i32 {s(sT3)}, {s(sWAVE)}, 7680")
    A(f"v_mul_u32_u24 {v(vT2)}, 960, {v(vR)}")
    A(f"v_lshl_add_u32 {v(vT2)}, {v(vQ)}, 4, {v(vT2)}")
    A(f"v_add_u32 {v(vT2)}, {s(sT3)}, {v(vT2)}")
    for k in range(28):
        A(f"v_pk_fma_f32 {v(F+2*k,2)}, {v(F+2*k,2)}, {v(C,2)}, {v(C+2,2)}")
    for i in range(7):
        for d in range(4):
            k = 4 * i + d
            A(f"v_cvt_pk_bf16_f32 {v(XB+k)}, {v(F+2*k)}, {v(F+2*k+1)}")
        A(f"ds_write_b128 {v(vT2)}, {v(XB+4*i,4)} offset:{128*i}")
    A(f"v_bfe_u32 {v(vT2)}, {v(vLANE)}, 2, 2")
    A(f"v_mul_u32_u24 {v(vT2)}, 960, {v(vT2)}")
    A(f"v_lshrrev_b32 {v(vOFF)}, 4, {v(vLANE)}")
    A(f"v_lshl_add_u32 {v(vT2)}, {v(vOFF)}, 5, {v(vT2)}")
    A(f"v_and_b32 {v(vOFF)}, 3, {v(vLANE)}")
    A(f"v_lshl_add_u32 {v(vT2)}, {v(vOFF)}, 3, {v(vT2)}")
    A(f"v_add_u32 {v(vT2)}, {s(sT3)}, {v(vT2)}")
    for i in range(7):
        A(f"ds_read_b64_tr_b16 {v(F+4*i,2)}, {v(vT2)} offset:{128*i}")
        A(f"ds_read_b64_tr_b16 {v(F+4*i+2,2)}, {v(vT2)} offset:{128*i+3840}")
    L2B = 65536
    A(f"s_lshl_b32 {s(sT3)}, {s(sWAVE)}, 4")
    A(f"s_add_u32 {s(sT3)}, {s(sT3)}, {L2B}")
    A(f"v_mul_u32_u24 {v(vT2)}, 144, {v(vLANE)}")
    A(f"v_add_u32 {v(vT2)}, {s(sT3)}, {v(vT2)}")
    for i in range(7):
        A(f"s_waitcnt lgkmcnt({min(15, 12-2*i+i)})")
        A(f"ds_write_b128 {v(vT2)}, {v(F+4*i,4)} offset:{64*144*i}")
    A(f"s_mul_i32 {s(sT3)}, {s(sWAVE)}, {56*144}")
    A(f"s_add_u32 {s(sT3)}, {s(sT3)}, {L2B}")
    A(f"v_mul_u32_u24 {v(vT2)}, 144, {v(vR)}")
    A(f"v_lshl_add_u32 {v(vT2)}, {v(vQ)}, 4, {v(vT2)}")
    A(f"v_add_u32 {v(vT2)}, {s(sT3)}, {v(vT2)}")
    A(f"v_lshlrev_b32 {v(vOFF)}, 12, {v(vR)}")
    A(f"v_lshl_add_u32 {v(vOFF)}, {v(vQ)}, 4, {v(vOFF)}")
    A(f"s_mul_i32 {s(sT3)}, {s(sWAVE)}, {56*4096}")
    A(f"s_lshl_b32 {s(sT4)}, {s(sR64)}, 7")
    A(f"s_add_u32 {s(sT3)}, {s(sT3)}, {s(sT4)}")
    A("s_waitcnt lgkmcnt(0)")
    A("s_barrier")
    for i in range(7):
        A(f"ds_read_b128 {v(XB+4*i,4)}, {v(vT2)} offset:{8*144*i}")
    for i in range(7):
        A(f"s_waitcnt lgkmcnt({6-i})")
        A.vmem(f"buffer_store_dwordx4 {v(XB+4*i,4)}, {v(vOFF)}, {s(rWS,4)}, {s(sT3)} offen sc1")
        if i < 6:
            A(f"s_add_u32 {s(sT3)}, {s(sT3)}, {8*4096}")
    stamp(2)
    A("s_waitcnt vmcnt(0)")
    A("s_barrier")
    stamp(3)
    skip = A.new("nf")
    A(f"s_cmp_lg_u32 {s(sWAVE)}, 0")
    A(f"s_cbranch_scc1 {skip}")
    A(f"s_lshl_b32 {s(sT3)}, {s(sWG)}, 2")
    A(f"v_mov_b32 {v(vT2)}, {s(sT3)}")
    A(f"v_mov_b32 {v(vT)}, 1")
    A("s_mov_b64 exec, 1")
    A(f"global_store_dword {v(vT2)}, {v(vT)}, {s(pDBG,2)} offset:128 sc1")
    A("s_mov_b64 exec, -1")
    A.label(skip)
    if OPT["sidepf"]:
        A(f"s_mul_i32 {s(sT3)}, {s(sJ)}, {448*896}")
        A(f"v_lshlrev_b32 {v(vT)}, 7, v0")
        A(f"v_min_u32 {v(vT)}, {447*128}, {v(vT)}")
        A(f"v_add_u32 {v(vT)}, {s(sT3)}, {v(vT)}")
        order = []
        for g in range(7):
            for c in (g, (g + OPT["rot2"]) % 7):
                if c not in order:
                    order.append(c)
        for n, g in enumerate(order[:OPT["sidepf"] if OPT["sidepf"] > 1 else 7]):
            A(f"v_add_u32 {v(vT2)}, {g*64*896}, {v(vT)}")
            A(f"global_load_dword {v(F+n)}, {v(vT2)}, {s(pWD,2)}")
        A("s_waitcnt vmcnt(0)")
        stamp(4)
    stamp_flush(4)
    A("s_endpgm")


def final():
    A.label("L_final")
    A("s_barrier")
    vRow, vC8, vP, vT, vR2, vO = 2, 3, 4, 5, 6, 7
    P, T = 8, 48
    A(f"v_lshrrev_b32 {v(vRow)}, 3, v0")
    A(f"v_and_b32 {v(vC8)}, 7, v0")
    A(f"v_lshrrev_b32 {v(vP)}, 5, {v(vRow)}")
    A(f"v_mul_u32_u24 {v(vP)}, 10240, {v(vP)}")
    A(f"v_lshrrev_b32 {v(vT)}, 2, {v(vC8)}")
    A(f"v_mul_u32_u24 {v(vT)}, 5120, {v(vT)}")
    A(f"v_add_u32 {v(vP)}, {v(vP)}, {v(vT)}")
    A(f"v_bfe_u32 {v(vT)}, {v(vRow)}, 3, 2")
    A(f"v_mul_u32_u24 {v(vT)}, 1280, {v(vT)}")
    A(f"v_add_u32 {v(vP)}, {v(vP)}, {v(vT)}")
    A(f"v_and_b32 {v(vT)}, 1, {v(vRow)}")
    A(f"v_mul_u32_u24 {v(vT)}, 272, {v(vT)}")
    A(f"v_add_u32 {v(vP)}, {v(vP)}, {v(vT)}")
    A(f"v_bfe_u32 {v(vT)}, {v(vRow)}, 1, 1")
    A(f"v_mul_u32_u24 {v(vT)}, 640, {v(vT)}")
    A(f"v_add_u32 {v(vP)}, {v(vP)}, {v(vT)}")
    A(f"v_bfe_u32 {v(vT)}, {v(vRow)}, 2, 1")
    A(f"v_lshl_add_u32 {v(vP)}, {v(vT)}, 7, {v(vP)}")
    A(f"v_and_b32 {v(vT)}, 3, {v(vC8)}")
    A(f"v_lshl_add_u32 {v(vP)}, {v(vT)}, 5, {v(vP)}")
    A(f"v_add_u32 {v(vP)}, {PR}, {v(vP)}")
    for q in range(4):
        A(f"ds_read_b128 {v(P+8*q,4)}, {v(vP)} offset:{q*PR_SZ}")
        A(f"ds_read_b128 {v(P+8*q+4,4)}, {v(vP)} offset:{q*PR_SZ+16}")
    A(f"v_mul_u32_u24 {v(vO)}, {T_PITCH}, {v(vRow)}")
    A(f"v_lshl_add_u32 {v(vO)}, {v(vC8)}, 5, {v(vO)}")
    A(f"ds_read_b128 {v(T,4)}, {v(vO)} offset:{TT}")
    A(f"ds_read_b128 {v(T+4,4)}, {v(vO)} offset:{TT+16}")
    A(f"v_lshlrev_b32 {v(vT)}, 2, {v(vRow)}")
    A(f"ds_read_b32 {v(vR2)}, {v(vT)} offset:{R2}")
    A(f"v_mul_u32_u24 {v(vO)}, 896, {v(vRow)}")
    A(f"v_lshl_add_u32 {v(vO)}, {v(vC8)}, 4, {v(vO)}")
    A(f"s_mul_i32 {s(sT0)}, {s(sRB64)}, {64*896}")
    A(f"s_lshl_b32 {s(sT1)}, {s(sCB)}, 7")
    A(f"s_add_u32 {s(sT0)}, {s(sT0)}, {s(sT1)}")
    A(f"v_add_u32 {v(vO)}, {s(sT0)}, {v(vO)}")
    A("s_waitcnt lgkmcnt(7)")
    for e in range(8):
        A(f"v_add_f32 {v(P+e)}, {v(P+e)}, {v(P+8+e)}")
    A("s_waitcnt lgkmcnt(3)")
    for e in range(8):
        A(f"v_add_f32 {v(P+16+e)}, {v(P+16+e)}, {v(P+24+e)}")
    for e in range(8):
        A(f"v_add_f32 {v(P+e)}, {v(P+e)}, {v(P+16+e)}")
    A("s_waitcnt lgkmcnt(0)")
    for e in range(8):
        A(f"v_fmac_f32 {v(T+e)}, {v(P+e)}, {v(vR2)}")
    for e in range(4):
        A(f"v_cvt_pk_bf16_f32 {v(P+e)}, {v(T+2*e)}, {v(T+2*e+1)}")
    A(f"global_store_dwordx4 {v(vO)}, {v(P,4)}, {s(pOUT,2)}")
    if OPT["diag"]:
        A("s_waitcnt vmcnt(0)")
    stamp(5)
    stamp_flush(6)
    A.label("L_end")
    A("s_endpgm")


WD_SLOT = [XR + 16384, WR + 2 * 16384, WR + 3 * 16384, XR + 2 * 16384, WR, WR + 16384, XR]
WD_FREE = [10, 11, 12, 12, 13, 14, 14]


def lwave():
    A.vm = 0
    vW, vX, vD, vT, vT2, vZ, vF = 4, 8, 12, 2, 3, 16, 20
    sWoff, sXoff, sDoff, sFREE = 69, 70, 71, 72
    A(f"v_lshrrev_b32 {v(vT)}, 4, {v(vLANE)}")
    A(f"v_mul_u32_u24 {v(vW)}, 3584, {v(vT)}")
    A(f"v_bfe_u32 {v(vT2)}, {v(vLANE)}, 2, 2")
    A(f"v_xor_b32 {v(vT2)}, {v(vT2)}, {v(vT)}")
    A(f"v_lshl_add_u32 {v(vW)}, {v(vT2)}, 6, {v(vW)}")
    A(f"v_and_b32 {v(vZ)}, 3, {v(vLANE)}")
    A(f"v_lshl_add_u32 {v(vW)}, {v(vZ)}, 4, {v(vW)}")
    A(f"s_lshl_b32 {s(sT1)}, {s(sFB)}, 8")
    A(f"v_add_u32 {v(vW)}, {s(sT1)}, {v(vW)}")
    for k in range(1, 4):
        A(f"v_add_u32 {v(vW+k)}, {k*(4*3584-1024)}, {v(vW)}")
    A(f"v_and_b32 {v(vT2)}, 7, {v(vLANE)}")
    A(f"v_xor_b32 {v(vT2)}, {v(vT2)}, {v(vT)}")
    A(f"v_lshrrev_b32 {v(vD)}, 3, {v(vLANE)}")
    A(f"v_mul_u32_u24 {v(vD)}, 896, {v(vD)}")
    A(f"s_mul_i32 {s(sT0)}, {s(sRB)}, {128*896}")
    A(f"v_add_u32 {v(vX+1)}, {s(sT0)}, {v(vD)}")
    A(f"v_lshl_add_u32 {v(vX)}, {v(vT2)}, 4, {v(vX+1)}")
    A(f"v_xor_b32 {v(vT2)}, 4, {v(vT2)}")
    A(f"v_lshl_add_u32 {v(vX+1)}, {v(vT2)}, 4, {v(vX+1)}")
    A(f"v_add_u32 {v(vX+2)}, {2*(7168-1024)}, {v(vX)}")
    A(f"v_add_u32 {v(vX+3)}, {3*(7168-1024)}, {v(vX+1)}")
    A(f"v_add_u32 {v(vX+1)}, {7168-1024}, {v(vX+1)}")
    A(f"s_mul_i32 {s(sWoff)}, {s(sGRP)}, {OPT['rot1']*64*3584}")
    A(f"s_mul_i32 {s(sXoff)}, {s(sGRP)}, {OPT['rot1']*128}")
    if OPT["lprio"]:
        A(f"s_setprio {OPT['lprio']}")
    kernarg_ready()
    srd(rWG, pWG, 448 * 1792 * 2)
    srd(rWU, pWU, 448 * 1792 * 2)
    srd(rX, pX, 2048 * 448 * 2)

    def quad(vb, rs, lds, sbase, add):
        A(f"s_mov_b32 m0, {lds}")
        if add:
            A(f"s_add_u32 {s(sT0)}, {s(sbase)}, {add}")
        else:
            A("s_nop 0")
        for k in range(4):
            if OPT["nodma"]:
                A.vmem("s_nop 3")
            else:
                A.vmem(f"buffer_load_dwordx4 {v(vb+k)}, {s(rs,4)}, {s(sT0 if add else sbase)} offen offset:{1024*k} lds")

    def adv(sr, inc, wrap):
        if OPT["samek"] == 1:
            return
        if OPT["samek"] == 2:
            A(f"s_xor_b32 {s(sr)}, {s(sr)}, {1 << (inc.bit_length() + 1) if inc > 128 else 256}")
            return
        A(f"s_add_u32 {s(sr)}, {s(sr)}, {inc}")
        if wrap:
            A(f"s_cmp_eq_u32 {s(sr)}, {wrap}")
            A(f"s_cselect_b32 {s(sr)}, 0, {s(sr)}")

    prog = []

    def item_w(c, full):
        for n, (i, mat) in enumerate(((0, 0), (0, 1), (1, 0), (1, 1))):
            def f(i=i, mat=mat, n=n):
                quad(vW, rWU if mat else rWG, WR + (c % 4) * 16384 + mat * 8192 + i * 4096, sWoff, i * 16 * 3584)
                if n == 3:
                    adv(sWoff, 32 * 3584, 448 * 3584 if c % 2 else 0)
            prog.append((c - 3, f, full if n == 3 else None))

    def item_x(xc, half, full=None):
        for m in (2 * half, 2 * half + 1):
            def f(m=m):
                quad(vX, rX, XR + (xc % 3) * 16384 + m * 4096, sXoff, m * 32 * 896)
                if m == 3:
                    adv(sXoff, 128, 896)
            prog.append((2 * xc - 4, f, full if m % 2 else None))

    def item_d(p):
        for q in range(4):
            def f(q=q):
                quad(vD, rWD, WD_SLOT[p % 7] + q * 4096, sDoff, q * 448 * 896)
                if q == 3:
                    adv(sDoff, 32 * 896, 448 * 896 if p % 2 else 0)
            prog.append((WD_FREE[p] if p < 7 else C_FREE[p - 7], f, 15 + p if q == 3 else None))

    item_w(0, None); item_x(0, 0); item_x(0, 1, 1)
    for c in range(1, 14):
        if c % 2:
            item_w(c, c + 1)
            if c < 13:
                item_x((c + 1) // 2, 0)
        else:
            item_x(c // 2, 1)
            item_w(c, c + 1)
    for p in range(14):
        item_d(p)

    pending = []
    known = 0

    def signal(upto_val=None, lag=None):
        last = None
        while pending and ((upto_val is not None and pending[0][1] <= upto_val) or
                           (lag is not None and A.vm - pending[0][0] >= lag)):
            last = pending.pop(0)
        if last:
            A.wait_vm(last[0])
            lds_set(vZ, F_FULL, last[1], vT)

    stamp(6)
    for n, (need, f, full) in enumerate(prog):
        if n == 8:
            srd(rWD, pWD, 448 * 1792 * 2)
            A(f"v_lshrrev_b32 {v(vT2)}, 2, {v(vLANE)}")
            A(f"v_xor_b32 {v(vT)}, {v(vT)}, {v(vT2)}")
            A(f"v_and_b32 {v(vT)}, 1, {v(vT)}")
            A(f"v_lshl_add_u32 {v(vD)}, {v(vT)}, 6, {v(vD)}")
            A(f"v_lshl_add_u32 {v(vD)}, {v(vZ)}, 4, {v(vD)}")
            A(f"s_lshl_b32 {s(sT1)}, {s(sCB)}, 7")
            A(f"v_add_u32 {v(vD)}, {s(sT1)}, {v(vD)}")
            for k in range(1, 4):
                A(f"v_add_u32 {v(vD+k)}, {k*(7168-1024)}, {v(vD)}")
            A(f"s_mul_i32 {s(sDoff)}, {s(sGRP)}, {OPT['rot2']*64*896}")
            A(f"v_mov_b32 {v(vZ)}, 0")
            A(f"s_mov_b32 {s(sFREE)}, 0")
            A("s_barrier")
            stamp(1)
        if need > known:
            known = need
            if need == 18:
                for val in sorted(set(x[1] for x in pending)):
                    signal(upto_val=val)
            else:
                signal(upto_val=need + 1)
            lp, ok = A.new("fl"), A.new("fo")
            A(f"s_cmp_ge_u32 {s(sFREE)}, {need}")
            A(f"s_cbranch_scc1 {ok}")
            A(f"s_mov_b32 {s(sCNT)}, 0")
            A.label(lp)
            A(f"ds_read_b128 {v(vF,4)}, {v(vZ)} offset:{F_FREE}")
            A(f"s_add_u32 {s(sCNT)}, {s(sCNT)}, 1")
            A("s_waitcnt lgkmcnt(0)")
            A(f"v_min_u32 {v(vF)}, {v(vF)}, {v(vF+1)}")
            A(f"v_min3_u32 {v(vF)}, {v(vF)}, {v(vF+2)}, {v(vF+3)}")
            A(f"s_cmp_lt_u32 {s(sCNT)}, {SPIN_MAX*16}")
            A(f"v_readfirstlane_b32 {s(sFREE)}, {v(vF)}")
            A(f"s_cbranch_scc0 {ok}")
            A(f"s_cmp_lt_u32 {s(sFREE)}, {need}")
            A(f"s_cbranch_scc1 {lp}")
            A.label(ok)
        f()
        if full:
            pending.append((A.vm, full))
            if full in (4, 8, 14, 21):
                stamp({4: 7, 8: 8, 14: 2, 21: 3}[full])
        if n >= 8:
            signal(lag=OPT["lag"])
        if full == 26:
            A(f"v_min_u32 {v(vF+4)}, 27, {v(vLANE)}")
            A(f"s_lshl_b32 {s(sT1)}, {s(sRB64)}, 7")
            A(f"s_add_u32 {s(sT1)}, {s(sT1)}, {OFF_FL}")
            A(f"v_lshl_add_u32 {v(vF+4)}, {v(vF+4)}, 2, {s(sT1)}")
            pl = A.vmem(f"global_load_dword {v(vF+5)}, {v(vF+4)}, {s(pWS,2)} sc1")
    stamp(4)
    ok = A.new("h2")
    A.wait_vm(pl)
    A(f"v_cmp_ne_u32 vcc, 0, {v(vF+5)}")
    A("s_nop 0")
    A("s_cmp_eq_u64 vcc, exec")
    A(f"s_cbranch_scc1 {ok}")
    poll_global(vF + 4, vF + 5, pWS, sleep=OPT["psl"])
    A.label(ok)
    lds_set(vZ, F_HRDY, 1, vT)
    stamp(10)
    while pending:
        signal(upto_val=pending[0][1])
    stamp(9)
    A("s_setprio 0")
    A("s_waitcnt lgkmcnt(0)")
    A("s_barrier")
    A("s_branch L_final")


C_FREE = [18, 18, 18, 18, 21, 21, 21]


def cwave():
    A.label("L_cw")
    A.vm = 0
    vXA, vWA, vL16, vT, vT2, vFL = 2, 6, 8, 9, 10, 11
    vZ, vFA, vFV, vFW = 12, 13, 14, 15
    FR = 16
    SM = 64
    SEL, SAC = 88, 96
    ACC = 128
    sRH, sFH = sW1, sW2
    sW4K, sFULL = 76, 77

    def xf(st, rbk): return FR + 24 * st + 4 * rbk
    def wf(st, mat, j): return FR + 24 * st + 8 + 4 * (2 * mat + j)
    def acc(mat, j, rbk): return ACC + 16 * ((mat * 2 + j) * 2 + rbk)

    A(f"s_and_b32 {s(sRH)}, {s(sWAVE)}, 1")
    A(f"s_lshr_b32 {s(sFH)}, {s(sWAVE)}, 1")
    A(f"v_and_b32 {v(vT)}, 31, {v(vLANE)}")
    A(f"s_lshl_b32 {s(sT0)}, {s(sRH)}, 13")
    A(f"s_add_u32 {s(sT0)}, {s(sT0)}, {XR}")
    A(f"v_lshl_add_u32 {v(vT)}, {v(vT)}, 7, {s(sT0)}")
    A(f"v_bfe_u32 {v(vT2)}, {v(vLANE)}, 1, 3")
    A(f"v_lshrrev_b32 {v(vFL)}, 5, {v(vLANE)}")
    A(f"v_xor_b32 {v(vT2)}, {v(vT2)}, {v(vFL)}")
    for k in range(4):
        A(f"v_xor_b32 {v(vXA+k)}, {2*k}, {v(vT2)}")
        A(f"v_lshl_add_u32 {v(vXA+k)}, {v(vXA+k)}, 4, {v(vT)}")
    A(f"v_bfe_u32 {v(vT2)}, {v(vLANE)}, 2, 2")
    A(f"v_lshl_add_u32 {v(vT)}, {v(vFL)}, 3, {v(vT2)}")
    A(f"v_lshlrev_b32 {v(vT)}, 8, {v(vT)}")
    A(f"v_bfe_u32 {v(vL16)}, {v(vLANE)}, 4, 1")
    A(f"v_lshl_add_u32 {v(vT)}, {v(vL16)}, 5, {v(vT)}")
    A(f"v_and_b32 {v(vL16)}, 3, {v(vLANE)}")
    A(f"v_lshl_add_u32 {v(vT)}, {v(vL16)}, 3, {v(vT)}")
    A(f"v_add_u32 {v(vT)}, {WR}, {v(vT)}")
    A(f"v_xor_b32 {v(vT2)}, {s(sWAVE)}, {v(vT2)}")
    A(f"v_lshl_add_u32 {v(vWA)}, {v(vT2)}, 6, {v(vT)}")
    A(f"v_xor_b32 {v(vWA+1)}, 64, {v(vWA)}")
    A(f"s_lshl_b32 {s(sW4K)}, {s(sWAVE)}, 12")
    A(f"v_lshlrev_b32 {v(vL16)}, 4, {v(vLANE)}")
    A(f"v_mov_b32 {v(vZ)}, 0")
    A(f"s_lshl_b32 {s(sT0)}, {s(sWAVE)}, 2")
    A(f"v_mov_b32 {v(vFA)}, {s(sT0)}")
    for i in range(28):
        A(f"v_mov_b32 {v(SM+i)}, 0")
    A("s_mov_b32 exec_lo, 0x00100001")
    A("s_mov_b32 exec_hi, 0x00100001")
    for i in range(4):
        A(f"v_mov_b32 {v(SEL+i)}, 0x3f803f80")
    A("s_mov_b64 exec, -1")
    kernarg_ready()
    srd(rWS, pWS, WS_BYTES)
    if OPT["prio"]:
        A(f"s_setprio {OPT['prio']}")

    def reads(st, c, ks):
        xs = ((c // 2) % 3) * 16384
        k4 = (c % 2) * 2 + ks
        ws_ = (c % 4) * 16384 + ks * 4096
        r = []
        r.append(f"ds_read_b128 {v(xf(st,0),4)}, {v(vXA+k4)} offset:{xs}")
        for j in range(2):
            for mat in range(2):
                for h in range(2):
                    r.append(f"ds_read_b64_tr_b16 {v(wf(st,mat,j)+2*h,2)}, {v(vWA+j)} offset:{ws_+mat*8192+h*1024}")
            if j == 0:
                r.append(f"ds_read_b128 {v(xf(st,1),4)}, {v(vXA+k4)} offset:{xs+4096}")
        return r

    def mf(st, first):
        m = []
        for j in range(2):
            for rbk in range(2):
                for mat in range(2):
                    a = acc(mat, j, rbk)
                    cc = "0" if first else v(a, 16)
                    m.append(f"v_mfma_f32_32x32x16_bf16 {v(a,16)}, {v(wf(st,mat,j),4)}, {v(xf(st,rbk),4)}, {cc}")
        return m

    def smf(st, first):
        return [f"v_mfma_f32_16x16x32_bf16 {v(SAC+4*mat,4)}, {v(SEL,4)}, {v(wf(st,mat,0),4)}, {'0' if first else v(SAC+4*mat,4)}"
                for mat in range(2)]

    def mix(st, first):
        b, sm = mf(st, first), smf(st, first)
        if OPT["nos"]:
            sm = ["s_nop 0", "s_nop 0"]
        return b[:5] + sm + b[5:]

    A("s_barrier")
    lds_wait(vZ, F_FULL, 1, vT, sleep=1)
    stamp(1)
    for r in reads(0, 0, 0):
        A(r)
    A("s_waitcnt lgkmcnt(0)")
    for c in range(14):
        ms = mix(0, c == 0)
        rs = reads(1, c, 1)
        for i, m in enumerate(ms):
            if i == 9:
                A("s_waitcnt lgkmcnt(0)")
                if c < 13:
                    A(f"v_readfirstlane_b32 {s(sFULL)}, {v(vFV)}")
            A(m)
            for _ in range(2):
                if rs:
                    A(rs.pop(0))
            if i == 4:
                A(f"v_mov_b32 {v(vFW)}, {c+1}")
            if i == 5:
                A(f"ds_write_b32 {v(vFA)}, {v(vFW)} offset:{F_FREE}")
            if i == 5 and c < 13:
                A(f"ds_read_b32 {v(vFV)}, {v(vZ)} offset:{F_FULL}")
        if c == 13:
            break
        ok = A.new("cf")
        A(f"s_cmp_ge_u32 {s(sFULL)}, {c+2}")
        A(f"s_cbranch_scc1 {ok}")
        lds_wait(vZ, F_FULL, c + 2, vT)
        A.label(ok)
        if c in (2, 5, 8):
            stamp({2: 8, 5: 9, 8: 10}[c])
        ms = mix(1, False)
        rs = reads(0, c + 1, 0)
        for i, m in enumerate(ms):
            if i == 9:
                A("s_waitcnt lgkmcnt(0)")
            A(m)
            for _ in range(2):
                if rs:
                    A(rs.pop(0))
    ms = mf(1, False)
    for m in smf(1, False) + ms[:3]:
        A(m)
    A(f"s_lshl_b32 {s(sT0)}, {s(sWAVE)}, 9")
    A(f"v_lshrrev_b32 {v(vT)}, 2, {v(vL16)}")
    A(f"v_add_u32 {v(vT)}, {s(sT0)}, {v(vT)}")
    A(f"v_mov_b32 {v(vFW)}, 1")
    A("s_nop 1")
    for mat in range(2):
        d = SM + 8 * mat
        A(f"v_cvt_pk_bf16_f32 {v(d)}, {v(SAC+4*mat)}, {v(SAC+4*mat)}")
        A(f"v_lshlrev_b32 {v(d)}, 16, {v(d)}")
        A(f"v_sub_f32 {v(vT2)}, {v(SAC+4*mat)}, {v(d)}")
        A(f"v_cvt_pk_bf16_f32 {v(d)}, {v(d)}, {v(vT2)}")
        A(f"ds_write_b32 {v(vT)}, {v(d)} offset:{SX+256*mat}")
        if mat == 0:
            A(ms[3])
    A(f"ds_write_b32 {v(vFA)}, {v(vFW)} offset:{F_SX}")
    A(ms[4])
    A(f"v_xor_b32 {v(vT)}, 512, {v(vT)}")
    A(f"v_xor_b32 {v(vFL)}, 4, {v(vFA)}")
    A(f"v_and_b32 {v(vT2)}, 31, {v(vLANE)}")
    A(f"s_lshl_b32 {s(sT0)}, {s(sRH)}, 8")
    A(f"v_lshl_add_u32 {v(vT2)}, {v(vT2)}, 2, {s(sT0)}")
    A(ms[5])
    again, ok = A.new("sx"), A.new("so")
    A(f"s_mov_b32 {s(sCNT)}, 0")

    def sm_reads():
        A(f"ds_read_b32 {v(vFV)}, {v(vFL)} offset:{F_SX}")
        A(f"ds_read_b32 {v(vFW)}, {v(vZ)} offset:{F_MRDY}")
        for mat in range(2):
            A(f"ds_read_b32 {v(SM+8*mat+4)}, {v(vT)} offset:{SX+256*mat}")
        for rbk in range(2):
            A(f"ds_read_b32 {v(SM+16+4*rbk)}, {v(vT2)} offset:{MB+128*rbk}")
    sm_reads()
    A(ms[6])
    A(ms[7])
    A.label(again)
    A("s_waitcnt lgkmcnt(0)")
    A(f"v_and_b32 {v(vFV)}, {v(vFV)}, {v(vFW)}")
    A(f"v_cmp_ne_u32 vcc, 0, {v(vFV)}")
    A(f"s_cbranch_vccnz {ok}")
    sm_reads()
    A(f"s_add_u32 {s(sCNT)}, {s(sCNT)}, 1")
    A(f"s_cmp_lt_u32 {s(sCNT)}, {SPIN_MAX*16}")
    A(f"s_cbranch_scc1 {again}")
    A("s_waitcnt lgkmcnt(0)")
    A.label(ok)
    for j in range(2):
        for rbk in range(2):
            for mat in range(2):
                a = acc(mat, j, rbk)
                A(f"v_mfma_f32_32x32x16_bf16 {v(a,16)}, {v(SM+4*(2*mat+j),4)}, {v(SM+16+4*rbk,4)}, {v(a,16)}")
    stamp(2)
    sHA = 78
    A(f"s_lshl_b32 {s(sT0)}, {s(sRB)}, 1")
    A(f"s_add_u32 {s(sT0)}, {s(sT0)}, {s(sRH)}")
    A(f"s_lshl_b32 {s(sT1)}, {s(sFB)}, 1")
    A(f"s_add_u32 {s(sT1)}, {s(sT1)}, {s(sFH)}")
    A(f"s_mul_i32 {s(sT2)}, {s(sT0)}, {224*1024}")
    A(f"s_lshl_b32 {s(sT3)}, {s(sT1)}, 12")
    A(f"s_add_u32 {s(sT2)}, {s(sT2)}, {s(sT3)}")
    A(f"s_add_u32 {s(sT2)}, {s(sT2)}, {OFF_H}")
    A(f"s_lshl_b32 {s(sT3)}, {s(sRH)}, 11")
    A(f"s_add_u32 {s(sHA)}, {s(sT2)}, {s(sT3)}")
    A(f"s_xor_b32 {s(sHA+1)}, {s(sHA)}, 2048")
    A(f"s_add_u32 {s(sHA+2)}, {s(sHA)}, {112*1024}")
    A(f"s_add_u32 {s(sHA+3)}, {s(sHA+1)}, {112*1024}")
    A(f"s_lshl_b32 {s(sT4)}, {s(sT0)}, 7")
    A(f"s_lshl_b32 {s(sT1)}, {s(sT1)}, 2")
    A(f"s_add_u32 {s(sT4)}, {s(sT4)}, {s(sT1)}")
    A(f"s_add_u32 {s(sT4)}, {s(sT4)}, {OFF_FL}")
    for j in range(2):
        for rbk in range(2):
            g_, u_ = acc(0, j, rbk), acc(1, j, rbk)
            for ab in range(2):
                b = 8 * ab
                for e in range(8):
                    A(f"v_max_f32 {v(g_+b+e)}, 0, {v(g_+b+e)}")
                for e in range(8):
                    A(f"v_mul_f32 {v(g_+b+e)}, {v(g_+b+e)}, {v(u_+b+e)}")
                for e in range(4):
                    A(f"v_cvt_pk_bf16_f32 {v(g_+b+e)}, {v(g_+b+2*e)}, {v(g_+b+2*e+1)}")
                hs = A.vmem(f"buffer_store_dwordx4 {v(g_+b,4)}, {v(vL16)}, {s(rWS,4)}, {s(sHA+2*rbk+j)} offen offset:{ab*1024} sc1")
    stamp(6)
    vDA = 2
    A(f"v_bfe_u32 {v(vT2)}, {v(vLANE)}, 2, 2")
    A(f"v_lshrrev_b32 {v(vT)}, 5, {v(vLANE)}")
    A(f"v_lshl_add_u32 {v(vT)}, {v(vT)}, 2, {v(vT2)}")
    A(f"v_lshl_add_u32 {v(vT)}, {v(vT)}, 7, {s(sW4K)}")
    A(f"v_bfe_u32 {v(vT2)}, {v(vLANE)}, 4, 1")
    A(f"v_lshl_add_u32 {v(vT)}, {v(vT2)}, 5, {v(vT)}")
    A(f"v_and_b32 {v(vT2)}, 3, {v(vLANE)}")
    A(f"v_lshl_add_u32 {v(vT)}, {v(vT2)}, 3, {v(vT)}")
    A(f"v_bfe_u32 {v(vT2)}, {v(vLANE)}, 3, 1")
    A(f"v_lshl_add_u32 {v(vT)}, {v(vT2)}, 6, {v(vT)}")
    A(f"v_add_u32 {v(vDA)}, {XR}, {v(vT)}")
    A(f"v_xor_b32 {v(vDA+1)}, 64, {v(vDA)}")
    A(f"v_add_u32 {v(vDA+2)}, {WR}, {v(vT)}")
    A(f"v_xor_b32 {v(vDA+3)}, 64, {v(vDA+2)}")
    ACC2, HB, W2 = 64, 16, 128
    HD = OPT["hd"]

    def w1(pos):
        return 192 + 8 * pos if pos < 8 else 144 + 8 * (pos - 8)

    def wd_reads(dst, pos):
        sl = WD_SLOT[(pos % 14) // 2]
        hi = sl >= WR
        off = sl - (WR if hi else XR) + (pos % 2) * 2048
        return [f"ds_read_b64_tr_b16 {v(dst+4*cj+2*h,2)}, {v(vDA+2*hi+cj)} offset:{off+h*1024}"
                for cj in range(2) for h in range(2)]
    lds_wait(vZ, F_FULL, 18, vT)
    for pos in range(8):
        for r in wd_reads(w1(pos), pos):
            A(r)
    lds_set(vFA, F_FREE, 18, vFW)
    A(f"v_mov_b32 {v(vT)}, {s(sT4)}")
    A(f"v_mov_b32 {v(vT2)}, 1")
    A.wait_vm(hs)
    A("s_mov_b64 exec, 1")
    A.vmem(f"global_store_dword {v(vT)}, {v(vT2)}, {s(pWS,2)} sc1")
    A("s_mov_b64 exec, -1")
    stamp(3)
    lds_wait(vZ, F_FULL, 21, vT)
    for pos in range(8, 14):
        for r in wd_reads(w1(pos), pos):
            A(r)
    lds_set(vFA, F_FREE, 21, vFW)
    sHB, sHoff, sH0, sH1 = 78, 79, 80, 81
    A(f"s_mul_i32 {s(sHB)}, {s(sRB64)}, {224*1024}")
    A(f"s_mul_i32 {s(sT0)}, {s(sWAVE)}, {28*1024}")
    A(f"s_add_u32 {s(sHB)}, {s(sHB)}, {s(sT0)}")
    A(f"s_add_u32 {s(sHB)}, {s(sHB)}, {OFF_H}")
    A(f"s_mul_i32 {s(sHoff)}, {s(sGRP)}, {OPT['rot2']*4096}")
    lds_wait(vZ, F_HRDY, 1, vT, sleep=1)
    stamp(4)
    hid = {}

    def h_load(ks):
        if ks % 4 == 0:
            if ks > 0:
                A(f"s_add_u32 {s(sHoff)}, {s(sHoff)}, 4096")
                A(f"s_cmp_eq_u32 {s(sHoff)}, {28*1024}")
                A(f"s_cselect_b32 {s(sHoff)}, 0, {s(sHoff)}")
            A(f"s_add_u32 {s(sH0)}, {s(sHB)}, {s(sHoff)}")
            A(f"s_add_u32 {s(sH1)}, {s(sH0)}, {112*1024}")
        for rbk in range(2):
            hid[ks] = A.vmem(f"buffer_load_dwordx4 {v(HB+8*(ks%HD)+4*rbk,4)}, {v(vL16)}, {s(rWS,4)}, {s(sH0+rbk)} offen offset:{(ks%4)*1024} sc1")
    for ks in range(HD):
        h_load(ks)
    A("s_waitcnt lgkmcnt(0)")
    for ks in range(28):
        if ks == 13:
            lds_wait(vZ, F_FULL, 28, vT)
        if ks >= 13 and ks + 1 < 28:
            for r in wd_reads(W2 + 8 * ((ks + 1) % 2), ks + 1):
                A(r)
        A.wait_vm(hid[ks])
        if ks >= 14:
            A(f"s_waitcnt lgkmcnt({4 if ks + 1 < 28 else 0})")
        wb = w1(ks) if ks < 14 else W2 + 8 * (ks % 2)
        for rbk in range(2):
            for cj in range(2):
                a = ACC2 + 16 * (2 * rbk + cj)
                cc = "0" if ks == 0 else v(a, 16)
                A(f"v_mfma_f32_32x32x16_bf16 {v(a,16)}, {v(HB+8*(ks%HD)+4*rbk,4)}, {v(wb+4*cj,4)}, {cc}")
        if ks + HD < 28:
            h_load(ks + HD)
    stamp(7)
    A("s_barrier")
    A(f"s_mul_i32 {s(sT0)}, {s(sWAVE)}, {PR_SZ}")
    A(f"s_add_u32 m0, {s(sT0)}, 4092")
    A("s_nop 9")
    pos = [0, 272, 640, 912]
    for t in range(4):
        for r in range(16):
            A(f"ds_write_addtid_b32 {v(ACC2+16*t+r)} offset:{PR-4092+t*5120+(r//4)*1280+pos[r%4]}")
    A("s_waitcnt lgkmcnt(0)")
    A("s_branch L_final")


def kgen_slot(R):
    e = A
    la, ai, cr, ci, dt, dt2 = [R["P"] + k for k in range(6)]
    t = R["tmp"]
    zr, zi = t, t + 1
    E = {1: t + 2, 8: t + 4, 256: t + 6}
    q0, q1, q2 = t + 8, t + 9, t + 10
    Ak = [t + 12 + 2 * k for k in range(8)]
    PK = R["PK"]
    AF, BF, DK, wa, ra = R["AF"], R["BF"], R["DK"], R["wa"], R["ra"]
    if OPT["ktog"]:
        e("s_setprio 0")
    e(f"v_mul_f32 {v(q0)}, {LOG2E:#x}, {v(la)}")
    e(f"v_exp_f32 {v(q0)}, {v(q0)}")
    e(f"v_mul_f32 {v(zi)}, {v(ai)}, {v(dt)}")
    e(f"v_cvt_pk_bf16_f32 {v(q0)}, {v(q0)}, {v(q0)}")
    e(f"v_lshlrev_b32 {v(q0)}, 16, {v(q0)}")
    e(f"v_mul_f32 {v(q0)}, {v(q0)}, {v(dt)}")
    e(f"v_mul_f32 {v(zr)}, {NLOG2E:#x}, {v(q0)}")
    e(f"v_mul_f32 {v(zi)}, {INV2PI:#x}, {v(zi)}")
    for p in (1, 8, 256):
        e(f"v_mul_f32 {v(q0)}, {f2u(float(p)):#x}, {v(zr)}")
        e(f"v_mul_f32 {v(q1)}, {f2u(float(p)):#x}, {v(zi)}")
        e(f"v_exp_f32 {v(q0)}, {v(q0)}")
        e(f"v_fract_f32 {v(q1)}, {v(q1)}")
        e(f"v_cos_f32 {v(q2)}, {v(q1)}")
        e(f"v_sin_f32 {v(q1)}, {v(q1)}")
        e(f"v_mul_f32 {v(E[p])}, {v(q0)}, {v(q2)}")
        if p == 8:
            e(f"v_mul_f32 {v(E[p]+1)}, -{v(q0)}, {v(q1)}")
        else:
            e(f"v_mul_f32 {v(E[p]+1)}, {v(q0)}, {v(q1)}")
    st = [0]

    def pack(dw, a, b):
        e(f"v_cvt_pk_bf16_f32 {v(PK+8*st[0]+dw)}, {v(a)}, {v(b)}")
        e(f"v_cvt_pk_bf16_f32 {v(PK+8*st[0]+4+dw)}, {v(a+1)}, {v(b+1)}")

    def hi():
        if OPT["ktog"]:
            e("s_setprio 2")

    def lo():
        if OPT["ktog"]:
            e("s_setprio 0")

    def flush(slot, keep=False):
        hi()
        e(f"ds_write_b128 {v(wa+slot)}, {v(PK+8*st[0],4)}")
        e(f"ds_write_b128 {v(wa+slot)}, {v(PK+8*st[0]+4,4)} offset:4096")
        if not keep:
            lo()
        st[0] ^= 1

    def cmul(d, a, b):
        e(f"v_mul_f32 {v(q0)}, {v(a+1)}, {v(b+1)}")
        e(f"v_mul_f32 {v(q1)}, {v(a+1)}, {v(b)}")
        e(f"v_fma_f32 {v(d+1)}, {v(a)}, {v(b+1)}, {v(q1)}")
        e(f"v_fma_f32 {v(d)}, {v(a)}, {v(b)}, -{v(q0)}")

    def frags(dst):
        for i in range(8):
            for h in range(2):
                e(f"ds_read_b64_tr_b16 {v(dst+4*i+2*h,2)}, {v(ra+h)} offset:{1024*i}")
    e(f"v_mul_f32 {v(Ak[0])}, {v(cr)}, {v(dt2)}")
    e(f"v_mul_f32 {v(Ak[0]+1)}, {v(ci)}, {v(dt2)}")
    for k in range(1, 8):
        cmul(Ak[k], Ak[k - 1], E[1])
        if k % 2:
            pack(k // 2, Ak[k - 1], Ak[k])
    flush(0)
    G = E[256]
    for k in (0, 2, 4, 6):
        cmul(Ak[k], Ak[k], G)
    pack(0, Ak[0], Ak[2]); pack(2, Ak[4], Ak[6])
    cmul(Ak[0], Ak[0], G); cmul(Ak[4], Ak[4], G); pack(1, Ak[0], Ak[4])
    cmul(Ak[0], Ak[0], G); cmul(Ak[4], Ak[4], G); pack(3, Ak[0], Ak[4])
    flush(1)
    cmul(Ak[0], Ak[0], G); cmul(Ak[1], Ak[0], G); pack(0, Ak[0], Ak[1])
    cmul(Ak[0], Ak[1], G); cmul(Ak[1], Ak[0], G); pack(2, Ak[0], Ak[1])
    cmul(Ak[0], Ak[1], G); pack(1, Ak[0], Ak[0])
    flush(2, True)
    frags(AF)
    lo()
    X, Y = Ak[2], Ak[3]
    e(f"v_mov_b32 {v(X)}, 1.0")
    e(f"v_mov_b32 {v(X+1)}, 0")
    pack(0, X, E[8])
    prev = E[8]
    for i in range(1, 16):
        cmul(X, prev, E[8])
        cmul(Y, X, E[8])
        prev = Y
        pack(i % 4, X, Y)
        if i % 4 == 3:
            flush(i // 4, i == 15)
    frags(BF)
    for i in range(8):
        e(f"s_waitcnt lgkmcnt({14-2*i})")
        e(f"v_mfma_f32_32x32x16_bf16 {v(DK,16)}, {v(AF+4*i,4)}, {v(BF+4*i,4)}, {v(DK,16)}")


def kwave():
    A.label("L_kw")
    A.vm = 0
    sCI, sCH, sKB, sIT, sUBc, sTBc = sW1, sW2, sW3, 69, 70, 71
    vT, vT2, vT3, vZ = 2, 3, 4, 5
    R = dict(P=8, tmp=28, PK=56, wa=72, ra=76, AF=80, BF=112, DK=144)
    P = R["P"]
    LD = 160
    GA = 170
    A(f"s_mul_i32 {s(sCH0)}, {s(sXCD)}, 28")
    A(f"s_add_u32 {s(sCH0)}, {s(sCH0)}, {s(sJ)}")
    A(f"s_lshl_b32 {s(sCH0)}, {s(sCH0)}, 1")
    A(f"s_and_b32 {s(sCI)}, {s(sWAVE)}, 1")
    A(f"s_add_u32 {s(sCH)}, {s(sCH0)}, {s(sCI)}")
    A(f"s_lshl_b32 {s(sT3)}, {s(sCH0)}, 1")
    isK, ld_done = A.new("ik"), A.new("ld")
    A(f"s_cmp_lg_u32 {s(sWAVE)}, 5")
    A(f"s_cbranch_scc1 {isK}")
    A(f"s_lshl_b32 {s(sT0)}, {s(sCH0)}, 9")
    A(f"v_lshl_add_u32 {v(vT)}, {v(vLANE)}, 3, {s(sT0)}")
    kernarg_ready()
    for k, p in enumerate((pLA, pAI, pCR, pCI)):
        A(f"global_load_dword {v(LD+2*k)}, {v(vT)}, {s(p,2)} offset:4")
        A(f"global_load_dword {v(LD+2*k+1)}, {v(vT)}, {s(p,2)} offset:516")
    A(f"s_mov_b32 {s(sKB)}, {KM}")
    A(f"s_mov_b32 {s(sIT)}, 2")
    for i in range(4):
        A(f"v_mov_b32 {v(28+i)}, 0")
    A(f"v_min_u32 {v(vT2)}, 29, {v(vLANE)}")
    A(f"v_lshlrev_b32 {v(vT2)}, 4, {v(vT2)}")
    A(f"ds_write_b128 {v(vT2)}, {v(28,4)} offset:{UB}")
    A(f"ds_write_b128 {v(vT2)}, {v(28,4)} offset:{UB+UB_SZ}")
    A(f"v_and_b32 {v(vT2)}, 48, {v(vT2)}")
    A(f"ds_write_b128 {v(vT2)}, {v(28,4)} offset:{FG}")
    A(f"ds_write_b32 {v(28)}, {v(28)} offset:{TB}")
    A(f"ds_write_b32 {v(28)}, {v(28)} offset:{TB+TB_SZ}")
    A(f"s_branch {ld_done}")
    A.label(isK)
    A(f"s_lshl_b32 {s(sT0)}, {s(sCH)}, 9")
    A(f"v_lshl_add_u32 {v(vT)}, {v(vLANE)}, 3, {s(sT0)}")
    kernarg_ready()
    for k, p in enumerate((pLA, pAI, pCR, pCI)):
        A(f"global_load_dwordx2 {v(LD+2*k,2)}, {v(vT)}, {s(p,2)}")
    A(f"s_mul_i32 {s(sKB)}, {s(sCI)}, {KA_SZ}")
    A(f"s_mov_b32 {s(sIT)}, 3")
    A.label(ld_done)
    A(f"s_load_dword {s(sT4)}, {s(pLDT,2)}, {s(sT3)}")
    srd(rWS, pWS, WS_BYTES)
    A(f"v_mov_b32 {v(vZ)}, 0")
    A(f"v_lshl_add_u32 {v(vT)}, {v(vLANE)}, 6, {s(sKB)}")
    A(f"v_bfe_u32 {v(vT2)}, {v(vLANE)}, 1, 2")
    for k in range(4):
        A(f"v_xor_b32 {v(vT3)}, {k}, {v(vT2)}")
        A(f"v_lshl_add_u32 {v(R['wa']+k)}, {v(vT3)}, 4, {v(vT)}")
    A(f"v_bfe_u32 {v(vT2)}, {v(vLANE)}, 2, 2")
    A(f"v_lshrrev_b32 {v(vT)}, 5, {v(vLANE)}")
    A(f"v_lshl_add_u32 {v(vT)}, {v(vT)}, 3, {v(vT2)}")
    A(f"v_lshl_add_u32 {v(vT)}, {v(vT)}, 6, {s(sKB)}")
    A(f"v_bfe_u32 {v(vT2)}, {v(vLANE)}, 4, 1")
    A(f"v_lshl_add_u32 {v(vT)}, {v(vT2)}, 5, {v(vT)}")
    A(f"v_lshrrev_b32 {v(vT2)}, 1, {v(vLANE)}")
    A(f"v_lshrrev_b32 {v(vT3)}, 3, {v(vLANE)}")
    A(f"v_xor_b32 {v(vT2)}, {v(vT2)}, {v(vT3)}")
    A(f"v_and_b32 {v(vT2)}, 1, {v(vT2)}")
    A(f"v_lshl_add_u32 {v(vT)}, {v(vT2)}, 4, {v(vT)}")
    A(f"v_and_b32 {v(vT2)}, 1, {v(vLANE)}")
    A(f"v_lshl_add_u32 {v(R['ra'])}, {v(vT2)}, 3, {v(vT)}")
    A(f"v_add_u32 {v(R['ra']+1)}, 256, {v(R['ra'])}")
    A(f"v_xor_b32 {v(R['ra']+1)}, 32, {v(R['ra']+1)}")
    DK = R["DK"]
    for r in range(16):
        A(f"v_mov_b32 {v(DK+r)}, 0")
    A(f"s_mul_i32 {s(sUBc)}, {s(sCI)}, {UB_SZ}")
    A(f"s_add_u32 {s(sUBc)}, {s(sUBc)}, {UB}")
    A(f"s_mul_i32 {s(sTBc)}, {s(sCI)}, {TB_SZ}")
    A(f"s_add_u32 {s(sTBc)}, {s(sTBc)}, {TB+4}")
    A("s_waitcnt lgkmcnt(0)")
    A("s_barrier")
    for ph in range(2):
        G = GA + 18 * ph
        A(f"v_lshlrev_b32 {v(vT)}, 4, {v(vLANE)}")
        A(f"v_sub_u32 {v(vT)}, {2047-1024*ph}, {v(vT)}")
        if ph:
            A(f"v_cmp_gt_u32 vcc, 256, {v(vT)}")
            A(f"v_subrev_u32 {v(vT2)}, 16, {v(vT)}")
            A(f"v_mov_b32 {v(vT3)}, 144")
            A(f"v_cndmask_b32 {v(vT)}, {v(vT)}, {v(vT3)}, vcc")
            A(f"v_mov_b32 {v(vT3)}, 128")
            A(f"v_cndmask_b32 {v(vT2)}, {v(vT3)}, {v(vT2)}, vcc")
        else:
            A(f"v_mov_b32 {v(vT2)}, 128")
        A(f"v_cvt_f32_u32 {v(vT)}, {v(vT)}")
        A(f"v_subrev_u32 {v(vT2)}, 0x4300, {v(vT2)}")
        A(f"v_lshl_add_u32 {v(vT2)}, {v(vT2)}, 2, {s(sTBc)}")
        ks = range(0, 17, 2) if ph else (0, 8, 16)
        for k in ks:
            A(f"v_subrev_f32 {v(G+k)}, {f2u(float(k)):#x}, {v(vT)}")
            A(f"v_subrev_f32 {v(G+k+1)}, {f2u(float(k+1)):#x}, {v(vT)}")
            A(f"v_cvt_pk_bf16_f32 {v(vT3)}, {v(G+k)}, {v(G+k+1)}")
            A(f"v_mad_u32_u16 {v(G+k)}, {v(vT3)}, 4, {v(vT2)}")
            if k < 16 and ph:
                A(f"v_mad_u32_u16 {v(G+k+1)}, {v(vT3)}, 4, {v(vT2)} op_sel:[1,0,0,0]")
    A(f"s_lshl_b32 {s(sT0)}, {s(sT4)}, 16")
    A(f"s_and_b32 {s(sT1)}, {s(sT4)}, 0xffff0000")
    A(f"v_mov_b32 {v(vT3)}, {LOG2E:#x}")
    A(f"v_mul_f32 {v(vT)}, {s(sT0)}, {v(vT3)}")
    A(f"v_mul_f32 {v(vT2)}, {s(sT1)}, {v(vT3)}")
    A(f"v_exp_f32 {v(vT)}, {v(vT)}")
    A(f"v_exp_f32 {v(vT2)}, {v(vT2)}")
    A("s_nop 0")
    A(f"v_cvt_pk_bf16_f32 {v(vT3)}, {v(vT)}, {v(vT2)}")
    A(f"v_lshlrev_b32 {v(vT)}, 16, {v(vT3)}")
    A(f"v_and_b32 {v(vT2)}, 0xffff0000, {v(vT3)}")
    isK, up_done = A.new("ik"), A.new("up")
    A("s_waitcnt vmcnt(0)")
    stamp(1)
    A(f"s_cmp_lg_u32 {s(sWAVE)}, 5")
    A(f"s_cbranch_scc1 {isK}")
    for st in range(2):
        for k in range(4):
            A(f"v_and_b32 {v(P+6*st+k)}, 0xffff0000, {v(LD+2*k+st)}")
        A(f"v_mov_b32 {v(P+6*st+4)}, {v(vT+st)}")
        A(f"v_add_f32 {v(P+6*st+5)}, {v(vT+st)}, {v(vT+st)}")
    A(f"s_branch {up_done}")
    A.label(isK)
    A(f"s_cmp_eq_u32 {s(sCI)}, 1")
    A("s_cselect_b64 vcc, -1, 0")
    A(f"v_cndmask_b32 {v(vT)}, {v(vT)}, {v(vT2)}, vcc")
    for st in range(3):
        for k in range(4):
            if st == 1:
                A(f"v_and_b32 {v(P+6*st+k)}, 0xffff0000, {v(LD+2*k)}")
            else:
                A(f"v_lshlrev_b32 {v(P+6*st+k)}, 16, {v(LD+2*k+st//2)}")
        A(f"v_mov_b32 {v(P+6*st+4)}, {v(vT)}")
        A(f"v_add_f32 {v(P+6*st+5)}, {v(vT)}, {v(vT)}")
    A.label(up_done)
    A(f"s_setprio {OPT['kprio']}")
    A(f"v_lshlrev_b32 {v(vT3)}, 2, {v(vLANE)}")
    A(f"v_mov_b32 {v(vT2)}, 0")
    loop, nof = A.new("kl"), A.new("kn")
    A.label(loop)
    if not OPT["nokg"]:
        kgen_slot(R)
    for k in range(12):
        A(f"v_mov_b32 {v(P+k)}, {v(P+6+k)}")
    A(f"s_cmp_lg_u32 {s(sWAVE)}, 5")
    A(f"s_cbranch_scc1 {nof}")
    A(f"v_add_u32 {v(vT2)}, 1, {v(vT2)}")
    for r in range(11):
        A(f"ds_write_b32 {v(vT3)}, {v(DK+r)} offset:{TB2+256*r}")
    A(f"ds_write_b32 {v(vZ)}, {v(vT2)} offset:{F_TB2}")
    A(f"v_add_u32 {v(vT3)}, {TB2_SZ}, {v(vT3)}")
    for r in range(16):
        A(f"v_mov_b32 {v(DK+r)}, 0")
    A.label(nof)
    A(f"s_sub_u32 {s(sIT)}, {s(sIT)}, 1")
    A(f"s_cmp_lg_u32 {s(sIT)}, 0")
    A(f"s_cbranch_scc1 {loop}")
    stamp(2)
    A(f"s_cmp_eq_u32 {s(sWAVE)}, 5")
    A("s_cbranch_scc1 L_mw")

    GV, PK = 80, 100
    lds_wait(vZ, F_TB2, 2, vT)
    A(f"s_mul_i32 {s(sT0)}, {s(sCI)}, {TB2_SZ}")
    A(f"v_lshl_add_u32 {v(vT)}, {v(vLANE)}, 2, {s(sT0)}")
    for r in range(11):
        A(f"ds_read_b32 {v(GV+r)}, {v(vT)} offset:{TB2+256*r}")
    vN, vG = 30, 31
    A(f"v_and_b32 {v(vN)}, 31, {v(vLANE)}")
    A(f"v_lshrrev_b32 {v(vG)}, 5, {v(vLANE)}")
    A(f"v_lshl_add_u32 {v(vT)}, {v(vN)}, 1, {v(vG)}")
    A(f"v_lshl_add_u32 {v(32)}, {v(vT)}, 4, {s(sTBc)}")
    A(f"v_lshl_add_u32 {v(33)}, {v(vT)}, 3, {s(sTBc)}")
    A(f"v_lshl_add_u32 {v(34)}, {v(vLANE)}, 3, {s(sTBc)}")
    A(f"v_lshl_add_u32 {v(vT)}, {v(vG)}, 6, {v(vN)}")
    A(f"v_lshl_add_u32 {v(35)}, {v(vT)}, 2, {s(sTBc)}")
    A("s_waitcnt lgkmcnt(0)")
    for r in range(11):
        A(f"v_add_f32 {v(DK+r)}, {v(DK+r)}, {v(GV+r)}")
    A(f"ds_write2_b32 {v(32)}, {v(DK)}, {v(DK+1)} offset0:0 offset1:1")
    A(f"ds_write2_b32 {v(32)}, {v(DK+2)}, {v(DK+3)} offset0:2 offset1:3")
    for r in range(2):
        A(f"ds_write_b32 {v(33)}, {v(DK+4+r)} offset:{256*4+4*r}")
        A(f"ds_write_b32 {v(34)}, {v(DK+6+r)} offset:{384*4+4*r}")
        A(f"ds_write_b32 {v(35)}, {v(DK+8+r)} offset:{512*4+128*r}")
    A("s_mov_b64 exec, 1")
    A(f"ds_write_b32 {v(35)}, {v(DK+10)} offset:{640*4}")
    A("s_mov_b64 exec, -1")
    for k in (0, 8, 16):
        A(f"ds_read_b32 {v(GV+17+k//8)}, {v(GA+k)}")
    for k in range(17):
        A(f"ds_read_b32 {v(GV+k)}, {v(GA+18+k)}")
    A(f"v_lshl_add_u32 {v(vT)}, {v(vLANE)}, 5, {s(sKB)}")
    A("s_waitcnt lgkmcnt(15)")
    a_, b_, c_ = GV + 17, GV + 18, GV + 19
    src = [a_] * 4 + [b_] * 7 + [c_] * 6
    for cp in range(2):
        for k in range(8):
            A(f"v_cvt_pk_bf16_f32 {v(PK+8*cp+k)}, {v(src[2*k+cp])}, {v(src[2*k+cp+1])}")
        A(f"ds_write_b128 {v(vT)}, {v(PK+8*cp,4)} offset:{cp*KR_PITCH}")
        A(f"ds_write_b128 {v(vT)}, {v(PK+8*cp+4,4)} offset:{cp*KR_PITCH+16}")
    A("s_waitcnt lgkmcnt(4)")
    for cp in range(2):
        for k in range(8):
            A(f"v_cvt_pk_bf16_f32 {v(PK+16+8*cp+k)}, {v(GV+2*k+cp)}, {v(GV+2*k+cp+1)}")
        A(f"ds_write_b128 {v(vT)}, {v(PK+16+8*cp,4)} offset:{2048+cp*KR_PITCH}")
        A(f"ds_write_b128 {v(vT)}, {v(PK+16+8*cp+4,4)} offset:{2048+cp*KR_PITCH+16}")
    CA, FS = 32, 64
    for r in range(32):
        A(f"v_mov_b32 {v(CA+r)}, 0")
    A(f"v_and_b32 {v(vT2)}, 1, {v(vLANE)}")
    A(f"v_lshl_add_u32 {v(vT2)}, {v(vT2)}, 4, {s(sKB)}")
    A(f"ds_write_b128 {v(vT2)}, {v(CA,4)} offset:4096")
    A(f"ds_write_b128 {v(vT2)}, {v(CA,4)} offset:{KR_PITCH+4096}")
    vKA, vUA = 10, 14
    vB, vG4 = 30, 31
    A(f"v_and_b32 {v(vB)}, 15, {v(vLANE)}")
    A(f"v_lshrrev_b32 {v(vG4)}, 4, {v(vLANE)}")
    A(f"v_sub_u32 {v(vT)}, 2031, {v(vB)}")
    A(f"v_and_b32 {v(vT2)}, 1, {v(vT)}")
    A(f"v_mul_u32_u24 {v(vT2)}, {KR_PITCH}, {v(vT2)}")
    A(f"v_lshrrev_b32 {v(vT)}, 1, {v(vT)}")
    A(f"v_lshl_add_u32 {v(vT)}, {v(vT)}, 2, {v(vT2)}")
    A(f"v_lshl_add_u32 {v(vT)}, {v(vG4)}, 4, {v(vT)}")
    A(f"v_add_u32 {v(vT)}, {s(sKB)}, {v(vT)}")
    for p in range(4):
        A(f"v_subrev_u32 {v(vKA+p)}, {512*(2*p+1)+64*7}, {v(vT)}")
    A(f"v_lshl_add_u32 {v(vUA)}, {v(vB)}, 5, {s(sUBc)}")
    A(f"v_lshl_add_u32 {v(vUA)}, {v(vG4)}, 4, {v(vUA)}")
    stamp(3)
    A(f"s_setprio {OPT['cvprio']}")
    lds_wait(vZ, F_URDY, 1, vT, sleep=2)
    stamp(4)

    def fa(st, q): return FS + 64 * st + 4 * q
    def fb_(st, x): return FS + 64 * st + 32 + 4 * x

    def creads(st, kp):
        r = []
        for q in range(8):
            o = 128 * (1 - (q & 1)) + 16 * (7 - kp)
            r.append(f"ds_read_b128 {v(fb_(st,q),4)}, {v(vUA)} offset:{512*q+64*(7-kp)}")
            r.append(f"ds_read2_b32 {v(fa(st,q),2)}, {v(vKA+q//2)} offset0:{o} offset1:{o+1}")
            r.append(f"ds_read2_b32 {v(fa(st,q)+2,2)}, {v(vKA+q//2)} offset0:{o+2} offset1:{o+3}")
        return r
    for r in creads(0, 0):
        A(r)
    for kp in range(8):
        st = kp % 2
        A("s_waitcnt lgkmcnt(0)")
        rs = creads(1 - st, kp + 1) if kp < 7 else []
        for q in range(8):
            for t in range(q, 8):
                A(f"v_mfma_f32_16x16x32_bf16 {v(CA+4*t,4)}, {v(fa(st,q),4)}, {v(fb_(st,t-q),4)}, {v(CA+4*t,4)}")
                if rs:
                    A(rs.pop(0))
    stamp(6)
    A(f"s_lshl_b32 {s(sT0)}, {s(sCI)}, 2")
    A(f"v_mov_b32 {v(vT)}, {s(sT0)}")
    lds_set(vT, F_KDONE, 1, vT2)
    A(f"v_and_b32 {v(vT)}, 1, {v(vG4)}")
    A(f"v_lshlrev_b32 {v(vT)}, 9, {v(vT)}")
    A(f"v_lshl_add_u32 {v(vT)}, {v(vB)}, 5, {v(vT)}")
    A(f"v_lshrrev_b32 {v(vT2)}, 1, {v(vG4)}")
    A(f"v_lshl_add_u32 {v(vT)}, {v(vT2)}, 4, {v(vT)}")
    A(f"s_lshl_b32 {s(sT0)}, {s(sCH)}, 12")
    A(f"s_add_u32 {s(sT0)}, {s(sT0)}, {OFF_Y}")
    YP = 100
    for pr in range(4):
        for tt in range(2):
            for d in range(2):
                src = CA + 4 * (2 * pr + tt) + 2 * d
                A(f"v_cvt_pk_bf16_f32 {v(YP+4*pr+2*tt+d)}, {v(src)}, {v(src+1)}")
    A("s_setprio 3")
    A("s_nop 0")
    for pr in range(4):
        A(f"v_permlane16_swap_b32 {v(YP+4*pr)}, {v(YP+4*pr+2)}")
        A(f"v_permlane16_swap_b32 {v(YP+4*pr+1)}, {v(YP+4*pr+3)}")
    for pr in range(4):
        A(f"buffer_store_dwordx4 {v(YP+4*pr,4)}, {v(vT)}, {s(rWS,4)}, {s(sT0)} offen offset:{1024*pr} sc1")
    A(f"s_lshl_b32 {s(sT0)}, {s(sCH)}, 2")
    A(f"s_add_u32 {s(sT0)}, {s(sT0)}, {OFF_FL+4096}")
    A(f"v_mov_b32 {v(vT)}, {s(sT0)}")
    A(f"v_mov_b32 {v(vT2)}, 1")
    A("s_waitcnt vmcnt(0)")
    A("s_mov_b64 exec, 1")
    A(f"global_store_dword {v(vT)}, {v(vT2)}, {s(pWS,2)} sc1")
    A("s_mov_b64 exec, -1")
    A("s_setprio 0")
    stamp(7)
    A("s_waitcnt lgkmcnt(0)")
    A("s_barrier")
    A("s_branch L_final")

    A.label("L_mw")
    A.vm = 0
    A("s_setprio 3")
    U0, XV, MV, SV, DV, DF, TV = 8, 40, 72, 76, 80, 84, 96
    vR8, vC8 = 6, 7
    A(f"v_lshrrev_b32 {v(vR8)}, 3, {v(vLANE)}")
    A(f"v_and_b32 {v(vC8)}, 7, {v(vLANE)}")
    A(f"v_mul_u32_u24 {v(vT)}, 896, {v(vR8)}")
    A(f"v_lshl_add_u32 {v(vT)}, {v(vC8)}, 4, {v(vT)}")
    A(f"s_mul_i32 {s(sT1)}, {s(sRB64)}, {64*896}")
    A(f"s_lshl_b32 {s(sT2)}, {s(sCB)}, 7")
    A(f"s_add_u32 {s(sT1)}, {s(sT1)}, {s(sT2)}")
    A(f"v_add_u32 {v(vT)}, {s(sT1)}, {v(vT)}")
    for i in range(8):
        A(f"global_load_dwordx4 {v(XV+4*i,4)}, {v(vT)}, {s(pX,2)}")
        if i < 7:
            A(f"v_add_u32 {v(vT)}, {8*896}, {v(vT)}")
    A(f"v_lshl_add_u32 {v(vT)}, {v(vC8)}, 4, {s(sT2)}")
    A(f"global_load_dwordx4 {v(DV,4)}, {v(vT)}, {s(pDS,2)}")
    A(f"v_or_b32 {v(vT)}, 32, {v(vLANE)}")
    A(f"v_lshlrev_b32 {v(vT)}, 2, {v(vT)}")
    lds_wait(vZ, F_FULL, OPT["h1at"], vT2, sleep=4)
    poll_global(vT, vT2, pDBG, sleep=16)
    stamp(3)
    A(f"v_lshlrev_b32 {v(vT)}, 4, {v(vLANE)}")
    A(f"s_lshl_b32 {s(sT0)}, {s(sCH0)}, 12")
    A(f"s_add_u32 {s(sT1)}, {s(sT0)}, 4096")
    for i in range(8):
        ul = A.vmem(f"buffer_load_dwordx4 {v(U0+4*i,4)}, {v(vT)}, {s(rWS,4)}, {s(sT0+i//4)} offen offset:{1024*(i%4)} sc1")
    A(f"s_lshl_b32 {s(sT2)}, {s(sRB)}, 10")
    A(f"s_add_u32 {s(sT2)}, {s(sT2)}, {OFF_ST}")
    ml = A.vmem(f"buffer_load_dwordx4 {v(MV,4)}, {v(vT)}, {s(rWS,4)}, {s(sT2)} offen sc1")
    A(f"s_lshl_b32 {s(sT2)}, {s(sRB64)}, 9")
    A(f"s_add_u32 {s(sT2)}, {s(sT2)}, {OFF_ST}")
    A(f"v_lshlrev_b32 {v(vT2)}, 3, {v(vLANE)}")
    sl = A.vmem(f"buffer_load_dwordx2 {v(SV,2)}, {v(vT2)}, {s(rWS,4)}, {s(sT2)} offen sc1")
    for d in range(4):
        A(f"v_lshlrev_b32 {v(DF+2*d)}, 16, {v(DV+d)}")
        A(f"v_and_b32 {v(DF+2*d+1)}, 0xffff0000, {v(DV+d)}")
    A.wait_vm(ul)
    for i in range(8):
        A(f"ds_write_b128 {v(vT)}, {v(U0+4*i,4)} offset:{UB+(i//4)*UB_SZ+480+1024*(i%4)}")
    lds_set(vZ, F_URDY, 1, vT3)
    A.wait_vm(sl)
    A(f"v_add_u32 {v(vT)}, {MB}, {v(vT2)}")
    A(f"ds_write2_b32 {v(vT)}, {v(MV)}, {v(MV+2)} offset0:0 offset1:1")
    A(f"ds_write_b32 {v(vZ)}, {v(vT3)} offset:{F_MRDY}")
    A("s_setprio 0")
    stamp(4)
    A(f"v_lshlrev_b32 {v(SV)}, 16, {v(SV)}")
    A(f"v_mul_f32 {v(vT3)}, {v(SV+1)}, {v(SV+1)}")
    A(f"ds_write_b64 {v(vT2)}, {v(SV,2)} offset:{STB}")
    A(f"v_lshlrev_b32 {v(vT)}, 2, {v(vLANE)}")
    A(f"ds_write_b32 {v(vT)}, {v(vT3)} offset:{R2}")
    A(f"v_lshlrev_b32 {v(vT)}, 3, {v(vR8)}")
    ST = 8
    for i in range(8):
        A(f"ds_read_b64 {v(ST+2*i,2)}, {v(vT)} offset:{STB+64*i}")
    A("s_waitcnt lgkmcnt(0)")
    for i in range(8):
        for d in range(4):
            A(f"v_lshlrev_b32 {v(TV+8*i+2*d)}, 16, {v(XV+4*i+d)}")
            A(f"v_and_b32 {v(TV+8*i+2*d+1)}, 0xffff0000, {v(XV+4*i+d)}")
        for k in range(8):
            A(f"v_add_f32 {v(vT3)}, {v(TV+8*i+k)}, {v(ST+2*i)}")
            A(f"v_mul_f32 {v(vT3)}, {v(vT3)}, {v(ST+2*i+1)}")
            A(f"v_fmac_f32 {v(TV+8*i+k)}, {v(DF+k)}, {v(vT3)}")
    YV, YE = 8, 160
    for k in range(64):
        A(f"v_mov_b32 {v(YE+k)}, 0")
    stamp(6)
    lds_wait(vZ, F_KDONE, 1, vT, sleep=4)
    lds_wait(vZ, F_KDONE + 4, 1, vT, sleep=4)
    lds_wait(vZ, F_HRDY, 1, vT, sleep=4)
    stamp(10)
    A("s_setprio 3")
    A(f"s_lshl_b32 {s(sT1)}, {s(sCB)}, 8")
    A(f"s_add_u32 {s(sT1)}, {s(sT1)}, {OFF_FL+4096}")
    A(f"v_lshl_add_u32 {v(vT)}, {v(vLANE)}, 2, {s(sT1)}")
    poll_global(vT, vT2, pWS, sleep=16)
    stamp(7)
    A(f"s_lshl_b32 {s(sT0)}, {s(sCB)}, 18")
    A(f"s_lshl_b32 {s(sT1)}, {s(sRB64)}, 7")
    A(f"s_add_u32 {s(sT0)}, {s(sT0)}, {s(sT1)}")
    A(f"s_add_u32 {s(sT0)}, {s(sT0)}, {OFF_Y}")
    A(f"v_lshlrev_b32 {v(vT)}, 12, {v(vR8)}")
    A(f"v_lshl_add_u32 {v(vT)}, {v(vC8)}, 4, {v(vT)}")
    for i in range(8):
        A(f"buffer_load_dwordx4 {v(YV+4*i,4)}, {v(vT)}, {s(rWS,4)}, {s(sT0)} offen sc1")
        if i < 7:
            A(f"s_add_u32 {s(sT0)}, {s(sT0)}, {8*4096}")
    A(f"v_lshlrev_b32 {v(vT)}, 4, {v(vLANE)}")
    A(f"v_mul_u32_u24 {v(vT2)}, 1040, {v(vC8)}")
    A(f"v_lshl_add_u32 {v(vT2)}, {v(vR8)}, 1, {v(vT2)}")
    A(f"v_mul_u32_u24 {v(vT3)}, {T_PITCH}, {v(vR8)}")
    A(f"v_lshl_add_u32 {v(vT3)}, {v(vC8)}, 5, {v(vT3)}")
    for i in range(8):
        A(f"s_waitcnt vmcnt({7-i})")
        A(f"ds_write_b128 {v(vT)}, {v(YV+4*i,4)} offset:{KM+1040*i}")
    stamp(8)

    def yreads(i):
        for k in range(8):
            A(f"ds_read_u16_d16_hi {v(YE+8*i+k)}, {v(vT2)} offset:{KM+128*k+16*i}")
    yreads(0)
    for i in range(8):
        if i < 7:
            yreads(i + 1)
        A(f"s_waitcnt lgkmcnt({8 if i < 7 else 0})")
        for k in range(8):
            A(f"v_add_f32 {v(TV+8*i+k)}, {v(TV+8*i+k)}, {v(YE+8*i+k)}")
        A(f"ds_write_b128 {v(vT3)}, {v(TV+8*i,4)} offset:{TT+8*T_PITCH*i}")
        A(f"ds_write_b128 {v(vT3)}, {v(TV+8*i+4,4)} offset:{TT+8*T_PITCH*i+16}")
    A("s_waitcnt lgkmcnt(0)")
    stamp(9)
    A("s_setprio 0")
    A("s_barrier")


def main():
    hdr = open("cdna_kernels/" + NAME + ".s.ref").read().split("\n")
    out = [l for l in hdr if l.startswith(";") and "@launch" not in l and "Override" not in l and "grid=ceil" not in l]
    out.append(f"; @launch grid=(256,1,1) block=(512,1,1) lds={LDS_BYTES}")
    out.append('.amdgcn_target "amdgcn-amd-amdhsa--gfx950"')
    out.append(".text")
    out.append(f".globl {NAME}_kernel")
    out.append(".p2align 8")
    out.append(f".type {NAME}_kernel,@function")
    out.append(f"{NAME}_kernel:")
    prologue()
    lwave()
    cwave()
    side()
    kwave()
    final()
    out += A.l
    out.append('.section .rodata,"a"')
    out.append(".p2align 6")
    out.append(f".amdhsa_kernel {NAME}_kernel")
    out.append("  .amdhsa_next_free_vgpr 256")
    out.append("  .amdhsa_next_free_sgpr 102")
    out.append("  .amdhsa_accum_offset 256")
    out.append("  .amdhsa_group_segment_fixed_size 0")
    out.append("  .amdhsa_kernarg_size 112")
    out.append("  .amdhsa_user_sgpr_count 2")
    out.append("  .amdhsa_user_sgpr_kernarg_segment_ptr 1")
    out.append("  .amdhsa_system_sgpr_workgroup_id_x 1")
    out.append(".end_amdhsa_kernel")
    open(sys.argv[1], "w").write("\n".join(out) + "\n")


main()
```

```python
import sys, struct

NAME = "parallel_sum__ssm_conv_s4d__glu_gated_reglu__prompt"
OPT = dict(diag=0, rot1=4, rot2=4, sidepf=1, pfe=3, pfh=0, nmain=0, wdh=-1, early9=0, h1b=11, b15=0, prio=0, hd=6, psl=8, goat=6, outsc=0, dwg=100, dwave=0, dst=5, amp=10, base=5000)
for a in sys.argv[2:]:
    k, val = a.split("=")
    OPT[k] = int(val)

OFF_U = 0x0
OFF_ST = 0x200000
OFF_FL = 0x220000
OFF_Y = 0xC00000
OFF_H = 0x400000
OFF_TS = 0x240000
WS_BYTES = 0x1000000

KA, KA_SZ = 0, 8320
UB, UB_SZ = 33280, 4576
TB, TB_SZ = 42432, 2568
R2 = 47568
FG = 47824
F_PAIR, F_WD, F_GO, F_Y = FG, FG + 16, FG + 32, FG + 48
SX = TB
YS, YS_SZ = KA_SZ, 2080
TT, T_PITCH = 0, 272
XR = 49152
WR = 98304
PR = 49152
PR_SZ = 20480
KR_PITCH = 4160
EX_OFF = 8320
LDS_BYTES = 163840
H1_BAR = OPT["h1b"]

LOG2E = 0x3fb8aa3b
NLOG2E = 0xbfb8aa3b
INV2PI = 0x3e22f983


def wd_order():
    order = []
    for g in range(7):
        for c in (g, (g + OPT["rot2"]) % 7):
            if c not in order:
                order.append(c)
    return order


def f2u(x):
    return struct.unpack("<I", struct.pack("<f", x))[0]


def v(n, c=1):
    return f"v{n}" if c == 1 else f"v[{n}:{n+c-1}]"


def s(n, c=1):
    return f"s{n}" if c == 1 else f"s[{n}:{n+c-1}]"


class Asm:
    def __init__(self):
        self.l = []
        self.vm = 0
        self.uid = 0

    def __call__(self, t):
        self.l.append("    " + t)

    def label(self, n):
        self.l.append(n + ":")

    def c(self, t):
        self.l.append("    ; " + t)

    def vmem(self, t):
        self(t)
        self.vm += 1
        return self.vm

    def wait_vm(self, ident):
        n = self.vm - ident
        assert 0 <= n <= 63, n
        self(f"s_waitcnt vmcnt({n})")

    def new(self, p):
        self.uid += 1
        return f"L_{p}{self.uid}"


A = Asm()

sWG, sWAVE = 2, 3
pX, pLA, pAI, pCR, pCI, pLDT, pDS = 4, 6, 8, 10, 12, 14, 16
pWG, pWU, pWD, pOUT, pDBG, pWS = 20, 22, 24, 26, 28, 30
rX, rWG, rWU, rWD, rWS = 32, 36, 40, 44, 48
sXCD, sJ, sRB, sFB, sRB64, sCB, sCH0 = 52, 53, 54, 55, 56, 57, 58
sT0, sT1, sT2, sT3, sT4, sT5 = 59, 60, 61, 62, 63, 64
sW1, sW2, sW3, sCNT = 65, 66, 67, 68
sGRP = 87
sDK = 72
sTS = 88
vLANE = 1


STAMP_ON = [True]


def stamp(i):
    if OPT["diag"] and (STAMP_ON[0] or i in (1, 5)):
        A(f"{'s_memtime' if OPT['diag']==2 else 's_memrealtime'} {s(sTS,2)}")
        A("s_waitcnt lgkmcnt(0)")
        A(f"s_mov_b32 {s(sTS+2+i)}, {s(sTS)}")


def stamp_flush(n):
    if not OPT["diag"]:
        return
    if OPT["diag"] == 4:
        sk, lp = A.new("dg"), A.new("dl")
        A(f"s_lshl_b32 {s(sT0)}, {s(sWG)}, 3")
        A(f"s_add_u32 {s(sT0)}, {s(sT0)}, {s(sWAVE)}")
        A(f"s_cmp_lg_u32 {s(sT0)}, {OPT['dwg']*8+OPT['dwave']}")
        A(f"s_cbranch_scc1 {sk}")
        A(f"s_sub_u32 {s(sT0)}, {s(sTS+2+OPT['dst'])}, {s(sTS+2)}")
        A(f"s_min_u32 {s(sT0)}, {s(sT0)}, 10000")
        A(f"s_mul_i32 {s(sT0)}, {s(sT0)}, {OPT['amp']}")
        A(f"s_add_u32 {s(sT0)}, {s(sT0)}, {OPT['base']}")
        A.label(lp)
        A(f"s_memrealtime {s(sTS,2)}")
        A("s_waitcnt lgkmcnt(0)")
        A(f"s_sub_u32 {s(sT1)}, {s(sTS)}, {s(sTS+2)}")
        A(f"s_cmp_lt_u32 {s(sT1)}, {s(sT0)}")
        A(f"s_cbranch_scc1 {lp}")
        A.label(sk)
        return
    if OPT["diag"] == 3:
        sk = A.new("dg")
        A(f"s_lshl_b32 {s(sT0)}, {s(sWG)}, 3")
        A(f"s_add_u32 {s(sT0)}, {s(sT0)}, {s(sWAVE)}")
        A(f"s_cmp_lg_u32 {s(sT0)}, {OPT['dwg']*8+OPT['dwave']}")
        A(f"s_cbranch_scc1 {sk}")
        A("v_mov_b32 v2, 0")
        for i in range(12):
            A(f"s_sub_u32 {s(sT0)}, {s(sTS+2+i)}, {s(sTS+2)}")
            A(f"v_mov_b32 v3, {s(sT0)}")
            A(f"global_store_dword v2, v3, {s(pDBG,2)} offset:{4*i}")
            A("s_nop 1")
        A.label(sk)
        return
    A(f"s_lshl_b32 {s(sT0)}, {s(sWG)}, 3")
    A(f"s_add_u32 {s(sT0)}, {s(sT0)}, {s(sWAVE)}")
    A(f"s_lshl_b32 {s(sT0)}, {s(sT0)}, 6")
    A(f"s_add_u32 {s(sT0)}, {s(sT0)}, {OFF_TS}")
    A(f"v_mov_b32 v2, {s(sT0)}")
    for i in range(12):
        A(f"v_mov_b32 v3, {s(sTS+2+i)}")
        A(f"global_store_dword v2, v3, {s(pWS,2)} offset:{4*i}")
        A("s_nop 1")


def srd(r, p, nbytes):
    A(f"s_mov_b32 {s(r)}, {s(p)}")
    A(f"s_and_b32 {s(r+1)}, {s(p+1)}, 0xffff")
    A(f"s_mov_b32 {s(r+2)}, {nbytes}")
    A(f"s_mov_b32 {s(r+3)}, 0x20000")


SPIN_MAX = 1 << 16


def poll_global(vaddr, vtmp, base, first_issued=False, sleep=1):
    lp, done, chk = A.new("pl"), A.new("pd"), A.new("pc")
    A(f"s_mov_b32 {s(sCNT)}, 0")
    if first_issued:
        A(f"s_branch {chk}")
    A.label(lp)
    A(f"global_load_dword {v(vtmp)}, {v(vaddr)}, {s(base,2)} sc1")
    A.label(chk)
    A("s_waitcnt vmcnt(0)")
    A(f"v_cmp_ne_u32 vcc, 0, {v(vtmp)}")
    A(f"s_add_u32 {s(sCNT)}, {s(sCNT)}, 1")
    A("s_cmp_eq_u64 vcc, exec")
    A(f"s_cbranch_scc1 {done}")
    A(f"s_sleep {sleep}")
    A(f"s_cmp_lt_u32 {s(sCNT)}, {SPIN_MAX}")
    A(f"s_cbranch_scc1 {lp}")
    A.label(done)


def lds_wait(vaddr, off, val, vt, sleep=0, every=False):
    lp, done = A.new("sl"), A.new("sd")
    A(f"s_mov_b32 {s(sCNT)}, 0")
    A.label(lp)
    A(f"ds_read_b32 {v(vt)}, {v(vaddr)} offset:{off}")
    A(f"s_add_u32 {s(sCNT)}, {s(sCNT)}, 1")
    A("s_waitcnt lgkmcnt(0)")
    if every:
        A(f"v_cmp_gt_u32 vcc, {val}, {v(vt)}")
        A(f"s_cbranch_vccz {done}")
    else:
        A(f"v_cmp_le_u32 vcc, {val}, {v(vt)}")
        A(f"s_cbranch_vccnz {done}")
    if sleep:
        A(f"s_sleep {sleep}")
    A(f"s_cmp_lt_u32 {s(sCNT)}, {SPIN_MAX*16}")
    A(f"s_cbranch_scc1 {lp}")
    A.label(done)


def lds_set(vaddr, off, val, vt):
    A(f"v_mov_b32 {v(vt)}, {val}")
    A(f"ds_write_b32 {v(vaddr)}, {v(vt)} offset:{off}")


def prologue():
    A(f"s_cmp_ge_u32 {s(sWG)}, 256")
    A("s_cbranch_scc1 L_end")
    A(f"s_load_dwordx16 {s(4,16)}, s[0:1], 0")
    A(f"s_load_dwordx8 {s(20,8)}, s[0:1], 64")
    A(f"s_load_dwordx4 {s(28,4)}, s[0:1], 96")
    if OPT["diag"]:
        A(f"{'s_memtime' if OPT['diag']==2 else 's_memrealtime'} {s(sTS,2)}")
    A("v_lshrrev_b32 v2, 6, v0")
    A(f"v_and_b32 {v(vLANE)}, 63, v0")
    A(f"v_readfirstlane_b32 {s(sWAVE)}, v2")
    A(f"s_and_b32 {s(sXCD)}, {s(sWG)}, 7")
    A(f"s_lshr_b32 {s(sJ)}, {s(sWG)}, 3")
    A(f"s_getpc_b64 {s(sT1,2)}")
    A.label("L_pc")
    A("v_and_b32 v2, 0x1e0, v0")
    A(f"v_add_u32 v2, {s(sJ)}, v2")
    A("v_lshlrev_b32 v2, 7, v2")
    A("v_min_u32 v2, L_end-L_pc, v2")
    A(f"global_load_dword v95, v2, {s(sT1,2)}")
    A(f"s_and_b32 {s(sT0)}, {s(sXCD)}, 3")
    A(f"s_lshr_b32 {s(sT1)}, {s(sXCD)}, 2")
    A(f"s_cmp_lt_u32 {s(sJ)}, 4")
    A("s_cbranch_scc1 L_side")
    A(f"s_sub_u32 {s(sJ)}, {s(sJ)}, 4")
    A(f"s_and_b32 {s(sT2)}, {s(sJ)}, 3")
    A(f"s_lshr_b32 {s(sCB)}, {s(sJ)}, 2")
    A(f"s_lshl_b32 {s(sRB)}, {s(sT0)}, 2")
    A(f"s_add_u32 {s(sRB)}, {s(sRB)}, {s(sT2)}")
    A(f"s_mul_i32 {s(sFB)}, {s(sT1)}, 7")
    A(f"s_add_u32 {s(sFB)}, {s(sFB)}, {s(sCB)}")
    A(f"s_lshl_b32 {s(sRB64)}, {s(sT0)}, 1")
    A(f"s_add_u32 {s(sRB64)}, {s(sRB64)}, {s(sT1)}")
    A(f"s_lshl_b32 {s(sRB64)}, {s(sRB64)}, 2")
    A(f"s_add_u32 {s(sRB64)}, {s(sRB64)}, {s(sT2)}")
    A(f"s_add_u32 {s(sGRP)}, {s(sT2)}, {s(sCB)}")
    A(f"s_and_b32 {s(sGRP)}, {s(sGRP)}, 1")


def kernarg_ready():
    A("s_waitcnt lgkmcnt(0)")
    if OPT["diag"]:
        for i in range(12):
            A(f"s_mov_b32 {s(sTS+2+i)}, {s(sTS)}")
        stamp(11)


def side():
    A.label("L_side")
    A.vm = 0
    XB, F, SA = 8, 40, 100
    vR, vQ, vOFF, vT, vT2, vRI = 2, 3, 4, 5, 6, 36
    vM = 38
    sRG, sR64 = sRB, sRB64
    A(f"s_lshl_b32 {s(sR64)}, {s(sT0)}, 1")
    A(f"s_add_u32 {s(sR64)}, {s(sR64)}, {s(sT1)}")
    A(f"s_lshl_b32 {s(sR64)}, {s(sR64)}, 2")
    A(f"s_add_u32 {s(sR64)}, {s(sR64)}, {s(sJ)}")
    A(f"s_lshl_b32 {s(sRG)}, {s(sR64)}, 3")
    A(f"s_add_u32 {s(sRG)}, {s(sRG)}, {s(sWAVE)}")
    A(f"v_lshrrev_b32 {v(vR)}, 3, {v(vLANE)}")
    A(f"v_and_b32 {v(vQ)}, 7, {v(vLANE)}")
    A(f"v_mul_u32_u24 {v(vOFF)}, 896, {v(vR)}")
    A(f"v_lshl_add_u32 {v(vOFF)}, {v(vQ)}, 4, {v(vOFF)}")
    A(f"s_mul_i32 {s(sT2)}, {s(sRG)}, {8*896}")
    A(f"v_add_u32 {v(vOFF)}, {s(sT2)}, {v(vOFF)}")
    kernarg_ready()
    xl = []
    for i in range(7):
        xl.append(A.vmem(f"global_load_dwordx4 {v(XB+4*i,4)}, {v(vOFF)}, {s(pX,2)} offset:{128*i}"))
    srd(rWS, pWS, WS_BYTES)
    order = wd_order()[OPT["nmain"]:]
    vPF = 110
    A(f"s_mul_i32 {s(sT3)}, {s(sJ)}, {448*896}")
    A(f"v_lshlrev_b32 {v(vPF)}, 7, v0")
    A(f"v_min_u32 {v(vPF)}, {447*128}, {v(vPF)}")
    A(f"v_add_u32 {v(vPF)}, {s(sT3)}, {v(vPF)}")

    def pf(ns):
        for n in ns:
            if n >= len(order):
                continue
            A(f"v_add_u32 {v(vPF+1)}, {order[n]*64*896}, {v(vPF)}")
            A.vmem(f"global_load_dword {v(vPF+2+n)}, {v(vPF+1)}, {s(pWD,2)}")
    skip = A.new("nc")
    A(f"s_cmp_lg_u32 {s(sWG)}, 31")
    A(f"s_cbranch_scc1 {skip}")
    for i in range(4):
        A(f"v_mov_b32 {v(SA+i)}, 0")
    A(f"v_lshlrev_b32 {v(vT2)}, 4, v0")
    A(f"s_mov_b32 {s(sT3)}, {OFF_FL}")
    A(f"buffer_store_dwordx4 {v(SA,4)}, {v(vT2)}, {s(rWS,4)}, {s(sT3)} offen sc1")
    A("s_waitcnt vmcnt(0)")
    A.label(skip)
    C = SA
    A(f"s_mov_b32 {s(sT3)}, 0x3f803f80")
    A(f"v_mov_b32 {v(C)}, 0")
    A(f"v_mov_b32 {v(C+1)}, 0")
    for i in range(7):
        A.wait_vm(xl[i])
        if i == 6:
            stamp(1)
            if OPT["sidepf"]:
                pf(range(OPT["pfe"]))
        for d in range(4):
            k = 4 * i + d
            A(f"v_dot2c_f32_bf16 {v(C+k%2)}, {s(sT3)}, {v(XB+k)}")
            A(f"v_lshlrev_b32 {v(F+2*k)}, 16, {v(XB+k)}")
            A(f"v_and_b32 {v(F+2*k+1)}, 0xffff0000, {v(XB+k)}")

    def reduce8():
        for m in ("quad_perm:[1,0,3,2]", "quad_perm:[2,3,0,1]", "row_half_mirror"):
            A("s_nop 1")
            A(f"v_add_f32_dpp {v(C)}, {v(C)}, {v(C)} {m} row_mask:0xf bank_mask:0xf")
    A("s_nop 2")
    A(f"v_add_f32 {v(C)}, {v(C)}, {v(C+1)}")
    reduce8()
    A(f"v_mul_f32 {v(vM)}, {f2u(-1.0/448):#x}, {v(C)}")
    A(f"v_mov_b32 {v(vM+1)}, {v(vM)}")
    for k in range(28):
        A(f"v_pk_add_f32 {v(F+2*k,2)}, {v(F+2*k,2)}, {v(vM,2)}")
    for k in range(28):
        a = C + 2 * (k % 2)
        if k < 2:
            A(f"v_pk_mul_f32 {v(a,2)}, {v(F+2*k,2)}, {v(F+2*k,2)}")
        else:
            A(f"v_pk_fma_f32 {v(a,2)}, {v(F+2*k,2)}, {v(F+2*k,2)}, {v(a,2)}")
    A(f"v_pk_add_f32 {v(C,2)}, {v(C,2)}, {v(C+2,2)}")
    A("s_nop 0")
    A(f"v_add_f32 {v(C)}, {v(C)}, {v(C+1)}")
    reduce8()
    A(f"v_mul_f32 {v(C)}, {f2u(1.0/448):#x}, {v(C)}")
    A(f"v_cvt_pk_bf16_f32 {v(vRI)}, {v(vM)}, {v(vM)}")
    A(f"v_cvt_pk_bf16_f32 {v(C)}, {v(C)}, {v(C)}")
    A(f"v_lshlrev_b32 {v(C)}, 16, {v(C)}")
    A(f"v_add_f32 {v(C)}, {f2u(1e-5):#x}, {v(C)}")
    A(f"v_cvt_pk_bf16_f32 {v(C)}, {v(C)}, {v(C)}")
    A(f"v_lshlrev_b32 {v(C)}, 16, {v(C)}")
    A(f"v_sqrt_f32 {v(C)}, {v(C)}")
    A(f"v_lshlrev_b32 {v(C+2)}, 16, {v(vRI)}")
    A(f"v_cvt_pk_bf16_f32 {v(C)}, {v(C)}, {v(C)}")
    A(f"v_lshlrev_b32 {v(C)}, 16, {v(C)}")
    A(f"v_rcp_f32 {v(vRI+1)}, {v(C)}")
    A(f"v_sub_f32 {v(C+2)}, {v(C+2)}, {v(vM)}")
    A(f"v_mul_f32 {v(C+2)}, {v(C+2)}, {v(vRI+1)}")
    A(f"v_mov_b32 {v(C+3)}, {v(C+2)}")
    A(f"v_mov_b32 {v(C)}, {v(vRI+1)}")
    A(f"v_mov_b32 {v(C+1)}, {v(vRI+1)}")
    A(f"v_lshlrev_b32 {v(vT2)}, 3, {v(vR)}")
    A(f"s_lshl_b32 {s(sT3)}, {s(sRG)}, 6")
    A(f"s_add_u32 {s(sT3)}, {s(sT3)}, {OFF_ST}")
    A(f"s_mov_b32 exec_lo, 0x01010101")
    A(f"s_mov_b32 exec_hi, 0x01010101")
    A.vmem(f"buffer_store_dwordx2 {v(vRI,2)}, {v(vT2)}, {s(rWS,4)}, {s(sT3)} offen sc1")
    A("s_mov_b64 exec, -1")
    A(f"s_mul_i32 {s(sT3)}, {s(sWAVE)}, 7680")
    A(f"v_mul_u32_u24 {v(vT2)}, 960, {v(vR)}")
    A(f"v_lshl_add_u32 {v(vT2)}, {v(vQ)}, 4, {v(vT2)}")
    A(f"v_add_u32 {v(vT2)}, {s(sT3)}, {v(vT2)}")
    for k in range(28):
        A(f"v_pk_fma_f32 {v(F+2*k,2)}, {v(F+2*k,2)}, {v(C,2)}, {v(C+2,2)}")
    for i in range(7):
        for d in range(4):
            k = 4 * i + d
            A(f"v_cvt_pk_bf16_f32 {v(XB+k)}, {v(F+2*k)}, {v(F+2*k+1)}")
        A(f"ds_write_b128 {v(vT2)}, {v(XB+4*i,4)} offset:{128*i}")
    A(f"v_bfe_u32 {v(vT2)}, {v(vLANE)}, 2, 2")
    A(f"v_mul_u32_u24 {v(vT2)}, 960, {v(vT2)}")
    A(f"v_lshrrev_b32 {v(vOFF)}, 4, {v(vLANE)}")
    A(f"v_lshl_add_u32 {v(vT2)}, {v(vOFF)}, 5, {v(vT2)}")
    A(f"v_and_b32 {v(vOFF)}, 3, {v(vLANE)}")
    A(f"v_lshl_add_u32 {v(vT2)}, {v(vOFF)}, 3, {v(vT2)}")
    A(f"v_add_u32 {v(vT2)}, {s(sT3)}, {v(vT2)}")
    for i in range(7):
        A(f"ds_read_b64_tr_b16 {v(F+4*i,2)}, {v(vT2)} offset:{128*i}")
        A(f"ds_read_b64_tr_b16 {v(F+4*i+2,2)}, {v(vT2)} offset:{128*i+3840}")
    L2B = 65536
    A(f"s_lshl_b32 {s(sT3)}, {s(sWAVE)}, 4")
    A(f"s_add_u32 {s(sT3)}, {s(sT3)}, {L2B}")
    A(f"v_mul_u32_u24 {v(vT2)}, 144, {v(vLANE)}")
    A(f"v_add_u32 {v(vT2)}, {s(sT3)}, {v(vT2)}")
    for i in range(7):
        A(f"s_waitcnt lgkmcnt({min(15, 12-2*i+i)})")
        A(f"ds_write_b128 {v(vT2)}, {v(F+4*i,4)} offset:{64*144*i}")
    A(f"s_mul_i32 {s(sT3)}, {s(sWAVE)}, {56*144}")
    A(f"s_add_u32 {s(sT3)}, {s(sT3)}, {L2B}")
    A(f"v_mul_u32_u24 {v(vT2)}, 144, {v(vR)}")
    A(f"v_lshl_add_u32 {v(vT2)}, {v(vQ)}, 4, {v(vT2)}")
    A(f"v_add_u32 {v(vT2)}, {s(sT3)}, {v(vT2)}")
    A(f"v_lshlrev_b32 {v(vOFF)}, 12, {v(vR)}")
    A(f"v_lshl_add_u32 {v(vOFF)}, {v(vQ)}, 4, {v(vOFF)}")
    A(f"s_mul_i32 {s(sT3)}, {s(sWAVE)}, {56*4096}")
    A(f"s_lshl_b32 {s(sT4)}, {s(sR64)}, 7")
    A(f"s_add_u32 {s(sT3)}, {s(sT3)}, {s(sT4)}")
    A("s_waitcnt lgkmcnt(0)")
    A("s_barrier")
    for i in range(7):
        A(f"ds_read_b128 {v(XB+4*i,4)}, {v(vT2)} offset:{8*144*i}")
    for i in range(7):
        A(f"s_waitcnt lgkmcnt({6-i})")
        A.vmem(f"buffer_store_dwordx4 {v(XB+4*i,4)}, {v(vOFF)}, {s(rWS,4)}, {s(sT3)} offen sc1")
        if i < 6:
            A(f"s_add_u32 {s(sT3)}, {s(sT3)}, {8*4096}")
    stamp(2)
    A("s_waitcnt vmcnt(0)")
    A("s_barrier")
    stamp(3)
    skip = A.new("nf")
    A(f"s_cmp_lg_u32 {s(sWAVE)}, 0")
    A(f"s_cbranch_scc1 {skip}")
    A(f"s_lshl_b32 {s(sT3)}, {s(sWG)}, 2")
    A(f"v_mov_b32 {v(vT2)}, {s(sT3)}")
    A(f"v_mov_b32 {v(vT)}, 1")
    A("s_mov_b64 exec, 1")
    A(f"global_store_dword {v(vT2)}, {v(vT)}, {s(pDBG,2)} offset:128 sc1")
    A("s_mov_b64 exec, -1")
    A.label(skip)
    if OPT["sidepf"]:
        pf(range(OPT["pfe"], 7))
        A("s_waitcnt vmcnt(0)")
        stamp(4)
    stamp_flush(4)
    A("s_endpgm")


def final():
    A.label("L_fin")
    stamp(5)
    stamp_flush(6)
    A.label("L_end")
    A("s_endpgm")


def kgen_slot(R, hook):
    e = A
    la, ai, cr, ci, dt, dt2 = [R["P"] + k for k in range(6)]
    t = R["tmp"]
    z = t
    E = {1: t + 2, 8: t + 4, 256: t + 6}
    q = [t + 8, t + 10]
    Ak = [t + 12 + 2 * k for k in range(8)]
    PK = R["PK"]
    AF, BF, DK, wa, ra = R["AF"], R["BF"], R["DK"], R["wa"], R["ra"]
    q0 = q[0]
    e(f"v_mul_f32 {v(q0)}, {LOG2E:#x}, {v(la)}")
    e(f"v_exp_f32 {v(q0)}, {v(q0)}")
    e(f"v_mul_f32 {v(z+1)}, {v(ai)}, {v(dt)}")
    e(f"v_cvt_pk_bf16_f32 {v(q0)}, {v(q0)}, {v(q0)}")
    e(f"v_mul_f32 {v(z+1)}, {INV2PI:#x}, {v(z+1)}")
    e(f"v_lshlrev_b32 {v(q0)}, 16, {v(q0)}")
    e(f"v_mul_f32 {v(q0)}, {v(q0)}, {v(dt)}")
    e(f"v_mul_f32 {v(z)}, {NLOG2E:#x}, {v(q0)}")
    tmp = {1: Ak[1], 8: Ak[2], 256: Ak[3]}
    for p in (1, 8, 256):
        a = z if p == 1 else tmp[p]
        if p > 1:
            e(f"v_mul_f32 {v(a)}, {f2u(float(p)):#x}, {v(z)}")
            e(f"v_mul_f32 {v(a+1)}, {f2u(float(p)):#x}, {v(z+1)}")
        e(f"v_fract_f32 {v(tmp[p]+1)}, {v(a+1)}")
        e(f"v_exp_f32 {v(tmp[p])}, {v(a)}")
        e(f"v_cos_f32 {v(E[p])}, {v(tmp[p]+1)}")
        e(f"v_sin_f32 {v(E[p]+1)}, {v(tmp[p]+1)}")
    e(f"v_pk_mul_f32 {v(Ak[0],2)}, {v(cr,2)}, {v(dt,2)} op_sel:[0,1] op_sel_hi:[1,1]")
    for p in (1, 8, 256):
        e(f"v_pk_mul_f32 {v(E[p],2)}, {v(E[p],2)}, {v(tmp[p],2)} op_sel_hi:[1,0]" + (" neg_hi:[1,0]" if p == 8 else ""))
    st = [0]
    if OPT.get("p0"):
        stamp(2)

    def pack(dw, a, b):
        e(f"v_cvt_pk_bf16_f32 {v(PK+8*st[0]+dw)}, {v(a)}, {v(b)}")
        e(f"v_cvt_pk_bf16_f32 {v(PK+8*st[0]+4+dw)}, {v(a+1)}, {v(b+1)}")

    def flush(slot):
        e(f"ds_write_b128 {v(wa+slot)}, {v(PK+8*st[0],4)}")
        e(f"ds_write_b128 {v(wa+slot)}, {v(PK+8*st[0]+4,4)} offset:4096")
        st[0] ^= 1

    def cmul(*ops):
        for n, (d, a, b) in enumerate(ops):
            e(f"v_pk_mul_f32 {v(q[n],2)}, {v(a,2)}, {v(b,2)} op_sel:[1,1] op_sel_hi:[1,0]")
        for n, (d, a, b) in enumerate(ops):
            e(f"v_pk_fma_f32 {v(d,2)}, {v(a,2)}, {v(b,2)}, {v(q[n],2)} op_sel:[0,0,0] op_sel_hi:[0,1,1] neg_lo:[0,0,1]")

    def frags(dst):
        for i in range(8):
            for h in range(2):
                e(f"ds_read_b64_tr_b16 {v(dst+4*i+2*h,2)}, {v(ra+h)} offset:{1024*i}")
    E2 = z
    cmul((Ak[1], Ak[0], E[1]), (E2, E[1], E[1]))
    pack(0, Ak[0], Ak[1])
    for k in (2, 4, 6):
        cmul((Ak[k], Ak[k - 2], E2), (Ak[k + 1], Ak[k - 1], E2))
        pack(k // 2, Ak[k], Ak[k + 1])
    flush(0)
    G = E[256]
    cmul((Ak[0], Ak[0], G), (Ak[2], Ak[2], G)); pack(0, Ak[0], Ak[2])
    cmul((Ak[4], Ak[4], G), (Ak[6], Ak[6], G)); pack(2, Ak[4], Ak[6])
    cmul((Ak[1], Ak[0], G), (Ak[4], Ak[4], G)); pack(1, Ak[1], Ak[4])
    cmul((Ak[0], Ak[1], G), (Ak[4], Ak[4], G)); pack(3, Ak[0], Ak[4])
    flush(1)
    G2, E16 = Ak[2], E[1]
    cmul((G2, G, G), (E16, E[8], E[8]))
    cmul((Ak[1], Ak[1], G2), (Ak[0], Ak[0], G2)); pack(0, Ak[1], Ak[0])
    cmul((Ak[1], Ak[1], G2), (Ak[0], Ak[0], G2)); pack(2, Ak[1], Ak[0])
    X, Y = Ak[3], Ak[5]
    cmul((Ak[1], Ak[1], G2), (Y, E[8], E16)); pack(1, Ak[1], Ak[1])
    flush(2)
    if OPT.get("p0"):
        stamp(3)
    frags(AF)
    hook(0)
    if OPT.get("p0"):
        stamp(4)
    e(f"v_cvt_pk_bf16_f32 {v(PK+8*st[0])}, 1.0, {v(E[8])}")
    e(f"v_cvt_pk_bf16_f32 {v(PK+8*st[0]+4)}, 0, {v(E[8]+1)}")
    pack(1, E16, Y)
    px = E16
    for i in range(2, 16):
        cmul((X, px, E16), (Y, Y, E16))
        px = X
        pack(i % 4, X, Y)
        if i % 4 == 3:
            flush(i // 4)
    if OPT.get("p0"):
        stamp(9)
    frags(BF)
    hook(1)
    if OPT.get("p0"):
        stamp(10)
    for i in range(8):
        e(f"s_waitcnt lgkmcnt({14-2*i})")
        e(f"v_mfma_f32_32x32x16_bf16 {v(DK,16)}, {v(AF+4*i,4)}, {v(BF+4*i,4)}, {v(DK,16) if i else 0}")


WD_SLOT = [XR + 16384, WR + 2 * 16384, WR + 3 * 16384, XR + 2 * 16384, WR, WR + 16384, XR]
vWO, vXO, vDO = 200, 201, 202
sWO, sXO, sWoff, sWoff1, sXoff, sDoff, sDbase, sW4K = 69, 70, 71, 72, 73, 74, 75, 76
sCH, sCI, sKB = 82, 83, 84
KR_ = dict(P=128, tmp=134, PK=48, wa=162, ra=166, AF=16, BF=168, DK=104)
wid, xid, did = {}, {}, {}


def dma_w(c):
    for i in range(2):
        for mat in range(2):
            A(f"s_add_u32 m0, {s(sWO)}, {WR+(c%4)*16384+mat*8192+i*1024}")
            last = (i == 1 and mat == 1)
            if i == 1 and mat == 0:
                A(f"s_add_u32 {s(sWoff)}, {s(sWoff)}, {32*3584}")
            elif last:
                A(f"s_cmp_eq_u32 {s(sWoff)}, {448*3584}")
            else:
                A("s_nop 0")
            wid[c] = A.vmem(f"buffer_load_dwordx4 {v(vWO)}, {s(rWU if mat else rWG,4)}, {s(sWoff1 if i else sWoff)} offen lds")
            if last:
                A(f"s_cselect_b32 {s(sWoff)}, 0, {s(sWoff)}")
                A(f"s_add_u32 {s(sWoff1)}, {s(sWoff)}, {4*3584}")


def dma_x(xc, iis):
    for ii in iis:
        A(f"s_add_u32 m0, {s(sXO)}, {XR+(xc%3)*16384+ii*4096}")
        A(f"s_add_u32 {s(sT0)}, {s(sXoff)}, {ii*32*896}")
        xid[xc] = A.vmem(f"buffer_load_dwordx4 {v(vXO)}, {s(rX,4)}, {s(sT0)} offen lds")
        if ii == 3:
            A(f"s_add_u32 {s(sXoff)}, {s(sXoff)}, 128")
            A(f"s_cmp_eq_u32 {s(sXoff)}, 896")
            A(f"s_cselect_b32 {s(sXoff)}, 0, {s(sXoff)}")


def dma_d(pp, vd):
    for i in range(4):
        A(f"s_add_u32 m0, {s(sW4K)}, {WD_SLOT[pp%7]+i*1024}")
        A(f"s_add_u32 {s(sT0)}, {s(sDbase)}, {s(sDoff)}")
        did[pp] = A.vmem(f"buffer_load_dwordx4 {v(vd)}, {s(rWD,4)}, {s(sT0)} offen lds")
        A(f"s_add_u32 {s(sDoff)}, {s(sDoff)}, {8*896}")
        if i == 3 and pp % 2 == 1:
            A(f"s_cmp_eq_u32 {s(sDoff)}, {448*896}")
            A(f"s_cselect_b32 {s(sDoff)}, 0, {s(sDoff)}")


def wd_setup(vd, vt, vt2, first_piece):
    A(f"v_lshrrev_b32 {v(vt)}, 3, {v(vLANE)}")
    A(f"v_mul_u32_u24 {v(vd)}, 896, {v(vt)}")
    A(f"v_lshrrev_b32 {v(vt)}, 2, {v(vLANE)}")
    A(f"v_lshrrev_b32 {v(vt2)}, 4, {v(vLANE)}")
    A(f"v_xor_b32 {v(vt)}, {v(vt)}, {v(vt2)}")
    A(f"v_and_b32 {v(vt)}, 1, {v(vt)}")
    A(f"v_lshl_add_u32 {v(vd)}, {v(vt)}, 6, {v(vd)}")
    A(f"v_and_b32 {v(vt)}, 3, {v(vLANE)}")
    A(f"v_lshl_add_u32 {v(vd)}, {v(vt)}, 4, {v(vd)}")
    A(f"s_and_b32 {s(sW4K)}, {s(sWAVE)}, 3")
    A(f"s_mul_i32 {s(sDbase)}, {s(sW4K)}, {448*896}")
    A(f"s_lshl_b32 {s(sT1)}, {s(sCB)}, 7")
    A(f"s_add_u32 {s(sDbase)}, {s(sDbase)}, {s(sT1)}")
    A(f"s_lshl_b32 {s(sW4K)}, {s(sW4K)}, 12")
    r0 = (first_piece * 32) % 448
    r1 = (OPT["rot2"] * 64 + first_piece * 32) % 448
    A(f"s_cmp_eq_u32 {s(sGRP)}, 0")
    A(f"s_mov_b32 {s(sT1)}, {r1*896}")
    A(f"s_cselect_b32 {s(sDoff)}, {r0*896}, {s(sT1)}")
    srd(rWD, pWD, 448 * 1792 * 2)


cXA, cWA, cL16, cT, cT2, cFL, cD, cZ, cDB = 2, 6, 8, 9, 10, 11, 12, 13, 14
cSM, cSEL, cSAC = 64, 88, 96
sRH, sFH = sW1, sW2
xRow, xC8, xT, xT2, xT3, xMine, xOther, xB, xKA, xUA, xG4 = 2, 3, 4, 5, 6, 7, 8, 9, 10, 14, 15
xGA, xPA, xTA = 64, 82, 84
xPF, sPB = 86, 80
xFP, xFO = 252, 254
sXW, sPH, sUBc, sTBc, sKR = sW1, sW2, sW3, 77, 78


def by_ph(f0, f1):
    hi, join = A.new("ph"), A.new("pj")
    A(f"s_cmp_eq_u32 {s(sPH)}, 1")
    A(f"s_cbranch_scc1 {hi}")
    f0()
    A(f"s_branch {join}")
    A.label(hi)
    f1()
    A.label(join)


def c_setup():
    vT, vT2, vFL, vL16 = cT, cT2, cFL, cL16
    A(f"s_and_b32 {s(sRH)}, {s(sWAVE)}, 1")
    A(f"s_lshr_b32 {s(sFH)}, {s(sWAVE)}, 1")
    A(f"v_and_b32 {v(vT)}, 31, {v(vLANE)}")
    A(f"s_lshl_b32 {s(sT0)}, {s(sRH)}, 13")
    A(f"s_add_u32 {s(sT0)}, {s(sT0)}, {XR}")
    A(f"v_lshl_add_u32 {v(vT)}, {v(vT)}, 7, {s(sT0)}")
    A(f"v_bfe_u32 {v(vT2)}, {v(vLANE)}, 1, 3")
    A(f"v_lshrrev_b32 {v(vFL)}, 5, {v(vLANE)}")
    A(f"v_xor_b32 {v(vT2)}, {v(vT2)}, {v(vFL)}")
    for k in range(4):
        A(f"v_xor_b32 {v(cXA+k)}, {2*k}, {v(vT2)}")
        A(f"v_lshl_add_u32 {v(cXA+k)}, {v(cXA+k)}, 4, {v(vT)}")
    wd_setup(cD, vT, vT2, 7)
    A(f"v_bfe_u32 {v(vL16)}, {v(vLANE)}, 4, 1")
    A(f"v_lshlrev_b32 {v(vL16)}, 5, {v(vL16)}")
    A(f"v_and_b32 {v(vT)}, 3, {v(vLANE)}")
    A(f"v_lshl_add_u32 {v(vL16)}, {v(vT)}, 3, {v(vL16)}")
    A(f"v_bfe_u32 {v(vT2)}, {v(vLANE)}, 2, 2")
    A(f"v_lshl_add_u32 {v(cDB)}, {v(vFL)}, 2, {v(vT2)}")
    A(f"v_lshl_add_u32 {v(cDB)}, {v(cDB)}, 7, {s(sW4K)}")
    A(f"v_add_u32 {v(cDB)}, {v(cDB)}, {v(vL16)}")
    A(f"v_bfe_u32 {v(vT)}, {v(vLANE)}, 3, 1")
    A(f"v_lshl_add_u32 {v(cDB)}, {v(vT)}, 6, {v(cDB)}")
    A(f"v_lshl_add_u32 {v(vT)}, {v(vFL)}, 3, {v(vT2)}")
    A(f"v_lshl_add_u32 {v(vT)}, {v(vT)}, 8, {v(vL16)}")
    A(f"v_add_u32 {v(vT)}, {WR}, {v(vT)}")
    A(f"v_xor_b32 {v(vT2)}, {s(sWAVE)}, {v(vT2)}")
    A(f"v_lshl_add_u32 {v(cWA)}, {v(vT2)}, 6, {v(vT)}")
    A(f"v_xor_b32 {v(cWA+1)}, 64, {v(cWA)}")
    A(f"v_lshlrev_b32 {v(vL16)}, 4, {v(vLANE)}")
    A(f"s_lshl_b32 {s(sT0)}, {s(sWAVE)}, 2")
    A(f"v_mov_b32 {v(cZ)}, {s(sT0)}")
    for i in range(28):
        A(f"v_mov_b32 {v(cSM+i)}, 0")
    A("s_mov_b32 exec_lo, 0x00100001")
    A("s_mov_b32 exec_hi, 0x00100001")
    for i in range(4):
        A(f"v_mov_b32 {v(cSEL+i)}, 0x3f803f80")
    A("s_mov_b64 exec, -1")
    A(f"v_min_u32 {v(vFL)}, 6, {v(vLANE)}")
    A(f"s_mul_i32 {s(sT0)}, {s(sWAVE)}, 28")
    A(f"s_lshl_b32 {s(sT1)}, {s(sRB64)}, 7")
    A(f"s_add_u32 {s(sT0)}, {s(sT0)}, {s(sT1)}")
    A(f"s_add_u32 {s(sT0)}, {s(sT0)}, {OFF_FL}")
    A(f"v_lshl_add_u32 {v(vFL)}, {v(vFL)}, 2, {s(sT0)}")
    A(f"s_lshl_b32 {s(sT2)}, {s(sRH)}, 13")
    A(f"s_cmp_eq_u32 {s(sCI)}, 0")
    A(f"s_mov_b32 {s(sKB)}, {XR+2*16384}")
    A(f"s_cselect_b32 {s(sKB)}, {WR+3*16384}, {s(sKB)}")
    A(f"s_add_u32 {s(sKB)}, {s(sKB)}, {s(sT2)}")


def x_setup():
    vT, vT2, vT3 = xT, xT2, xT3
    A(f"s_sub_u32 {s(sXW)}, {s(sWAVE)}, 4")
    A(f"s_and_b32 {s(sPH)}, {s(sXW)}, 1")
    A(f"s_mul_i32 {s(sKB)}, {s(sXW)}, {KA_SZ}")
    A(f"s_mul_i32 {s(sKR)}, {s(sCI)}, {2*KA_SZ}")
    A(f"s_mul_i32 {s(sUBc)}, {s(sCI)}, {UB_SZ}")
    A(f"s_add_u32 {s(sUBc)}, {s(sUBc)}, {UB}")
    A(f"s_mul_i32 {s(sTBc)}, {s(sCI)}, {TB_SZ}")
    A(f"s_add_u32 {s(sTBc)}, {s(sTBc)}, {TB}")
    for i in range(4):
        A(f"v_mov_b32 {v(16+i)}, 0")
    A(f"v_min_u32 {v(vT2)}, 29, {v(vLANE)}")
    A(f"v_lshl_add_u32 {v(vT2)}, {v(vT2)}, 4, {s(sUBc)}")
    A(f"ds_write_b128 {v(vT2)}, {v(16,4)}")
    A(f"v_and_b32 {v(vT2)}, 3, {v(vLANE)}")
    A(f"v_lshlrev_b32 {v(vT2)}, 4, {v(vT2)}")
    A(f"ds_write_b128 {v(vT2)}, {v(16,4)} offset:{FG}")
    A(f"v_mov_b32 {v(vT2)}, {s(sTBc)}")
    A(f"ds_write_b32 {v(vT2)}, {v(16)}")
    A(f"s_add_u32 {s(sTBc)}, {s(sTBc)}, 4")
    A(f"s_lshl_b32 {s(sT0)}, {s(sXW)}, 2")
    A(f"v_mov_b32 {v(xMine)}, {s(sT0)}")
    A(f"v_xor_b32 {v(xOther)}, 4, {v(xMine)}")
    A(f"s_cmp_eq_u32 {s(sGRP)}, 0")
    A(f"s_mov_b32 {s(sT0)}, {((OPT['rot1']*64+96)%448)*3584}")
    A(f"s_cselect_b32 {s(sWoff)}, {96*3584}, {s(sT0)}")
    A(f"s_mov_b32 {s(sT0)}, {((OPT['rot1']+2)%7)*128}")
    A(f"s_cselect_b32 {s(sXoff)}, 256, {s(sT0)}")
    A(f"s_add_u32 {s(sWoff1)}, {s(sWoff)}, {4*3584}")
    wd_setup(vDO, vT, vT2, 0)
    r2 = 2 * OPT["rot1"]
    got = {0, 1, 2, r2 % 14, (r2 + 1) % 14, (r2 + 2) % 14}
    rest = []
    for k in range(3, 14):
        for c in (k, (k + r2) % 14):
            if c not in got and c not in rest:
                rest.append(c)
    rest = (rest + [rest[-1]] * 8)[:8]
    A(f"s_lshr_b32 {s(sT0)}, {s(sXW)}, 1")
    A(f"s_lshl_b32 {s(sT0)}, {s(sT0)}, 4")
    A(f"s_lshr_b32 {s(sT0)}, {sum(c << (4*i) for i, c in enumerate(rest)):#x}, {s(sT0)}")
    A(f"v_lshrrev_b32 {v(vT)}, 4, {v(vLANE)}")
    A(f"v_lshlrev_b32 {v(vT)}, 2, {v(vT)}")
    A(f"v_bfe_u32 {v(vT)}, {s(sT0)}, {v(vT)}, 4")
    A(f"v_bfe_u32 {v(vT2)}, {v(vLANE)}, 1, 3")
    A(f"v_lshl_add_u32 {v(vT)}, {v(vT)}, 5, {v(vT2)}")
    A(f"v_mul_u32_u24 {v(vT)}, 3584, {v(vT)}")
    A(f"v_and_b32 {v(vT2)}, 1, {v(vLANE)}")
    A(f"v_lshl_add_u32 {v(vT)}, {v(vT2)}, 7, {v(vT)}")
    A(f"s_and_b32 {s(sT0)}, {s(sJ)}, 3")
    A(f"s_mul_i32 {s(sT0)}, {s(sT0)}, {8*3584}")
    A(f"s_lshl_b32 {s(sT1)}, {s(sFB)}, 8")
    A(f"s_add_u32 {s(sT0)}, {s(sT0)}, {s(sT1)}")
    A(f"v_add_u32 {v(xPF)}, {s(sT0)}, {v(vT)}")
    A(f"s_cmp_eq_u32 {s(sPH)}, 0")
    A(f"s_cselect_b32 {s(sPB)}, {s(pWG)}, {s(pWU)}")
    A(f"s_cselect_b32 {s(sPB+1)}, {s(pWG+1)}, {s(pWU+1)}")
    gx = {0, 1, OPT["rot1"] % 7, (OPT["rot1"] + 1) % 7}
    rx = []
    for k in range(2, 7):
        for c in (k, (k + OPT["rot1"]) % 7):
            if c not in gx and c not in rx:
                rx.append(c)
    rx = (rx + [rx[-1]] * 4)[:4]
    A(f"s_lshr_b32 {s(sT0)}, {s(sCB)}, 1")
    A(f"s_lshl_b32 {s(sT0)}, {s(sT0)}, 2")
    A(f"s_lshr_b32 {s(sT0)}, {sum(c << (4*i) for i, c in enumerate(rx)):#x}, {s(sT0)}")
    A(f"s_and_b32 {s(sT0)}, {s(sT0)}, 15")
    A(f"s_lshl_b32 {s(sT0)}, {s(sT0)}, 7")
    A(f"s_lshl_b32 {s(sT1)}, {s(sRB)}, 1")
    A(f"s_and_b32 {s(sT2)}, {s(sCB)}, 1")
    A(f"s_add_u32 {s(sT1)}, {s(sT1)}, {s(sT2)}")
    A(f"s_lshl_b32 {s(sT1)}, {s(sT1)}, 2")
    A(f"s_add_u32 {s(sT1)}, {s(sT1)}, {s(sXW)}")
    A(f"s_mul_i32 {s(sT1)}, {s(sT1)}, {16*896}")
    A(f"s_add_u32 {s(sT0)}, {s(sT0)}, {s(sT1)}")
    A(f"v_and_b32 {v(vT)}, 15, {v(vLANE)}")
    A(f"v_mul_u32_u24 {v(vT)}, 896, {v(vT)}")
    A(f"v_add_u32 {v(xPF+1)}, {s(sT0)}, {v(vT)}")
    od = wd_order()[:max(1, OPT["nmain"])]
    od = (od + [od[-1]] * 4)[:4]
    A(f"s_lshl_b32 {s(sT0)}, {s(sXW)}, 2")
    A(f"s_lshr_b32 {s(sT0)}, {sum(c << (4*i) for i, c in enumerate(od)):#x}, {s(sT0)}")
    A(f"s_and_b32 {s(sT0)}, {s(sT0)}, 15")
    A(f"s_and_b32 {s(sT1)}, {s(sJ)}, 3")
    A(f"s_mul_i32 {s(sT1)}, {s(sT1)}, 7")
    A(f"s_add_u32 {s(sT0)}, {s(sT0)}, {s(sT1)}")
    A(f"s_mul_i32 {s(sT0)}, {s(sT0)}, 7")
    A(f"s_add_u32 {s(sT0)}, {s(sT0)}, {s(sCB)}")
    A(f"s_lshl_b32 {s(sT0)}, {s(sT0)}, 13")
    A(f"v_lshl_add_u32 {v(xPF+4)}, {v(vLANE)}, 7, {s(sT0)}")
    A(f"s_cmp_eq_u32 {s(sCI)}, 0")
    A(f"s_mov_b32 {s(sT0)}, {XR+2*16384}")
    A(f"s_cselect_b32 {s(sT0)}, {WR+3*16384}, {s(sT0)}")
    A(f"v_lshl_add_u32 {v(xPA)}, {v(vLANE)}, 2, {s(sT0)}")
    A(f"s_xor_b32 {s(sT0)}, {s(sXW)}, 1")
    A(f"s_mul_i32 {s(sT0)}, {s(sT0)}, {KA_SZ}")
    A(f"v_lshl_add_u32 {v(xPA+1)}, {v(vLANE)}, 2, {s(sT0)}")

    def gaddr(ph):
        A(f"v_and_b32 {v(vT)}, 31, {v(vLANE)}")
        A(f"v_lshrrev_b32 {v(vT2)}, 5, {v(vLANE)}")
        if ph == 0:
            A(f"v_lshl_add_u32 {v(vT)}, {v(vT)}, 1, {v(vT2)}")
            A(f"v_lshl_add_u32 {v(xTA)}, {v(vT)}, 4, {s(sTBc)}")
            A(f"s_add_u32 {s(sT0)}, {s(sTBc)}, 1024")
            A(f"v_lshl_add_u32 {v(xTA+1)}, {v(vT)}, 3, {s(sT0)}")
        else:
            A(f"s_add_u32 {s(sT0)}, {s(sTBc)}, {384*4}")
            A(f"v_lshl_add_u32 {v(xTA)}, {v(vLANE)}, 3, {s(sT0)}")
            A(f"v_lshl_add_u32 {v(vT)}, {v(vT2)}, 6, {v(vT)}")
            A(f"s_add_u32 {s(sT0)}, {s(sTBc)}, {512*4}")
            A(f"v_lshl_add_u32 {v(xTA+1)}, {v(vT)}, 2, {s(sT0)}")
        A(f"v_lshlrev_b32 {v(vT)}, 4, {v(vLANE)}")
        A(f"v_sub_u32 {v(vT)}, {2047-1024*ph}, {v(vT)}")
        if ph:
            A(f"v_cmp_gt_u32 vcc, 256, {v(vT)}")
            A(f"v_subrev_u32 {v(vT2)}, 16, {v(vT)}")
            A(f"v_mov_b32 {v(vT3)}, 144")
            A(f"v_cndmask_b32 {v(vT)}, {v(vT)}, {v(vT3)}, vcc")
            A(f"v_mov_b32 {v(vT3)}, 128")
            A(f"v_cndmask_b32 {v(vT2)}, {v(vT3)}, {v(vT2)}, vcc")
        else:
            A(f"v_mov_b32 {v(vT2)}, 128")
        A(f"v_cvt_f32_u32 {v(vT)}, {v(vT)}")
        A(f"v_subrev_u32 {v(vT2)}, 0x4300, {v(vT2)}")
        A(f"v_lshl_add_u32 {v(vT2)}, {v(vT2)}, 2, {s(sTBc)}")
        for k in (range(0, 17, 2) if ph else (0, 8, 16)):
            A(f"v_subrev_f32 {v(xGA+k)}, {f2u(float(k)):#x}, {v(vT)}")
            A(f"v_subrev_f32 {v(xGA+k+1)}, {f2u(float(k+1)):#x}, {v(vT)}")
            A(f"v_cvt_pk_bf16_f32 {v(vT3)}, {v(xGA+k)}, {v(xGA+k+1)}")
            A(f"v_mad_u32_u16 {v(xGA+k)}, {v(vT3)}, 4, {v(vT2)}")
            if k < 16 and ph:
                A(f"v_mad_u32_u16 {v(xGA+k+1)}, {v(vT3)}, 4, {v(vT2)} op_sel:[1,0,0,0]")
    by_ph(lambda: gaddr(0), lambda: gaddr(1))


def warm_d():
    sk = A.new("wd")
    if OPT["nmain"] < 4:
        A(f"s_cmp_ge_u32 {s(sXW)}, {OPT['nmain']}")
        A(f"s_cbranch_scc1 {sk}")
    A(f"global_load_dword {v(xPF+5)}, {v(xPF+4)}, {s(pWD,2)}")
    A.label(sk)


def phase0():
    A.vm = 0
    R = KR_
    vT, vT2, vT3 = 120, 121, 122
    P = R["P"]
    A(f"s_mul_i32 {s(sCH0)}, {s(sXCD)}, 28")
    A(f"s_add_u32 {s(sCH0)}, {s(sCH0)}, {s(sJ)}")
    A(f"s_lshl_b32 {s(sCH0)}, {s(sCH0)}, 1")
    A(f"s_bfe_u32 {s(sCI)}, {s(sWAVE)}, 0x10001")
    A(f"s_add_u32 {s(sCH)}, {s(sCH0)}, {s(sCI)}")
    A(f"s_lshr_b32 {s(sT0)}, {s(sWAVE)}, 2")
    A(f"s_lshl_b32 {s(sT0)}, {s(sT0)}, 1")
    A(f"s_and_b32 {s(sT1)}, {s(sWAVE)}, 1")
    A(f"s_add_u32 {s(sT0)}, {s(sT0)}, {s(sT1)}")
    A(f"s_lshl_b32 {s(sT0)}, {s(sT0)}, 7")
    A(f"s_lshl_b32 {s(sT3)}, {s(sCH)}, 9")
    A(f"s_add_u32 {s(sT0)}, {s(sT0)}, {s(sT3)}")
    A(f"v_lshl_add_u32 {v(vT3)}, {v(vLANE)}, 1, {s(sT0)}")
    A(f"s_lshl_b32 {s(sT3)}, {s(sCH0)}, 1")
    A(f"s_and_b32 {s(sT5)}, {s(sWAVE)}, 3")
    A(f"v_lshrrev_b32 {v(vT)}, 4, {v(vLANE)}")
    A(f"v_mul_u32_u24 {v(vWO)}, 3584, {v(vT)}")
    A(f"v_bfe_u32 {v(vT2)}, {v(vLANE)}, 2, 2")
    A(f"v_xor_b32 {v(vT2)}, {v(vT2)}, {v(vT)}")
    A(f"v_lshl_add_u32 {v(vWO)}, {v(vT2)}, 6, {v(vWO)}")
    A(f"v_and_b32 {v(vT2)}, 3, {v(vLANE)}")
    A(f"v_lshl_add_u32 {v(vWO)}, {v(vT2)}, 4, {v(vWO)}")
    A(f"s_mul_i32 {s(sT0)}, {s(sT5)}, {8*3584}")
    A(f"s_lshl_b32 {s(sT2)}, {s(sFB)}, 8")
    A(f"s_add_u32 {s(sT0)}, {s(sT0)}, {s(sT2)}")
    A(f"v_add_u32 {v(vWO)}, {s(sT0)}, {v(vWO)}")
    A(f"s_lshl_b32 {s(sT0)}, {s(sT1)}, 2")
    A(f"v_add_u32 {v(vT)}, {s(sT0)}, {v(vT)}")
    A(f"v_and_b32 {v(vT2)}, 7, {v(vLANE)}")
    A(f"v_xor_b32 {v(vT2)}, {v(vT2)}, {v(vT)}")
    A(f"v_lshrrev_b32 {v(vT)}, 3, {v(vLANE)}")
    A(f"v_mul_u32_u24 {v(vXO)}, 896, {v(vT)}")
    A(f"v_lshl_add_u32 {v(vXO)}, {v(vT2)}, 4, {v(vXO)}")
    A(f"s_lshl_b32 {s(sT0)}, {s(sRB)}, 4")
    A(f"s_add_u32 {s(sT0)}, {s(sT0)}, {s(sT5)}")
    A(f"s_mul_i32 {s(sT0)}, {s(sT0)}, {8*896}")
    A(f"v_add_u32 {v(vXO)}, {s(sT0)}, {v(vXO)}")
    A(f"s_lshl_b32 {s(sWO)}, {s(sT5)}, 11")
    A(f"s_lshl_b32 {s(sXO)}, {s(sT5)}, 10")
    A(f"s_mul_i32 {s(sWoff)}, {s(sGRP)}, {OPT['rot1']*64*3584}")
    A(f"s_add_u32 {s(sWoff1)}, {s(sWoff)}, {4*3584}")
    A(f"s_mul_i32 {s(sXoff)}, {s(sGRP)}, {OPT['rot1']*128}")
    kernarg_ready()
    for k, p in enumerate((pLA, pAI, pCR, pCI)):
        par = A.vmem(f"global_load_ushort {v(P+k)}, {v(vT3)}, {s(p,2)}")
    A(f"s_load_dword {s(sT4)}, {s(pLDT,2)}, {s(sT3)}")
    srd(rWG, pWG, 448 * 1792 * 2)
    srd(rWU, pWU, 448 * 1792 * 2)
    srd(rX, pX, 2048 * 448 * 2)
    isx, join = A.new("px"), A.new("pj")
    A(f"s_cmp_ge_u32 {s(sWAVE)}, 4")
    A(f"s_cbranch_scc1 {isx}")
    dma_w(0); dma_x(0, range(4))
    c_setup()
    A(f"s_branch {join}")
    A.label(isx)
    x_setup()
    A.label(join)
    srd(rWS, pWS, WS_BYTES)

    def c_only(f):
        sk = A.new("co")
        A(f"s_cmp_ge_u32 {s(sWAVE)}, 4")
        A(f"s_cbranch_scc1 {sk}")
        f()
        A.label(sk)
    A(f"v_lshl_add_u32 {v(vT)}, {v(vLANE)}, 6, {s(sKB)}")
    A(f"v_bfe_u32 {v(vT2)}, {v(vLANE)}, 1, 2")
    for k in range(4):
        A(f"v_xor_b32 {v(vT3)}, {k}, {v(vT2)}")
        A(f"v_lshl_add_u32 {v(R['wa']+k)}, {v(vT3)}, 4, {v(vT)}")
    A(f"v_bfe_u32 {v(vT2)}, {v(vLANE)}, 2, 2")
    A(f"v_lshrrev_b32 {v(vT)}, 5, {v(vLANE)}")
    A(f"v_lshl_add_u32 {v(vT)}, {v(vT)}, 3, {v(vT2)}")
    A(f"v_lshl_add_u32 {v(vT)}, {v(vT)}, 6, {s(sKB)}")
    A(f"v_bfe_u32 {v(vT2)}, {v(vLANE)}, 4, 1")
    A(f"v_lshl_add_u32 {v(vT)}, {v(vT2)}, 5, {v(vT)}")
    A(f"v_lshrrev_b32 {v(vT2)}, 1, {v(vLANE)}")
    A(f"v_lshrrev_b32 {v(vT3)}, 3, {v(vLANE)}")
    A(f"v_xor_b32 {v(vT2)}, {v(vT2)}, {v(vT3)}")
    A(f"v_and_b32 {v(vT2)}, 1, {v(vT2)}")
    A(f"v_lshl_add_u32 {v(vT)}, {v(vT2)}, 4, {v(vT)}")
    A(f"v_and_b32 {v(vT2)}, 1, {v(vLANE)}")
    A(f"v_lshl_add_u32 {v(R['ra'])}, {v(vT2)}, 3, {v(vT)}")
    A(f"v_add_u32 {v(R['ra']+1)}, 256, {v(R['ra'])}")
    A(f"v_xor_b32 {v(R['ra']+1)}, 32, {v(R['ra']+1)}")
    A("s_waitcnt lgkmcnt(0)")
    A(f"s_lshl_b32 {s(sT0)}, {s(sT4)}, 16")
    A(f"s_and_b32 {s(sT2)}, {s(sT4)}, 0xffff0000")
    A(f"s_cmp_eq_u32 {s(sCI)}, 0")
    A(f"s_cselect_b32 {s(sT0)}, {s(sT0)}, {s(sT2)}")
    A(f"v_mov_b32 {v(vT)}, {LOG2E:#x}")
    A(f"v_mul_f32 {v(vT)}, {s(sT0)}, {v(vT)}")
    A(f"v_exp_f32 {v(vT)}, {v(vT)}")
    A("s_nop 0")
    A(f"v_cvt_pk_bf16_f32 {v(vT)}, {v(vT)}, {v(vT)}")
    A(f"v_lshlrev_b32 {v(P+4)}, 16, {v(vT)}")
    A(f"v_add_f32 {v(P+5)}, {v(P+4)}, {v(P+4)}")
    A(f"v_lshl_add_u32 {v(vT)}, {v(vLANE)}, 2, {s(sKB)}")
    stamp(6)
    isx, join = A.new("px"), A.new("pj")
    A(f"s_cmp_ge_u32 {s(sWAVE)}, 4")
    A(f"s_cbranch_scc1 {isx}")
    dma_w(1)
    A.wait_vm(par)
    A(f"s_branch {join}")
    A.label(isx)
    A("s_waitcnt vmcnt(0)")
    A.label(join)
    stamp(7)
    for k in range(4):
        A(f"v_lshlrev_b32 {v(P+k)}, 16, {v(P+k)}")
    def warm():
        A(f"global_load_dword {v(xPF+2)}, {v(xPF+1)}, {s(pX,2)}")
        A(f"global_load_dword {v(xPF+3)}, {v(xPF)}, {s(sPB,2)}")

    def hook(n):
        isx, join = A.new("hx"), A.new("hj")
        A(f"s_cmp_ge_u32 {s(sWAVE)}, 4")
        A(f"s_cbranch_scc1 {isx}")
        dma_w(2) if n == 0 else dma_x(1, range(4))
        A(f"s_branch {join}")
        A.label(isx)
        if OPT["pfh"] == n:
            warm()
        if OPT["wdh"] == n:
            warm_d()
        A.label(join)
    kgen_slot(R, hook)
    A("s_nop 11")
    DK = R["DK"]
    for r in range(0, 10, 2):
        A(f"ds_write2st64_b32 {v(vT)}, {v(DK+r)}, {v(DK+r+1)} offset0:{r} offset1:{r+1}")
    A(f"ds_write_b32 {v(vT)}, {v(DK+10)} offset:2560")
    stamp(8)
    A(f"s_cmp_ge_u32 {s(sWAVE)}, 4")
    A("s_cbranch_scc1 L_xw")
    if OPT.get("p0"):
        STAMP_ON[0] = False


def cwave():
    vXA, vWA, vL16, vT, vT2, vFL, vD, vZ = cXA, cWA, cL16, cT, cT2, cFL, cD, cZ
    FR = 16
    SM, SEL, SAC = cSM, cSEL, cSAC
    ACC = 128

    def xf(st, rbk): return FR + 24 * st + 4 * rbk
    def wf(st, mat, j): return FR + 24 * st + 8 + 4 * (2 * mat + j)
    def acc(mat, j, rbk): return ACC + 16 * ((mat * 2 + j) * 2 + rbk)

    if OPT["prio"]:
        A(f"s_setprio {OPT['prio']}")

    def reads(st, c, ks):
        xs = ((c // 2) % 3) * 16384
        k4 = (c % 2) * 2 + ks
        ws_ = (c % 4) * 16384 + ks * 4096
        r = []
        r.append(f"ds_read_b128 {v(xf(st,0),4)}, {v(vXA+k4)} offset:{xs}")
        for j in range(2):
            for mat in range(2):
                for h in range(2):
                    r.append(f"ds_read_b64_tr_b16 {v(wf(st,mat,j)+2*h,2)}, {v(vWA+j)} offset:{ws_+mat*8192+h*1024}")
            if j == 0:
                r.append(f"ds_read_b128 {v(xf(st,1),4)}, {v(vXA+k4)} offset:{xs+4096}")
        return r

    def mf(st, first):
        m = []
        for j in range(2):
            for rbk in range(2):
                for mat in range(2):
                    a = acc(mat, j, rbk)
                    cc = "0" if first else v(a, 16)
                    m.append(f"v_mfma_f32_32x32x16_bf16 {v(a,16)}, {v(wf(st,mat,j),4)}, {v(xf(st,rbk),4)}, {cc}")
        return m

    def smf(st, first):
        return [f"v_mfma_f32_16x16x32_bf16 {v(SAC+4*mat,4)}, {v(SEL,4)}, {v(wf(st,mat,0),4)}, {'0' if first else v(SAC+4*mat,4)}"
                for mat in range(2)]

    def mix(st, first):
        b, sm = mf(st, first), smf(st, first)
        return b[:5] + sm + b[5:]

    def phase(ms, rs, extra=None):
        rs = list(rs)
        for i, m in enumerate(ms):
            if i == len(ms) - 1:
                A("s_waitcnt lgkmcnt(0)")
            A(m)
            for _ in range(2):
                if rs:
                    A(rs.pop(0))
            if i == 7 and extra:
                extra()

    mid = [0]

    def mloads():
        A(f"s_lshl_b32 {s(sT2)}, {s(sRB)}, 1")
        A(f"s_add_u32 {s(sT2)}, {s(sT2)}, {s(sRH)}")
        A(f"s_lshl_b32 {s(sT2)}, {s(sT2)}, 9")
        A(f"s_add_u32 {s(sT2)}, {s(sT2)}, {OFF_ST}")
        A(f"v_lshrrev_b32 {v(vT)}, 1, {v(vL16)}")
        A("s_mov_b32 exec_hi, 0")
        for rbk in range(2):
            mid[0] = A.vmem(f"buffer_load_dword {v(SM+16+4*rbk)}, {v(vT)}, {s(rWS,4)}, {s(sT2)} offen offset:{256*rbk} sc1")
        A("s_mov_b32 exec_hi, -1")

    sHA = 78

    def haddr():
        A(f"s_lshl_b32 {s(sT0)}, {s(sRB)}, 1")
        A(f"s_add_u32 {s(sT0)}, {s(sT0)}, {s(sRH)}")
        A(f"s_lshl_b32 {s(sT1)}, {s(sFB)}, 1")
        A(f"s_add_u32 {s(sT1)}, {s(sT1)}, {s(sFH)}")
        A(f"s_mul_i32 {s(sT2)}, {s(sT0)}, {224*1024}")
        A(f"s_lshl_b32 {s(sT3)}, {s(sT1)}, 12")
        A(f"s_add_u32 {s(sT2)}, {s(sT2)}, {s(sT3)}")
        A(f"s_add_u32 {s(sT2)}, {s(sT2)}, {OFF_H}")
        A(f"s_lshl_b32 {s(sT3)}, {s(sRH)}, 11")
        A(f"s_add_u32 {s(sHA)}, {s(sT2)}, {s(sT3)}")
        A(f"s_xor_b32 {s(sHA+1)}, {s(sHA)}, 2048")
        A(f"s_add_u32 {s(sHA+2)}, {s(sHA)}, {112*1024}")
        A(f"s_add_u32 {s(sHA+3)}, {s(sHA+1)}, {112*1024}")
        A(f"s_lshl_b32 {s(sT4)}, {s(sT0)}, 7")
        A(f"s_lshl_b32 {s(sT1)}, {s(sT1)}, 2")
        A(f"s_add_u32 {s(sT4)}, {s(sT4)}, {s(sT1)}")
        A(f"s_add_u32 {s(sT4)}, {s(sT4)}, {OFF_FL}")
    haddr()
    A.wait_vm(xid[0])
    A("s_waitcnt lgkmcnt(0)")
    A("s_barrier")
    stamp(1)
    for r in reads(0, 0, 0):
        A(r)
    A("s_waitcnt lgkmcnt(0)")
    for c in range(14):
        phase(mix(0, c == 0), reads(1, c, 1))
        if c < 13:
            if c == 0:
                A.wait_vm(wid[1])
            if c == 1:
                A.wait_vm(xid[1])
            A("s_barrier")
            if c in (3, 8):
                stamp({3: 9, 8: 10}[c])
            phase(mix(1, False), reads(0, c + 1, 0), mloads if c + 1 == H1_BAR else None)
    vDA = 2
    ms = mf(1, False)
    for m in smf(1, False) + ms[:3]:
        A(m)
    A(f"s_lshl_b32 {s(sT0)}, {s(sWAVE)}, 9")
    A(f"v_lshrrev_b32 {v(vT)}, 2, {v(vL16)}")
    A(f"v_add_u32 {v(vT)}, {s(sT0)}, {v(vT)}")
    A(f"v_add_u32 {v(vDA)}, {XR}, {v(cDB)}")
    A(f"v_xor_b32 {v(vDA+1)}, 64, {v(vDA)}")
    for mat in range(2):
        d = SM + 8 * mat
        A(f"v_cvt_pk_bf16_f32 {v(d)}, {v(SAC+4*mat)}, {v(SAC+4*mat)}")
        A(f"v_lshlrev_b32 {v(d)}, 16, {v(d)}")
        A(f"v_sub_f32 {v(vT2)}, {v(SAC+4*mat)}, {v(d)}")
        A(f"v_cvt_pk_bf16_f32 {v(d)}, {v(d)}, {v(vT2)}")
        if mat == 0:
            A(ms[3])
    A(f"v_add_u32 {v(vT2)}, {SX}, {v(vT)}")
    A(f"ds_write2st64_b32 {v(vT2)}, {v(SM)}, {v(SM+8)} offset0:0 offset1:1")
    A(f"v_xor_b32 {v(vT)}, 512, {v(vT)}")
    A(ms[4])
    A(f"v_add_u32 {v(vDA+2)}, {WR}, {v(cDB)}")
    A(f"v_xor_b32 {v(vDA+3)}, 64, {v(vDA+2)}")
    A(ms[5])
    A("s_waitcnt lgkmcnt(0)")
    A("s_barrier")
    ACC2, HB, W2 = 192, 128, 176
    HD = OPT["hd"]

    def w1(pos):
        return 104 + 8 * pos if pos < 3 else 16 + 8 * (pos - 3)

    def wd_reads(dst, pos):
        sl = WD_SLOT[(pos % 14) // 2]
        hi = sl >= WR
        off = sl - (WR if hi else XR) + (pos % 2) * 2048
        return [f"ds_read_b64_tr_b16 {v(dst+4*cj+2*h,2)}, {v(vDA+2*hi+cj)} offset:{off+h*1024}"
                for cj in range(2) for h in range(2)]
    for mat in range(2):
        A(f"ds_read_b32 {v(SM+8*mat+4)}, {v(vT)} offset:{SX+256*mat}")
    for m in ms[6:]:
        A(m)
    A.wait_vm(mid[0])
    rs = [r for pos in range(4) for r in wd_reads(w1(pos), pos)]
    for j in range(2):
        if j == 1:
            A("s_waitcnt lgkmcnt(8)")
        for rbk in range(2):
            for mat in range(2):
                a = acc(mat, j, rbk)
                A(f"v_mfma_f32_32x32x16_bf16 {v(a,16)}, {v(SM+4*(2*mat+j),4)}, {v(SM+16+4*rbk,4)}, {v(a,16)}")
                A(rs.pop(0))
                A(rs.pop(0))
    stamp(2)
    for j in range(2):
        for rbk in range(2):
            g_, u_ = acc(0, j, rbk), acc(1, j, rbk)
            for ab in range(2):
                b = 8 * ab
                for e in range(8):
                    A(f"v_max_f32 {v(g_+b+e)}, 0, {v(g_+b+e)}")
                if OPT["b15"]:
                    for e in range(0, 8, 2):
                        A(f"v_pk_mul_f32 {v(g_+b+e,2)}, {v(g_+b+e,2)}, {v(u_+b+e,2)}")
                else:
                    for e in range(8):
                        A(f"v_mul_f32 {v(g_+b+e)}, {v(g_+b+e)}, {v(u_+b+e)}")
                for e in range(4):
                    A(f"v_cvt_pk_bf16_f32 {v(g_+b+e)}, {v(g_+b+2*e)}, {v(g_+b+2*e+1)}")
                hs = A.vmem(f"buffer_store_dwordx4 {v(g_+b,4)}, {v(vL16)}, {s(rWS,4)}, {s(sHA+2*rbk+j)} offen offset:{ab*1024} sc1")
    stamp(6)
    A("s_waitcnt lgkmcnt(0)")
    if OPT["b15"]:
        A("s_barrier")
    else:
        lds_wait(vZ, F_WD, 1, vT)
    for pos in range(4, 10):
        for r in wd_reads(w1(pos), pos):
            A(r)
    dma_d(7, vD)
    dma_d(8, vD)
    A(f"v_mov_b32 {v(vT)}, {s(sT4)}")
    A(f"v_mov_b32 {v(vT2)}, 1")
    A("s_waitcnt lgkmcnt(0)")
    if OPT["early9"]:
        dma_d(9, vD)
    A.wait_vm(hs)
    A("s_mov_b64 exec, 1")
    A.vmem(f"global_store_dword {v(vT)}, {v(vT2)}, {s(pWS,2)} sc1")
    A("s_mov_b64 exec, -1")
    stamp(3)
    if not OPT["early9"]:
        dma_d(9, vD)
    dma_d(10, vD)
    lds_wait(vZ, F_WD, 2, vT)
    for pos in range(10, 14):
        for r in wd_reads(w1(pos), pos):
            A(r)
    dma_d(11, vD)
    A("s_waitcnt lgkmcnt(0)")
    dma_d(12, vD)
    pl = A.vmem(f"global_load_dword {v(vT)}, {v(vFL)}, {s(pWS,2)} sc1")
    dma_d(13, vD)
    sHB, sHoff, sH0, sH1 = 78, 79, 80, 81
    A(f"s_mul_i32 {s(sHB)}, {s(sRB64)}, {224*1024}")
    A(f"s_mul_i32 {s(sT0)}, {s(sWAVE)}, {28*1024}")
    A(f"s_add_u32 {s(sHB)}, {s(sHB)}, {s(sT0)}")
    A(f"s_add_u32 {s(sHB)}, {s(sHB)}, {OFF_H}")
    A(f"s_mul_i32 {s(sHoff)}, {s(sGRP)}, {OPT['rot2']*4096}")
    vPW = [6, 7, 12, 14]
    A(f"s_add_u32 {s(sT0)}, {s(sW4K)}, {WR}")
    A(f"v_lshl_add_u32 {v(vPW[0])}, {v(vLANE)}, 2, {s(sT0)}")
    for k, rot in ((1, 16), (2, 128), (3, 144)):
        A(f"v_xor_b32 {v(vPW[k])}, {rot}, {v(vPW[0])}")
    ok = A.new("h2")
    A.wait_vm(pl)
    stamp(8)
    A(f"v_cmp_ne_u32 vcc, 0, {v(vT)}")
    A("s_nop 0")
    A("s_cmp_eq_u64 vcc, exec")
    A(f"s_cbranch_scc1 {ok}")
    poll_global(vFL, vT, pWS, sleep=OPT["psl"])
    A.label(ok)
    stamp(4)
    hid = {}

    def h_load(ks):
        if ks % 4 == 0:
            if ks > 0:
                A(f"s_add_u32 {s(sHoff)}, {s(sHoff)}, 4096")
                A(f"s_cmp_eq_u32 {s(sHoff)}, {28*1024}")
                A(f"s_cselect_b32 {s(sHoff)}, 0, {s(sHoff)}")
            A(f"s_add_u32 {s(sH0)}, {s(sHB)}, {s(sHoff)}")
            A(f"s_add_u32 {s(sH1)}, {s(sH0)}, {112*1024}")
        for rbk in range(2):
            hid[ks] = A.vmem(f"buffer_load_dwordx4 {v(HB+8*(ks%HD)+4*rbk,4)}, {v(vL16)}, {s(rWS,4)}, {s(sH0+rbk)} offen offset:{(ks%4)*1024} sc1")
    for ks in range(HD):
        h_load(ks)
    for ks in range(28):
        A.wait_vm(hid[ks])
        if ks == OPT["goat"]:
            lds_set(vZ, F_GO, 1, vT)
        if ks >= 13 and ks + 1 < 28:
            for r in wd_reads(W2 + 8 * ((ks + 1) % 2), ks + 1):
                A(r)
        if ks >= 14:
            A(f"s_waitcnt lgkmcnt({4 if ks + 1 < 28 else 0})")
        wb = w1(ks) if ks < 14 else W2 + 8 * (ks % 2)
        for rbk in range(2):
            for cj in range(2):
                a = ACC2 + 16 * (2 * rbk + cj)
                cc = "0" if ks == 0 else v(a, 16)
                A(f"v_mfma_f32_32x32x16_bf16 {v(a,16)}, {v(HB+8*(ks%HD)+4*rbk,4)}, {v(wb+4*cj,4)}, {cc}")
        if ks + HD < 28:
            h_load(ks + HD)
    stamp(7)
    A("s_nop 8")
    for t in range(4):
        for r in (0, 1, 2, 3, 8, 9, 10, 11):
            A(f"ds_write2st64_b32 {v(vPW[r%4])}, {v(ACC2+16*t+r)}, {v(ACC2+16*t+r+4)} offset0:{64*t+r} offset1:{64*t+r+4}")
    A("s_waitcnt lgkmcnt(0)")
    A("s_barrier")
    A("s_branch L_fin")


def xwave():
    A.label("L_xw")
    A.vm = 0
    vT, vT2, vT3, vMine, vOther = xT, xT2, xT3, xMine, xOther
    vRow, vC8, vKA, vUA, vB, vG4 = xRow, xC8, xKA, xUA, xB, xG4
    DK = KR_["DK"]
    U0 = 204
    XV, STV, DV, TV, DF = 212, 220, 224, 228, 244
    GV, PK = 16, 40
    vFLG, vFV = 16, 17
    CA, FS = 32, 64

    def sum_partials(regs):
        prs = [regs[i:i + 2] for i in range(0, len(regs), 2)]
        for n, (va, o) in enumerate(((xPA, 0), (xPA, 32), (xPA + 1, 0))):
            for k, pr in enumerate(prs):
                d = GV + 8 * n + 2 * k
                if len(pr) == 2:
                    A(f"ds_read2st64_b32 {v(d,2)}, {v(va)} offset0:{o+pr[0]} offset1:{o+pr[1]}")
                else:
                    A(f"ds_read_b32 {v(d)}, {v(va)} offset:{(o+pr[0])*256}")
        A("s_waitcnt lgkmcnt(0)")
        for n in range(3):
            for k, r in enumerate(regs):
                A(f"v_add_f32 {v(DK+r)}, {v(DK+r)}, {v(GV+8*n+k)}")

    def i1_lo():
        sum_partials([0, 1, 2, 3, 4, 5])
        A(f"ds_write2_b32 {v(xTA)}, {v(DK)}, {v(DK+1)} offset0:0 offset1:1")
        A(f"ds_write2_b32 {v(xTA)}, {v(DK+2)}, {v(DK+3)} offset0:2 offset1:3")
        A(f"ds_write2_b32 {v(xTA+1)}, {v(DK+4)}, {v(DK+5)} offset0:0 offset1:1")

    def i1_hi():
        sum_partials([6, 7, 8, 9, 10])
        A(f"ds_write2_b32 {v(xTA)}, {v(DK+6)}, {v(DK+7)} offset0:0 offset1:1")
        A(f"ds_write2_b32 {v(xTA+1)}, {v(DK+8)}, {v(DK+9)} offset0:0 offset1:32")
        A("s_mov_b64 exec, 1")
        A(f"ds_write_b32 {v(xTA+1)}, {v(DK+10)} offset:{128*4}")
        A("s_mov_b64 exec, -1")

    def gather(ph):
        for k in (range(17) if ph else (0, 8, 16)):
            A(f"ds_read_b32 {v(GV+k)}, {v(xGA+k)}")
        A("s_waitcnt lgkmcnt(0)")
        src = list(range(GV, GV + 17)) if ph else [GV] * 4 + [GV + 8] * 7 + [GV + 16] * 6
        for cp in range(2):
            for k in range(8):
                A(f"v_cvt_pk_bf16_f32 {v(PK+8*cp+k)}, {v(src[2*k+cp])}, {v(src[2*k+cp+1])}")

    def kr_addr():
        A(f"s_lshl_b32 {s(sT0)}, {s(sPH)}, 11")
        A(f"s_add_u32 {s(sT1)}, {s(sT0)}, {s(sKR)}")
        A(f"v_lshl_add_u32 {v(vT)}, {v(vLANE)}, 5, {s(sT1)}")
        for i in range(4):
            A(f"v_mov_b32 {v(GV+i)}, 0")
        A(f"s_mul_i32 {s(sT0)}, {s(sPH)}, {KR_PITCH}")
        A(f"s_add_u32 {s(sT0)}, {s(sT0)}, {s(sKR)}")
        A(f"v_and_b32 {v(vT2)}, 1, {v(vLANE)}")
        A(f"v_lshl_add_u32 {v(vT2)}, {v(vT2)}, 4, {s(sT0)}")

    def kr_write(cp):
        A(f"ds_write_b128 {v(vT)}, {v(PK+8*cp,4)} offset:{cp*KR_PITCH}")
        A(f"ds_write_b128 {v(vT)}, {v(PK+8*cp+4,4)} offset:{cp*KR_PITCH+16}")
        if cp:
            A(f"ds_write_b128 {v(vT2)}, {v(GV,4)} offset:4096")

    def conv_setup():
        A(f"v_and_b32 {v(vB)}, 15, {v(vLANE)}")
        A(f"v_lshrrev_b32 {v(vG4)}, 4, {v(vLANE)}")
        A(f"v_sub_u32 {v(vT)}, 2031, {v(vB)}")
        A(f"v_and_b32 {v(vT2)}, 1, {v(vT)}")
        A(f"v_mul_u32_u24 {v(vT2)}, {KR_PITCH}, {v(vT2)}")
        A(f"v_lshrrev_b32 {v(vT)}, 1, {v(vT)}")
        A(f"v_lshl_add_u32 {v(vT)}, {v(vT)}, 2, {v(vT2)}")
        A(f"v_lshl_add_u32 {v(vT)}, {v(vG4)}, 4, {v(vT)}")
        A(f"s_lshl_b32 {s(sT0)}, {s(sPH)}, 8")
        A(f"s_sub_u32 {s(sT1)}, {s(sKR)}, {s(sT0)}")
        A(f"v_add_u32 {v(vT)}, {s(sT1)}, {v(vT)}")
        for p in range(4):
            A(f"v_subrev_u32 {v(vKA+p)}, {512*(2*p+1)+192}, {v(vT)}")
        A(f"s_sub_u32 {s(sT1)}, {s(sUBc)}, {s(sT0)}")
        A(f"s_add_u32 {s(sT1)}, {s(sT1)}, {448-192}")
        A(f"v_lshl_add_u32 {v(vUA)}, {v(vB)}, 5, {s(sT1)}")
        A(f"v_lshl_add_u32 {v(vUA)}, {v(vG4)}, 4, {v(vUA)}")

    ids = {}

    def t_loads():
        A(f"v_bfe_u32 {v(vRow)}, v0, 3, 5")
        A(f"v_and_b32 {v(vC8)}, 7, v0")
        A(f"v_mul_u32_u24 {v(xFO)}, 896, {v(vRow)}")
        A(f"v_lshl_add_u32 {v(xFO)}, {v(vC8)}, 4, {v(xFO)}")
        A(f"s_mul_i32 {s(sT1)}, {s(sRB64)}, {64*896}")
        A(f"s_lshl_b32 {s(sT2)}, {s(sCB)}, 7")
        A(f"s_add_u32 {s(sT1)}, {s(sT1)}, {s(sT2)}")
        A(f"v_add_u32 {v(xFO)}, {s(sT1)}, {v(xFO)}")
        A(f"v_add_u32 {v(xFO+1)}, {32*896}, {v(xFO)}")
        A.vmem(f"global_load_dwordx4 {v(XV,4)}, {v(xFO)}, {s(pX,2)}")
        A.vmem(f"global_load_dwordx4 {v(XV+4,4)}, {v(xFO+1)}, {s(pX,2)}")
        A(f"v_lshl_add_u32 {v(vT)}, {v(vC8)}, 4, {s(sT2)}")
        A.vmem(f"global_load_dwordx4 {v(DV,4)}, {v(vT)}, {s(pDS,2)}")
        A(f"v_lshrrev_b32 {v(vT)}, 2, {v(vC8)}")
        A(f"v_lshlrev_b32 {v(xFP)}, 14, {v(vT)}")
        A(f"v_lshrrev_b32 {v(vT)}, 3, {v(vRow)}")
        A(f"v_lshl_add_u32 {v(xFP)}, {v(vT)}, 10, {v(xFP)}")
        A(f"v_and_b32 {v(vT)}, 3, {v(vRow)}")
        A(f"v_lshl_add_u32 {v(xFP)}, {v(vT)}, 8, {v(xFP)}")
        A(f"v_lshrrev_b32 {v(vT)}, 1, {v(vRow)}")
        A(f"v_lshrrev_b32 {v(vT2)}, 2, {v(vRow)}")
        A(f"v_xor_b32 {v(vT)}, {v(vT)}, {v(vT2)}")
        A(f"v_and_b32 {v(vT)}, 1, {v(vT)}")
        A(f"v_lshl_add_u32 {v(xFP)}, {v(vT)}, 7, {v(xFP)}")
        A(f"v_and_b32 {v(vT)}, 3, {v(vC8)}")
        A(f"v_lshl_add_u32 {v(xFP)}, {v(vT)}, 5, {v(xFP)}")
        A(f"v_and_b32 {v(vT)}, 1, {v(vRow)}")
        A(f"v_lshl_add_u32 {v(xFP)}, {v(vT)}, 4, {v(xFP)}")
        A(f"v_add_u32 {v(xFP)}, {WR}, {v(xFP)}")
        A(f"v_xor_b32 {v(xFP+1)}, 16, {v(xFP)}")

    def h1_issue():
        A(f"v_or_b32 {v(vFLG)}, 32, {v(vLANE)}")
        A(f"v_lshlrev_b32 {v(vFLG)}, 2, {v(vFLG)}")
        ids["h1"] = A.vmem(f"global_load_dword {v(vFV)}, {v(vFLG)}, {s(pDBG,2)} sc1")

    def h1_check():
        ok = A.new("h1")
        A.wait_vm(ids["h1"])
        A(f"v_cmp_ne_u32 vcc, 0, {v(vFV)}")
        A("s_nop 0")
        A("s_cmp_eq_u64 vcc, exec")
        A(f"s_cbranch_scc1 {ok}")
        poll_global(vFLG, vFV, pDBG, sleep=8)
        A.label(ok)
        stamp(9)

    def u_loads():
        A(f"s_lshl_b32 {s(sT0)}, {s(sPH)}, 11")
        A(f"s_lshl_b32 {s(sT1)}, {s(sCH)}, 12")
        A(f"s_add_u32 {s(sT1)}, {s(sT1)}, {s(sT0)}")
        A(f"v_lshlrev_b32 {v(vT)}, 4, {v(vLANE)}")
        A.vmem(f"buffer_load_dwordx4 {v(U0,4)}, {v(vT)}, {s(rWS,4)}, {s(sT1)} offen sc1")
        A.vmem(f"buffer_load_dwordx4 {v(U0+4,4)}, {v(vT)}, {s(rWS,4)}, {s(sT1)} offen offset:1024 sc1")
        A(f"s_lshl_b32 {s(sT1)}, {s(sRB64)}, 9")
        A(f"s_add_u32 {s(sT1)}, {s(sT1)}, {OFF_ST}")
        A(f"v_lshlrev_b32 {v(vT)}, 3, {v(vRow)}")
        A.vmem(f"buffer_load_dwordx2 {v(STV,2)}, {v(vT)}, {s(rWS,4)}, {s(sT1)} offen sc1")
        ids["u"] = A.vmem(f"buffer_load_dwordx2 {v(STV+2,2)}, {v(vT)}, {s(rWS,4)}, {s(sT1)} offen offset:256 sc1")
        A(f"s_add_u32 {s(sT1)}, {s(sT0)}, {s(sUBc)}")
        A(f"v_lshl_add_u32 {v(vT2)}, {v(vLANE)}, 4, {s(sT1)}")

    def u_write():
        A.wait_vm(ids["u"])
        A(f"ds_write_b128 {v(vT2)}, {v(U0,4)} offset:480")
        A(f"ds_write_b128 {v(vT2)}, {v(U0+4,4)} offset:{480+1024}")

    def t_compute():
        for d in range(4):
            A(f"v_lshlrev_b32 {v(DF+2*d)}, 16, {v(DV+d)}")
            A(f"v_and_b32 {v(DF+2*d+1)}, 0xffff0000, {v(DV+d)}")
        for i in range(2):
            A(f"v_lshlrev_b32 {v(STV+2*i)}, 16, {v(STV+2*i)}")
            for d in range(4):
                A(f"v_lshlrev_b32 {v(TV+8*i+2*d)}, 16, {v(XV+4*i+d)}")
                A(f"v_and_b32 {v(TV+8*i+2*d+1)}, 0xffff0000, {v(XV+4*i+d)}")
            for k in range(8):
                A(f"v_add_f32 {v(vT3)}, {v(TV+8*i+k)}, {v(STV+2*i)}")
                A(f"v_mul_f32 {v(vT3)}, {v(vT3)}, {v(STV+2*i+1)}")
                A(f"v_fmac_f32 {v(TV+8*i+k)}, {v(DF+k)}, {v(vT3)}")
            A(f"v_mul_f32 {v(STV+2*i+1)}, {v(STV+2*i+1)}, {v(STV+2*i+1)}")

    def fa(st, q): return FS + 64 * st + 4 * q
    def fb_(st, x): return FS + 64 * st + 32 + 4 * x

    def creads(st, kp):
        r = []
        for q in range(8):
            o = 128 * (1 - (q & 1)) + 16 * (3 - kp)
            r.append(f"ds_read_b128 {v(fb_(st,q),4)}, {v(vUA)} offset:{512*q+64*(3-kp)}")
            r.append(f"ds_read2_b32 {v(fa(st,q),2)}, {v(vKA+q//2)} offset0:{o} offset1:{o+1}")
            r.append(f"ds_read2_b32 {v(fa(st,q)+2,2)}, {v(vKA+q//2)} offset0:{o+2} offset1:{o+3}")
        return r

    lg = lambda: A("s_waitcnt lgkmcnt(0)")
    pre = {b: [] for b in range(15)}
    post = {b: [] for b in range(15)}
    post[0] = [lg]
    post[1] = [lambda: by_ph(i1_lo, i1_hi)]
    post[2] = [lg]
    post[3] = [lambda: by_ph(lambda: gather(0), lambda: gather(1)), kr_addr]
    pre[4] = [lambda: kr_write(0)]
    pre[5] = [lambda: kr_write(1)]
    post[6] = [conv_setup]
    post[7] = [t_loads]
    post[H1_BAR - 1] += [h1_issue]
    post[H1_BAR] += [h1_check, u_loads]
    pre[H1_BAR + 2] += [u_write]
    post[13] += [lg]
    assert H1_BAR + 2 <= 13
    post[14] += [lambda: [A(r) for r in creads(0, 0)], lambda: A.wait_vm(did[1])]
    for b in range(15):
        for f in pre[b]:
            f()
        if OPT["wdh"] == 10 + b:
            A.vmem(f"global_load_dword {v(xPF+5)}, {v(xPF+4)}, {s(pWD,2)}")
        if b == 2:
            dma_w(3); dma_w(4); dma_x(2, (0, 1))
        if b == 3:
            dma_x(2, (2, 3))
        if 3 <= b <= 11:
            dma_w(b + 2)
        if 3 <= b <= 10:
            dma_x((b - 3) // 2 + 3, (0, 1) if (b - 3) % 2 == 0 else (2, 3))
        for pp in {11: [0], 12: [1], 13: [2, 3], 14: [4]}.get(b, []):
            dma_d(pp, vDO)
        for f in post[b]:
            f()
        if 3 <= b < 14:
            need = wid[b]
            if b % 2 == 0:
                need = max(need, xid[b // 2])
            A.wait_vm(need)
        A("s_barrier")
        if b == 0:
            stamp(1)
    stamp(2)
    dma_d(5, vDO)
    dma_d(6, vDO)
    if OPT["b15"]:
        A.wait_vm(did[4])
        A("s_barrier")
        stamp(8)
    for kp in range(4):
        st = kp % 2
        A("s_waitcnt lgkmcnt(0)")
        rs = creads(1 - st, kp + 1) if kp < 3 else []
        for q in range(8):
            for t in range(q, 8):
                cc = "0" if (kp == 0 and q == 0) else v(CA + 4 * t, 4)
                A(f"v_mfma_f32_16x16x32_bf16 {v(CA+4*t,4)}, {v(fa(st,q),4)}, {v(fb_(st,t-q),4)}, {cc}")
                if rs:
                    A(rs.pop(0))
            if OPT["b15"]:
                if kp == 0 and q == 4:
                    A.wait_vm(did[6])
                    lds_set(vMine, F_WD, 2, vT)
            elif kp in (0, 1) and q == 4:
                A.wait_vm(did[4] if kp == 0 else did[6])
                lds_set(vMine, F_WD, kp + 1, vT)
    stamp(3)
    A("s_setprio 3")
    A(f"v_and_b32 {v(vT)}, 1, {v(vG4)}")
    A(f"v_lshlrev_b32 {v(vT)}, 9, {v(vT)}")
    A(f"v_lshl_add_u32 {v(vT)}, {v(vB)}, 5, {v(vT)}")
    A(f"v_lshrrev_b32 {v(vT2)}, 1, {v(vG4)}")
    A(f"v_lshl_add_u32 {v(vT)}, {v(vT2)}, 4, {v(vT)}")
    A(f"s_lshl_b32 {s(sT0)}, {s(sCH)}, 12")
    A(f"s_mul_i32 {s(sT1)}, {s(sPH)}, {448*4096}")
    A(f"s_add_u32 {s(sT0)}, {s(sT0)}, {s(sT1)}")
    A(f"s_add_u32 {s(sT0)}, {s(sT0)}, {OFF_Y}")
    YP = 100
    for pr in range(4):
        for tt in range(2):
            for d in range(2):
                src = CA + 4 * (2 * pr + tt) + 2 * d
                A(f"v_cvt_pk_bf16_f32 {v(YP+4*pr+2*tt+d)}, {v(src)}, {v(src+1)}")
    for pr in range(4):
        A(f"v_permlane16_swap_b32 {v(YP+4*pr)}, {v(YP+4*pr+2)}")
        A(f"v_permlane16_swap_b32 {v(YP+4*pr+1)}, {v(YP+4*pr+3)}")
        A(f"buffer_store_dwordx4 {v(YP+4*pr,4)}, {v(vT)}, {s(rWS,4)}, {s(sT0)} offen offset:{1024*pr} sc1")
    t_compute()
    A(f"s_lshl_b32 {s(sT0)}, {s(sCH)}, 1")
    A(f"s_add_u32 {s(sT0)}, {s(sT0)}, {s(sPH)}")
    A(f"s_lshl_b32 {s(sT0)}, {s(sT0)}, 2")
    A(f"s_add_u32 {s(sT0)}, {s(sT0)}, {OFF_FL+4096}")
    A(f"v_mov_b32 {v(vT)}, {s(sT0)}")
    A(f"v_mov_b32 {v(vT2)}, 1")
    A("s_waitcnt vmcnt(0)")
    A("s_mov_b64 exec, 1")
    A(f"global_store_dword {v(vT)}, {v(vT2)}, {s(pWS,2)} sc1")
    A("s_mov_b64 exec, -1")
    stamp(4)
    YV = 64
    A(f"s_lshl_b32 {s(sT0)}, {s(sCB)}, 2")
    A(f"s_add_u32 {s(sT0)}, {s(sT0)}, {s(sXW)}")
    A(f"s_lshl_b32 {s(sT1)}, {s(sT0)}, 7")
    A(f"s_add_u32 {s(sT1)}, {s(sT1)}, {OFF_FL+4096}")
    A(f"v_and_b32 {v(vT)}, 31, {v(vLANE)}")
    A(f"v_lshl_add_u32 {v(vT)}, {v(vT)}, 2, {s(sT1)}")
    lds_wait(vMine, F_GO, 1, vT2, sleep=4)
    stamp(6)
    poll_global(vT, vT2, pWS, sleep=16)
    stamp(7)
    A(f"s_lshl_b32 {s(sT0)}, {s(sT0)}, 16")
    A(f"s_lshl_b32 {s(sT1)}, {s(sRB64)}, 7")
    A(f"s_add_u32 {s(sT0)}, {s(sT0)}, {s(sT1)}")
    A(f"s_add_u32 {s(sT0)}, {s(sT0)}, {OFF_Y}")
    A(f"s_add_u32 {s(sT1)}, {s(sT0)}, {448*4096}")
    A(f"s_add_u32 {s(sT2)}, {s(sT0)}, {8*4096}")
    A(f"s_add_u32 {s(sT3)}, {s(sT1)}, {8*4096}")
    A(f"v_lshrrev_b32 {v(vT)}, 3, {v(vLANE)}")
    A(f"v_lshlrev_b32 {v(vT)}, 12, {v(vT)}")
    A(f"v_lshl_add_u32 {v(vT)}, {v(vC8)}, 4, {v(vT)}")
    for k in range(4):
        A(f"buffer_load_dwordx4 {v(YV+32+4*k,4)}, {v(vT)}, {s(rWS,4)}, {s(sT0+k)} offen sc1")
    A(f"s_mul_i32 {s(sT0)}, {s(sXW)}, {YS_SZ}")
    A(f"s_add_u32 {s(sT0)}, {s(sT0)}, {YS}")
    A(f"v_lshl_add_u32 {v(vT)}, {v(vLANE)}, 4, {s(sT0)}")
    A(f"v_lshrrev_b32 {v(vT2)}, 1, {v(vC8)}")
    A(f"v_mul_u32_u24 {v(vT2)}, {YS_SZ}, {v(vT2)}")
    A(f"v_and_b32 {v(vT3)}, 1, {v(vC8)}")
    A(f"v_mul_u32_u24 {v(vT3)}, 1040, {v(vT3)}")
    A(f"v_add_u32 {v(vT2)}, {v(vT2)}, {v(vT3)}")
    A(f"v_lshl_add_u32 {v(vT2)}, {v(vRow)}, 1, {v(vT2)}")
    for k in range(16):
        A(f"v_mov_b32 {v(YV+8+k)}, 0")
    A(f"v_and_b32 {v(vOther)}, 3, {v(vLANE)}")
    A(f"v_lshlrev_b32 {v(vOther)}, 2, {v(vOther)}")
    for hf in range(2):
        A(f"s_waitcnt vmcnt({2-2*hf})")
        for d in range(4):
            a, b, w = YV + 32 + 8 * hf + d, YV + 36 + 8 * hf + d, YV + 48
            A(f"v_lshlrev_b32 {v(w)}, 16, {v(a)}")
            A(f"v_and_b32 {v(w+1)}, 0xffff0000, {v(a)}")
            A(f"v_lshlrev_b32 {v(w+2)}, 16, {v(b)}")
            A(f"v_and_b32 {v(w+3)}, 0xffff0000, {v(b)}")
            A(f"v_add_f32 {v(w)}, {v(w)}, {v(w+2)}")
            A(f"v_add_f32 {v(w+1)}, {v(w+1)}, {v(w+3)}")
            A(f"v_cvt_pk_bf16_f32 {v(YV+4*hf+d)}, {v(w)}, {v(w+1)}")
        A(f"ds_write_b128 {v(vT)}, {v(YV+4*hf,4)} offset:{1040*hf}")
    lds_set(vMine, F_Y, 1, vT)
    lds_wait(vOther, F_Y, 1, vT, sleep=1, every=True)
    for i in range(2):
        for k in range(8):
            A(f"ds_read_u16_d16_hi {v(YV+8+8*i+k)}, {v(vT2)} offset:{YS+128*k+64*i}")
    A("s_waitcnt lgkmcnt(0)")
    for k in range(16):
        A(f"v_add_f32 {v(TV+k)}, {v(TV+k)}, {v(YV+8+k)}")
    stamp(10)
    A("s_barrier")
    PB = 64
    for i in range(2):
        for q in range(4):
            for h in range(2):
                A(f"ds_read_b128 {v(PB+32*i+8*q+4*h,4)}, {v(xFP+h)} offset:{32768*i+4096*q}")
    for i in range(2):
        P = PB + 32 * i
        A(f"s_waitcnt lgkmcnt({12-8*i})")
        for e in range(0, 8, 2):
            A(f"v_pk_add_f32 {v(P+e,2)}, {v(P+e,2)}, {v(P+8+e,2)}")
        A(f"s_waitcnt lgkmcnt({8-8*i})")
        for e in range(0, 8, 2):
            A(f"v_pk_add_f32 {v(P+16+e,2)}, {v(P+16+e,2)}, {v(P+24+e,2)}")
        for e in range(0, 8, 2):
            A(f"v_pk_add_f32 {v(P+e,2)}, {v(P+e,2)}, {v(P+16+e,2)}")
        for e in range(0, 8, 2):
            A(f"v_pk_fma_f32 {v(P+e,2)}, {v(P+e,2)}, {v(STV+2*i,2)}, {v(TV+8*i+e,2)} op_sel:[0,1,0] op_sel_hi:[1,1,1]")
        for e in range(4):
            A(f"v_cvt_pk_bf16_f32 {v(P+8+e)}, {v(P+2*e)}, {v(P+2*e+1)}")
        A(f"global_store_dwordx4 {v(xFO+i)}, {v(P+8,4)}, {s(pOUT,2)}{['',' sc1',' nt',' sc0 sc1'][OPT['outsc']]}")
    if OPT["diag"]:
        A("s_waitcnt vmcnt(0)")


def main():
    hdr = open("cdna_kernels/" + NAME + ".s.ref").read().split("\n")
    out = [l for l in hdr if l.startswith(";") and "@launch" not in l and "Override" not in l and "grid=ceil" not in l]
    out.append(f"; @launch grid=(256,1,1) block=(512,1,1) lds={LDS_BYTES}")
    out.append('.amdgcn_target "amdgcn-amd-amdhsa--gfx950"')
    out.append(".text")
    out.append(f".globl {NAME}_kernel")
    out.append(".p2align 8")
    out.append(f".type {NAME}_kernel,@function")
    out.append(f"{NAME}_kernel:")
    prologue()
    phase0()
    cwave()
    side()
    xwave()
    final()
    out += A.l
    out.append('.section .rodata,"a"')
    out.append(".p2align 6")
    out.append(f".amdhsa_kernel {NAME}_kernel")
    out.append("  .amdhsa_next_free_vgpr 256")
    out.append("  .amdhsa_next_free_sgpr 102")
    out.append("  .amdhsa_accum_offset 256")
    out.append("  .amdhsa_group_segment_fixed_size 0")
    out.append("  .amdhsa_kernarg_size 112")
    out.append("  .amdhsa_user_sgpr_count 2")
    out.append("  .amdhsa_user_sgpr_kernarg_segment_ptr 1")
    out.append("  .amdhsa_system_sgpr_workgroup_id_x 1")
    out.append(".end_amdhsa_kernel")
    open(sys.argv[1], "w").write("\n".join(out) + "\n")


main()
```

```python
import sys, struct

NAME = "parallel_sum__ssm_conv_s4d__glu_gated_reglu__prompt"
OPT = dict(diag=0, nodma=0, nos=0, rot1=4, rot2=4, sidepf=1, pfe=2, uw=12, w1h=-1, pfh=0, nmain=0, wdh=-1, npre=2, pollat=12, eprio=3, stat=12, go2=0, selfpf=0, sidehp=0, hpsl=2, h1b=10, snake=1, sidelast=0, b15=0, prio=0, hd=6, psl=8, goat=10, outsc=0, dwg=100, dwave=0, dst=5, amp=10, base=5000)
for a in sys.argv[2:]:
    k, val = a.split("=")
    OPT[k] = int(val)

OFF_U = 0x0
OFF_ST = 0x200000
OFF_FL = 0x220000
OFF_Y = 0xC00000
OFF_H = 0x400000
OFF_TS = 0x240000
WS_BYTES = 0x1000000

KA, KA_SZ = 0, 8320
UB, UB_SZ = 33280, 4576
TB, TB_SZ = 42432, 2568
R2 = 47568
FG = 47824
F_PAIR, F_WD, F_GO, F_Y = FG, FG + 16, FG + 32, FG + 48
SX = TB
YS_SZ = UB_SZ // 2
TT, T_PITCH = 0, 272
XR = 49152
WR = 98304
PR = 49152
PR_SZ = 20480
KR_PITCH = 4160
EX_OFF = 8320
LDS_BYTES = 163840
H1_BAR = OPT["h1b"]

LOG2E = 0x3fb8aa3b
NLOG2E = 0xbfb8aa3b
INV2PI = 0x3e22f983


def wd_order():
    order = []
    for g in range(7):
        for c in (g, (g + OPT["rot2"]) % 7):
            if c not in order:
                order.append(c)
    return order


def f2u(x):
    return struct.unpack("<I", struct.pack("<f", x))[0]


def v(n, c=1):
    return f"v{n}" if c == 1 else f"v[{n}:{n+c-1}]"


def s(n, c=1):
    return f"s{n}" if c == 1 else f"s[{n}:{n+c-1}]"


class Asm:
    def __init__(self):
        self.l = []
        self.vm = 0
        self.uid = 0
        self.xw = False

    def __call__(self, t):
        self.l.append("    " + t)

    def label(self, n):
        self.l.append(n + ":")

    def c(self, t):
        self.l.append("    ; " + t)

    def vmem(self, t):
        if OPT["nodma"] and t.endswith(" lds") and self.xw:
            t = "s_nop 0"
        self(t)
        self.vm += 1
        return self.vm

    def wait_vm(self, ident):
        n = self.vm - ident
        assert 0 <= n <= 63, n
        self(f"s_waitcnt vmcnt({n})")

    def new(self, p):
        self.uid += 1
        return f"L_{p}{self.uid}"


A = Asm()

sWG, sWAVE = 2, 3
pX, pLA, pAI, pCR, pCI, pLDT, pDS = 4, 6, 8, 10, 12, 14, 16
pWG, pWU, pWD, pOUT, pDBG, pWS = 20, 22, 24, 26, 28, 30
rX, rWG, rWU, rWD, rWS = 32, 36, 40, 44, 48
sXCD, sJ, sRB, sFB, sRB64, sCB, sCH0 = 52, 53, 54, 55, 56, 57, 58
sT0, sT1, sT2, sT3, sT4, sT5 = 59, 60, 61, 62, 63, 64
sW1, sW2, sW3, sCNT = 65, 66, 67, 68
sGRP = 87
sDK = 72
sTS = 88
vLANE = 1


STAMP_ON = [True]


def stamp(i):
    if OPT["diag"] and (STAMP_ON[0] or i in (1, 5)):
        A(f"{'s_memtime' if OPT['diag']==2 else 's_memrealtime'} {s(sTS,2)}")
        A("s_waitcnt lgkmcnt(0)")
        A(f"s_mov_b32 {s(sTS+2+i)}, {s(sTS)}")


def stamp_flush(n):
    if not OPT["diag"]:
        return
    if OPT["diag"] == 4:
        sk, lp = A.new("dg"), A.new("dl")
        A(f"s_lshl_b32 {s(sT0)}, {s(sWG)}, 3")
        A(f"s_add_u32 {s(sT0)}, {s(sT0)}, {s(sWAVE)}")
        A(f"s_cmp_lg_u32 {s(sT0)}, {OPT['dwg']*8+OPT['dwave']}")
        A(f"s_cbranch_scc1 {sk}")
        A(f"s_sub_u32 {s(sT0)}, {s(sTS+2+OPT['dst'])}, {s(sTS+2)}")
        A(f"s_min_u32 {s(sT0)}, {s(sT0)}, 10000")
        A(f"s_mul_i32 {s(sT0)}, {s(sT0)}, {OPT['amp']}")
        A(f"s_add_u32 {s(sT0)}, {s(sT0)}, {OPT['base']}")
        A.label(lp)
        A(f"s_memrealtime {s(sTS,2)}")
        A("s_waitcnt lgkmcnt(0)")
        A(f"s_sub_u32 {s(sT1)}, {s(sTS)}, {s(sTS+2)}")
        A(f"s_cmp_lt_u32 {s(sT1)}, {s(sT0)}")
        A(f"s_cbranch_scc1 {lp}")
        A.label(sk)
        return
    if OPT["diag"] == 3:
        sk = A.new("dg")
        A(f"s_lshl_b32 {s(sT0)}, {s(sWG)}, 3")
        A(f"s_add_u32 {s(sT0)}, {s(sT0)}, {s(sWAVE)}")
        A(f"s_cmp_lg_u32 {s(sT0)}, {OPT['dwg']*8+OPT['dwave']}")
        A(f"s_cbranch_scc1 {sk}")
        A("v_mov_b32 v2, 0")
        for i in range(12):
            A(f"s_sub_u32 {s(sT0)}, {s(sTS+2+i)}, {s(sTS+2)}")
            A(f"v_mov_b32 v3, {s(sT0)}")
            A(f"global_store_dword v2, v3, {s(pDBG,2)} offset:{4*i}")
            A("s_nop 1")
        A.label(sk)
        return
    A(f"s_lshl_b32 {s(sT0)}, {s(sWG)}, 3")
    A(f"s_add_u32 {s(sT0)}, {s(sT0)}, {s(sWAVE)}")
    A(f"s_lshl_b32 {s(sT0)}, {s(sT0)}, 6")
    A(f"s_add_u32 {s(sT0)}, {s(sT0)}, {OFF_TS}")
    A(f"v_mov_b32 v2, {s(sT0)}")
    for i in range(12):
        A(f"v_mov_b32 v3, {s(sTS+2+i)}")
        A(f"global_store_dword v2, v3, {s(pWS,2)} offset:{4*i}")
        A("s_nop 1")


def srd(r, p, nbytes):
    A(f"s_mov_b32 {s(r)}, {s(p)}")
    A(f"s_and_b32 {s(r+1)}, {s(p+1)}, 0xffff")
    A(f"s_mov_b32 {s(r+2)}, {nbytes}")
    A(f"s_mov_b32 {s(r+3)}, 0x20000")


SPIN_MAX = 1 << 16


def poll_global(vaddr, vtmp, base, first_issued=False, sleep=1):
    lp, done, chk = A.new("pl"), A.new("pd"), A.new("pc")
    A(f"s_mov_b32 {s(sCNT)}, 0")
    if first_issued:
        A(f"s_branch {chk}")
    A.label(lp)
    A(f"global_load_dword {v(vtmp)}, {v(vaddr)}, {s(base,2)} sc1")
    A.label(chk)
    A("s_waitcnt vmcnt(0)")
    A(f"v_cmp_ne_u32 vcc, 0, {v(vtmp)}")
    A(f"s_add_u32 {s(sCNT)}, {s(sCNT)}, 1")
    A("s_cmp_eq_u64 vcc, exec")
    A(f"s_cbranch_scc1 {done}")
    A(f"s_sleep {sleep}")
    A(f"s_cmp_lt_u32 {s(sCNT)}, {SPIN_MAX}")
    A(f"s_cbranch_scc1 {lp}")
    A.label(done)


def lds_wait(vaddr, off, val, vt, sleep=0, every=False):
    lp, done = A.new("sl"), A.new("sd")
    A(f"s_mov_b32 {s(sCNT)}, 0")
    A.label(lp)
    A(f"ds_read_b32 {v(vt)}, {v(vaddr)} offset:{off}")
    A(f"s_add_u32 {s(sCNT)}, {s(sCNT)}, 1")
    A("s_waitcnt lgkmcnt(0)")
    if every:
        A(f"v_cmp_gt_u32 vcc, {val}, {v(vt)}")
        A(f"s_cbranch_vccz {done}")
    else:
        A(f"v_cmp_le_u32 vcc, {val}, {v(vt)}")
        A(f"s_cbranch_vccnz {done}")
    if sleep:
        A(f"s_sleep {sleep}")
    A(f"s_cmp_lt_u32 {s(sCNT)}, {SPIN_MAX*16}")
    A(f"s_cbranch_scc1 {lp}")
    A.label(done)


def lds_set(vaddr, off, val, vt):
    A(f"v_mov_b32 {v(vt)}, {val}")
    A(f"ds_write_b32 {v(vaddr)}, {v(vt)} offset:{off}")


def prologue():
    A(f"s_cmp_ge_u32 {s(sWG)}, 256")
    A("s_cbranch_scc1 L_end")
    A(f"s_load_dwordx16 {s(4,16)}, s[0:1], 0")
    A(f"s_load_dwordx8 {s(20,8)}, s[0:1], 64")
    A(f"s_load_dwordx4 {s(28,4)}, s[0:1], 96")
    if OPT["diag"]:
        A(f"{'s_memtime' if OPT['diag']==2 else 's_memrealtime'} {s(sTS,2)}")
    A("v_lshrrev_b32 v2, 6, v0")
    A(f"v_and_b32 {v(vLANE)}, 63, v0")
    A(f"v_readfirstlane_b32 {s(sWAVE)}, v2")
    A(f"s_and_b32 {s(sXCD)}, {s(sWG)}, 7")
    A(f"s_lshr_b32 {s(sJ)}, {s(sWG)}, 3")
    A(f"s_getpc_b64 {s(sT1,2)}")
    A.label("L_pc")
    A("v_and_b32 v2, 0x1e0, v0")
    A(f"v_add_u32 v2, {s(sJ)}, v2")
    A("v_lshlrev_b32 v2, 7, v2")
    A("v_min_u32 v2, L_end-L_pc, v2")
    A(f"global_load_dword v95, v2, {s(sT1,2)}")
    A(f"s_and_b32 {s(sT0)}, {s(sXCD)}, 3")
    A(f"s_lshr_b32 {s(sT1)}, {s(sXCD)}, 2")
    A(f"s_cmp_lt_u32 {s(sJ)}, 4")
    A("s_cbranch_scc1 L_side")
    A(f"s_sub_u32 {s(sJ)}, {s(sJ)}, 4")
    A(f"s_and_b32 {s(sT2)}, {s(sJ)}, 3")
    A(f"s_lshr_b32 {s(sCB)}, {s(sJ)}, 2")
    A(f"s_lshl_b32 {s(sRB)}, {s(sT0)}, 2")
    A(f"s_add_u32 {s(sRB)}, {s(sRB)}, {s(sT2)}")
    A(f"s_mul_i32 {s(sFB)}, {s(sT1)}, 7")
    A(f"s_add_u32 {s(sFB)}, {s(sFB)}, {s(sCB)}")
    A(f"s_lshl_b32 {s(sRB64)}, {s(sT0)}, 1")
    A(f"s_add_u32 {s(sRB64)}, {s(sRB64)}, {s(sT1)}")
    A(f"s_lshl_b32 {s(sRB64)}, {s(sRB64)}, 2")
    A(f"s_add_u32 {s(sRB64)}, {s(sRB64)}, {s(sT2)}")
    A(f"s_add_u32 {s(sGRP)}, {s(sT2)}, {s(sCB)}")
    A(f"s_and_b32 {s(sGRP)}, {s(sGRP)}, 1")


def kernarg_ready():
    A("s_waitcnt lgkmcnt(0)")
    if OPT["diag"]:
        for i in range(12):
            A(f"s_mov_b32 {s(sTS+2+i)}, {s(sTS)}")
        stamp(11)


def side():
    A.label("L_side")
    A.vm = 0
    XB, F, SA = 8, 40, 100
    vR, vQ, vOFF, vT, vT2, vRI = 2, 3, 4, 5, 6, 36
    vM = 38
    sRG, sR64 = sRB, sRB64
    A(f"s_lshl_b32 {s(sR64)}, {s(sT0)}, 1")
    A(f"s_add_u32 {s(sR64)}, {s(sR64)}, {s(sT1)}")
    A(f"s_lshl_b32 {s(sR64)}, {s(sR64)}, 2")
    A(f"s_add_u32 {s(sR64)}, {s(sR64)}, {s(sJ)}")
    A(f"s_lshl_b32 {s(sRG)}, {s(sR64)}, 3")
    A(f"s_add_u32 {s(sRG)}, {s(sRG)}, {s(sWAVE)}")
    A(f"v_lshrrev_b32 {v(vR)}, 3, {v(vLANE)}")
    A(f"v_and_b32 {v(vQ)}, 7, {v(vLANE)}")
    A(f"v_mul_u32_u24 {v(vOFF)}, 896, {v(vR)}")
    A(f"v_lshl_add_u32 {v(vOFF)}, {v(vQ)}, 4, {v(vOFF)}")
    A(f"s_mul_i32 {s(sT2)}, {s(sRG)}, {8*896}")
    A(f"v_add_u32 {v(vOFF)}, {s(sT2)}, {v(vOFF)}")
    kernarg_ready()
    xl = []
    for i in range(7):
        xl.append(A.vmem(f"global_load_dwordx4 {v(XB+4*i,4)}, {v(vOFF)}, {s(pX,2)} offset:{128*i}"))
    srd(rWS, pWS, WS_BYTES)
    vPF = 110
    A(f"s_mul_i32 {s(sT3)}, {s(sJ)}, {224*896}")
    A(f"s_mul_i32 {s(sT4)}, {s(sT1)}, {896*896}")
    A(f"v_min_u32 {v(vPF+1)}, 447, v0")
    A(f"v_lshl_add_u32 {v(vPF+2)}, {v(vPF+1)}, 7, {s(sT3)}")
    A(f"v_add_u32 {v(vPF)}, {s(sT4)}, {v(vPF+2)}")
    A(f"s_sub_u32 {s(sT4)}, {896*896-1568*128}, {s(sT4)}")
    A(f"v_cmp_gt_u32 vcc, {1568-3*448}, {v(vPF+1)}")
    A(f"v_add_u32 {v(vPF+1)}, {s(sT4)}, {v(vPF+2)}")
    A("s_nop 0")
    A(f"v_cndmask_b32 {v(vPF+2)}, {v(vPF+1)}, {v(vPF)}, vcc")

    def pf(ns):
        for n in ns:
            A(f"v_add_u32 {v(vPF+3)}, {n*448*128}, {v(vPF + (0 if n < 3 else 2 if n == 3 else 1))}")
            A.vmem(f"global_load_dword {v(vPF+4+n)}, {v(vPF+3)}, {s(pWD,2)}")
    skip = A.new("nc")
    A(f"s_cmp_lg_u32 {s(sWG)}, 31")
    A(f"s_cbranch_scc1 {skip}")
    for i in range(4):
        A(f"v_mov_b32 {v(SA+i)}, 0")
    A(f"v_lshlrev_b32 {v(vT2)}, 4, v0")
    A(f"s_mov_b32 {s(sT3)}, {OFF_FL}")
    A(f"buffer_store_dwordx4 {v(SA,4)}, {v(vT2)}, {s(rWS,4)}, {s(sT3)} offen sc1")
    A("s_waitcnt vmcnt(0)")
    A.label(skip)
    C = SA
    A(f"s_mov_b32 {s(sT3)}, 0x3f803f80")
    A(f"v_mov_b32 {v(C)}, 0")
    A(f"v_mov_b32 {v(C+1)}, 0")
    for i in range(7):
        A.wait_vm(xl[i])
        if i == 6:
            stamp(1)
            if OPT["sidepf"]:
                pf(range(OPT["pfe"]))
        for d in range(4):
            k = 4 * i + d
            A(f"v_dot2c_f32_bf16 {v(C+k%2)}, {s(sT3)}, {v(XB+k)}")
            A(f"v_lshlrev_b32 {v(F+2*k)}, 16, {v(XB+k)}")
            A(f"v_and_b32 {v(F+2*k+1)}, 0xffff0000, {v(XB+k)}")

    def reduce8():
        for m in ("quad_perm:[1,0,3,2]", "quad_perm:[2,3,0,1]", "row_half_mirror"):
            A("s_nop 1")
            A(f"v_add_f32_dpp {v(C)}, {v(C)}, {v(C)} {m} row_mask:0xf bank_mask:0xf")
    A("s_nop 2")
    A(f"v_add_f32 {v(C)}, {v(C)}, {v(C+1)}")
    reduce8()
    A(f"v_mul_f32 {v(vM)}, {f2u(-1.0/448):#x}, {v(C)}")
    A(f"v_mov_b32 {v(vM+1)}, {v(vM)}")
    for k in range(28):
        A(f"v_pk_add_f32 {v(F+2*k,2)}, {v(F+2*k,2)}, {v(vM,2)}")
    for k in range(28):
        a = C + 2 * (k % 2)
        if k < 2:
            A(f"v_pk_mul_f32 {v(a,2)}, {v(F+2*k,2)}, {v(F+2*k,2)}")
        else:
            A(f"v_pk_fma_f32 {v(a,2)}, {v(F+2*k,2)}, {v(F+2*k,2)}, {v(a,2)}")
    A(f"v_pk_add_f32 {v(C,2)}, {v(C,2)}, {v(C+2,2)}")
    A("s_nop 0")
    A(f"v_add_f32 {v(C)}, {v(C)}, {v(C+1)}")
    reduce8()
    A(f"v_mul_f32 {v(C)}, {f2u(1.0/448):#x}, {v(C)}")
    A(f"v_cvt_pk_bf16_f32 {v(vRI)}, {v(vM)}, {v(vM)}")
    A(f"v_cvt_pk_bf16_f32 {v(C)}, {v(C)}, {v(C)}")
    A(f"v_lshlrev_b32 {v(C)}, 16, {v(C)}")
    A(f"v_add_f32 {v(C)}, {f2u(1e-5):#x}, {v(C)}")
    A(f"v_cvt_pk_bf16_f32 {v(C)}, {v(C)}, {v(C)}")
    A(f"v_lshlrev_b32 {v(C)}, 16, {v(C)}")
    A(f"v_sqrt_f32 {v(C)}, {v(C)}")
    A(f"v_lshlrev_b32 {v(C+2)}, 16, {v(vRI)}")
    A(f"v_cvt_pk_bf16_f32 {v(C)}, {v(C)}, {v(C)}")
    A(f"v_lshlrev_b32 {v(C)}, 16, {v(C)}")
    A(f"v_rcp_f32 {v(vRI+1)}, {v(C)}")
    A(f"v_sub_f32 {v(C+2)}, {v(C+2)}, {v(vM)}")
    A(f"v_mul_f32 {v(C+2)}, {v(C+2)}, {v(vRI+1)}")
    A(f"v_mov_b32 {v(C+3)}, {v(C+2)}")
    A(f"v_mov_b32 {v(C)}, {v(vRI+1)}")
    A(f"v_mov_b32 {v(C+1)}, {v(vRI+1)}")
    A(f"v_lshlrev_b32 {v(vT2)}, 3, {v(vR)}")
    A(f"s_lshl_b32 {s(sT3)}, {s(sRG)}, 6")
    A(f"s_add_u32 {s(sT3)}, {s(sT3)}, {OFF_ST}")
    A(f"s_mov_b32 exec_lo, 0x01010101")
    A(f"s_mov_b32 exec_hi, 0x01010101")
    A.vmem(f"buffer_store_dwordx2 {v(vRI,2)}, {v(vT2)}, {s(rWS,4)}, {s(sT3)} offen sc1")
    A("s_mov_b64 exec, -1")
    A(f"s_mul_i32 {s(sT3)}, {s(sWAVE)}, 7680")
    A(f"v_mul_u32_u24 {v(vT2)}, 960, {v(vR)}")
    A(f"v_lshl_add_u32 {v(vT2)}, {v(vQ)}, 4, {v(vT2)}")
    A(f"v_add_u32 {v(vT2)}, {s(sT3)}, {v(vT2)}")
    for k in range(28):
        A(f"v_pk_fma_f32 {v(F+2*k,2)}, {v(F+2*k,2)}, {v(C,2)}, {v(C+2,2)}")
    for i in range(7):
        for d in range(4):
            k = 4 * i + d
            A(f"v_cvt_pk_bf16_f32 {v(XB+k)}, {v(F+2*k)}, {v(F+2*k+1)}")
        A(f"ds_write_b128 {v(vT2)}, {v(XB+4*i,4)} offset:{128*i}")
    A(f"v_bfe_u32 {v(vT2)}, {v(vLANE)}, 2, 2")
    A(f"v_mul_u32_u24 {v(vT2)}, 960, {v(vT2)}")
    A(f"v_lshrrev_b32 {v(vOFF)}, 4, {v(vLANE)}")
    A(f"v_lshl_add_u32 {v(vT2)}, {v(vOFF)}, 5, {v(vT2)}")
    A(f"v_and_b32 {v(vOFF)}, 3, {v(vLANE)}")
    A(f"v_lshl_add_u32 {v(vT2)}, {v(vOFF)}, 3, {v(vT2)}")
    A(f"v_add_u32 {v(vT2)}, {s(sT3)}, {v(vT2)}")
    for i in range(7):
        A(f"ds_read_b64_tr_b16 {v(F+4*i,2)}, {v(vT2)} offset:{128*i}")
        A(f"ds_read_b64_tr_b16 {v(F+4*i+2,2)}, {v(vT2)} offset:{128*i+3840}")
    L2B = 65536
    A(f"s_lshl_b32 {s(sT3)}, {s(sWAVE)}, 4")
    A(f"s_add_u32 {s(sT3)}, {s(sT3)}, {L2B}")
    A(f"v_mul_u32_u24 {v(vT2)}, 144, {v(vLANE)}")
    A(f"v_add_u32 {v(vT2)}, {s(sT3)}, {v(vT2)}")
    for i in range(7):
        A(f"s_waitcnt lgkmcnt({min(15, 12-2*i+i)})")
        A(f"ds_write_b128 {v(vT2)}, {v(F+4*i,4)} offset:{64*144*i}")
    A(f"s_mul_i32 {s(sT3)}, {s(sWAVE)}, {56*144}")
    A(f"s_add_u32 {s(sT3)}, {s(sT3)}, {L2B}")
    A(f"v_mul_u32_u24 {v(vT2)}, 144, {v(vR)}")
    A(f"v_lshl_add_u32 {v(vT2)}, {v(vQ)}, 4, {v(vT2)}")
    A(f"v_add_u32 {v(vT2)}, {s(sT3)}, {v(vT2)}")
    A(f"v_lshlrev_b32 {v(vOFF)}, 12, {v(vR)}")
    A(f"v_lshl_add_u32 {v(vOFF)}, {v(vQ)}, 4, {v(vOFF)}")
    A(f"s_mul_i32 {s(sT3)}, {s(sWAVE)}, {56*4096}")
    A(f"s_lshl_b32 {s(sT4)}, {s(sR64)}, 7")
    A(f"s_add_u32 {s(sT3)}, {s(sT3)}, {s(sT4)}")
    A("s_waitcnt lgkmcnt(0)")
    A("s_barrier")
    for i in range(7):
        A(f"ds_read_b128 {v(XB+4*i,4)}, {v(vT2)} offset:{8*144*i}")
    for i in range(7):
        A(f"s_waitcnt lgkmcnt({6-i})")
        A.vmem(f"buffer_store_dwordx4 {v(XB+4*i,4)}, {v(vOFF)}, {s(rWS,4)}, {s(sT3)} offen sc1")
        if i < 6:
            A(f"s_add_u32 {s(sT3)}, {s(sT3)}, {8*4096}")
    stamp(2)
    A("s_waitcnt vmcnt(0)")
    A("s_barrier")
    stamp(3)
    skip = A.new("nf")
    A(f"s_cmp_lg_u32 {s(sWAVE)}, 0")
    A(f"s_cbranch_scc1 {skip}")
    A(f"s_lshl_b32 {s(sT3)}, {s(sWG)}, 2")
    A(f"v_mov_b32 {v(vT2)}, {s(sT3)}")
    A(f"v_mov_b32 {v(vT)}, 1")
    A("s_mov_b64 exec, 1")
    A(f"global_store_dword {v(vT2)}, {v(vT)}, {s(pDBG,2)} offset:128 sc1")
    A("s_mov_b64 exec, -1")
    A.label(skip)
    if OPT["sidepf"]:
        pf(range(OPT["pfe"], 7))
        A("s_waitcnt vmcnt(0)")
        stamp(4)
    if OPT["sidehp"]:
        skip = A.new("hp")
        A(f"s_cmp_lg_u32 {s(sWAVE)}, 0")
        A(f"s_cbranch_scc1 {skip}")
        A(f"v_mov_b32 {v(vT2)}, {128+31*4}")
        poll_global(vT2, vT, pDBG, sleep=8)
        A(f"s_xor_b32 {s(sT3)}, {s(sT1)}, 1")
        A(f"s_mul_i32 {s(sT3)}, {s(sT3)}, 56")
        A(f"s_lshl_b32 {s(sT4)}, {s(sR64)}, 7")
        A(f"s_add_u32 {s(sT3)}, {s(sT3)}, {s(sT4)}")
        A(f"s_add_u32 {s(sT3)}, {s(sT3)}, {OFF_FL}")
        A(f"v_min_u32 {v(vT2)}, 13, {v(vLANE)}")
        A(f"v_lshl_add_u32 {v(vT2)}, {v(vT2)}, 2, {s(sT3)}")
        poll_global(vT2, vT, pWS, sleep=OPT["hpsl"])
        A.label(skip)
        A(f"v_lshrrev_b32 {v(vT)}, 4, {v(vLANE)}")
        A(f"v_mul_u32_u24 {v(vT)}, {14*1024}, {v(vT)}")
        A(f"v_and_b32 {v(vT2)}, 1, {v(vR)}")
        A(f"v_mul_u32_u24 {v(vT2)}, {112*1024}, {v(vT2)}")
        A(f"v_add_u32 {v(vT)}, {v(vT)}, {v(vT2)}")
        A(f"v_lshl_add_u32 {v(vT)}, {v(vQ)}, 7, {v(vT)}")
        A(f"s_xor_b32 {s(sT3)}, {s(sT1)}, 1")
        A(f"s_mul_i32 {s(sT3)}, {s(sT3)}, 56")
        A(f"s_add_u32 {s(sT3)}, {s(sT3)}, {s(sWAVE)}")
        A(f"s_lshl_b32 {s(sT3)}, {s(sT3)}, 10")
        A(f"s_mul_i32 {s(sT4)}, {s(sR64)}, {224*1024}")
        A(f"s_add_u32 {s(sT3)}, {s(sT3)}, {s(sT4)}")
        A(f"s_add_u32 {s(sT3)}, {s(sT3)}, {OFF_H}")
        A(f"s_add_u32 {s(sT4)}, {s(sT3)}, 8192")
        A("s_barrier")
        stamp(6)
        A(f"buffer_load_dword {v(F)}, {v(vT)}, {s(rWS,4)}, {s(sT3)} offen sc1")
        skip = A.new("hq")
        A(f"s_cmp_ge_u32 {s(sWAVE)}, 6")
        A(f"s_cbranch_scc1 {skip}")
        A(f"buffer_load_dword {v(F+1)}, {v(vT)}, {s(rWS,4)}, {s(sT4)} offen sc1")
        A.label(skip)
        A("s_waitcnt vmcnt(0)")
        stamp(7)
    stamp_flush(4)
    A("s_endpgm")


def final():
    A.label("L_fin")
    stamp(5)
    stamp_flush(6)
    A.label("L_end")
    A("s_endpgm")


def kgen_slot(R, hook):
    e = A
    la, ai, cr, ci, dt, dt2 = [R["P"] + k for k in range(6)]
    t = R["tmp"]
    z = t
    E = {1: t + 2, 8: t + 4, 256: t + 6}
    q = [t + 8, t + 10]
    Ak = [t + 12 + 2 * k for k in range(8)]
    PK = R["PK"]
    AF, BF, DK, wa, ra = R["AF"], R["BF"], R["DK"], R["wa"], R["ra"]
    q0 = q[0]
    e(f"v_mul_f32 {v(q0)}, {LOG2E:#x}, {v(la)}")
    e(f"v_exp_f32 {v(q0)}, {v(q0)}")
    e(f"v_mul_f32 {v(z+1)}, {v(ai)}, {v(dt)}")
    e(f"v_cvt_pk_bf16_f32 {v(q0)}, {v(q0)}, {v(q0)}")
    e(f"v_mul_f32 {v(z+1)}, {INV2PI:#x}, {v(z+1)}")
    e(f"v_lshlrev_b32 {v(q0)}, 16, {v(q0)}")
    e(f"v_mul_f32 {v(q0)}, {v(q0)}, {v(dt)}")
    e(f"v_mul_f32 {v(z)}, {NLOG2E:#x}, {v(q0)}")
    tmp = {1: Ak[1], 8: Ak[2], 256: Ak[3]}
    for p in (1, 8, 256):
        a = z if p == 1 else tmp[p]
        if p > 1:
            e(f"v_mul_f32 {v(a)}, {f2u(float(p)):#x}, {v(z)}")
            e(f"v_mul_f32 {v(a+1)}, {f2u(float(p)):#x}, {v(z+1)}")
        e(f"v_fract_f32 {v(tmp[p]+1)}, {v(a+1)}")
        e(f"v_exp_f32 {v(tmp[p])}, {v(a)}")
        e(f"v_cos_f32 {v(E[p])}, {v(tmp[p]+1)}")
        e(f"v_sin_f32 {v(E[p]+1)}, {v(tmp[p]+1)}")
    e(f"v_pk_mul_f32 {v(Ak[0],2)}, {v(cr,2)}, {v(dt,2)} op_sel:[0,1] op_sel_hi:[1,1]")
    for p in (1, 8, 256):
        e(f"v_pk_mul_f32 {v(E[p],2)}, {v(E[p],2)}, {v(tmp[p],2)} op_sel_hi:[1,0]" + (" neg_hi:[1,0]" if p == 8 else ""))
    st = [0]
    if OPT.get("p0"):
        stamp(2)

    def pack(dw, a, b):
        e(f"v_cvt_pk_bf16_f32 {v(PK+8*st[0]+dw)}, {v(a)}, {v(b)}")
        e(f"v_cvt_pk_bf16_f32 {v(PK+8*st[0]+4+dw)}, {v(a+1)}, {v(b+1)}")

    def flush(slot):
        e(f"ds_write_b128 {v(wa+slot)}, {v(PK+8*st[0],4)}")
        e(f"ds_write_b128 {v(wa+slot)}, {v(PK+8*st[0]+4,4)} offset:4096")
        st[0] ^= 1

    def cmul(*ops):
        for n, (d, a, b) in enumerate(ops):
            e(f"v_pk_mul_f32 {v(q[n],2)}, {v(a,2)}, {v(b,2)} op_sel:[1,1] op_sel_hi:[1,0]")
        for n, (d, a, b) in enumerate(ops):
            e(f"v_pk_fma_f32 {v(d,2)}, {v(a,2)}, {v(b,2)}, {v(q[n],2)} op_sel:[0,0,0] op_sel_hi:[0,1,1] neg_lo:[0,0,1]")

    def frags(dst):
        for i in range(8):
            for h in range(2):
                e(f"ds_read_b64_tr_b16 {v(dst+4*i+2*h,2)}, {v(ra+h)} offset:{1024*i}")
    E2 = z
    cmul((Ak[1], Ak[0], E[1]), (E2, E[1], E[1]))
    pack(0, Ak[0], Ak[1])
    for k in (2, 4, 6):
        cmul((Ak[k], Ak[k - 2], E2), (Ak[k + 1], Ak[k - 1], E2))
        pack(k // 2, Ak[k], Ak[k + 1])
    flush(0)
    G = E[256]
    cmul((Ak[0], Ak[0], G), (Ak[2], Ak[2], G)); pack(0, Ak[0], Ak[2])
    cmul((Ak[4], Ak[4], G), (Ak[6], Ak[6], G)); pack(2, Ak[4], Ak[6])
    cmul((Ak[1], Ak[0], G), (Ak[4], Ak[4], G)); pack(1, Ak[1], Ak[4])
    cmul((Ak[0], Ak[1], G), (Ak[4], Ak[4], G)); pack(3, Ak[0], Ak[4])
    flush(1)
    G2, E16 = Ak[2], E[1]
    cmul((G2, G, G), (E16, E[8], E[8]))
    cmul((Ak[1], Ak[1], G2), (Ak[0], Ak[0], G2)); pack(0, Ak[1], Ak[0])
    cmul((Ak[1], Ak[1], G2), (Ak[0], Ak[0], G2)); pack(2, Ak[1], Ak[0])
    X, Y = Ak[3], Ak[5]
    cmul((Ak[1], Ak[1], G2), (Y, E[8], E16)); pack(1, Ak[1], Ak[1])
    flush(2)
    if OPT.get("p0"):
        stamp(3)
    frags(AF)
    hook(0)
    if OPT.get("p0"):
        stamp(4)
    e(f"v_cvt_pk_bf16_f32 {v(PK+8*st[0])}, 1.0, {v(E[8])}")
    e(f"v_cvt_pk_bf16_f32 {v(PK+8*st[0]+4)}, 0, {v(E[8]+1)}")
    pack(1, E16, Y)
    px = E16
    for i in range(2, 16):
        cmul((X, px, E16), (Y, Y, E16))
        px = X
        pack(i % 4, X, Y)
        if i % 4 == 3:
            flush(i // 4)
    if OPT.get("p0"):
        stamp(9)
    frags(BF)
    hook(1)
    if OPT.get("p0"):
        stamp(10)
    for i in range(8):
        e(f"s_waitcnt lgkmcnt({14-2*i})")
        e(f"v_mfma_f32_32x32x16_bf16 {v(DK,16)}, {v(AF+4*i,4)}, {v(BF+4*i,4)}, {v(DK,16) if i else 0}")


WD_SLOT = [XR + 16384, WR + 2 * 16384, WR + 3 * 16384, XR + 2 * 16384, WR, WR + 16384, XR]
vWO, vXO, vDO = 200, 201, 202
sWO, sXO, sWoff, sWoff1, sXoff, sDoff, sDbase, sW4K = 69, 70, 71, 72, 73, 74, 75, 76
sCH, sCI, sKB = 82, 83, 84
KR_ = dict(P=128, tmp=134, PK=48, wa=162, ra=166, AF=16, BF=168, DK=104)
wid, xid, did = {}, {}, {}


def dma_w(c):
    for i in range(2):
        for mat in range(2):
            A(f"s_add_u32 m0, {s(sWO)}, {WR+(c%4)*16384+mat*8192+i*1024}")
            last = (i == 1 and mat == 1)
            if i == 1 and mat == 0:
                A(f"s_add_u32 {s(sWoff)}, {s(sWoff)}, {32*3584}")
            elif last:
                A(f"s_cmp_eq_u32 {s(sWoff)}, {448*3584}")
            else:
                A("s_nop 0")
            wid[c] = A.vmem(f"buffer_load_dwordx4 {v(vWO)}, {s(rWU if mat else rWG,4)}, {s(sWoff1 if i else sWoff)} offen lds")
            if last:
                A(f"s_cselect_b32 {s(sWoff)}, 0, {s(sWoff)}")
                A(f"s_add_u32 {s(sWoff1)}, {s(sWoff)}, {4*3584}")


def dma_x(xc, iis):
    for ii in iis:
        A(f"s_add_u32 m0, {s(sXO)}, {XR+(xc%3)*16384+ii*4096}")
        A(f"s_add_u32 {s(sT0)}, {s(sXoff)}, {ii*32*896}")
        xid[xc] = A.vmem(f"buffer_load_dwordx4 {v(vXO)}, {s(rX,4)}, {s(sT0)} offen lds")
        if ii == 3:
            A(f"s_add_u32 {s(sXoff)}, {s(sXoff)}, 128")
            A(f"s_cmp_eq_u32 {s(sXoff)}, 896")
            A(f"s_cselect_b32 {s(sXoff)}, 0, {s(sXoff)}")


def dma_d(pp, vd):
    for i in range(4):
        A(f"s_add_u32 m0, {s(sW4K)}, {WD_SLOT[pp%7]+i*1024}")
        A(f"s_add_u32 {s(sDoff)}, {s(sDoff)}, {8*896}")
        did[pp] = A.vmem(f"buffer_load_dwordx4 {v(vd)}, {s(rWD,4)}, {s(sDoff)} offen lds")


def wd_setup(vd, vt, vt2, first_piece):
    A(f"v_lshrrev_b32 {v(vt)}, 3, {v(vLANE)}")
    A(f"v_mul_u32_u24 {v(vd)}, 896, {v(vt)}")
    A(f"v_lshrrev_b32 {v(vt)}, 2, {v(vLANE)}")
    A(f"v_lshrrev_b32 {v(vt2)}, 4, {v(vLANE)}")
    A(f"v_xor_b32 {v(vt)}, {v(vt)}, {v(vt2)}")
    A(f"v_and_b32 {v(vt)}, 1, {v(vt)}")
    A(f"v_lshl_add_u32 {v(vd)}, {v(vt)}, 6, {v(vd)}")
    A(f"v_and_b32 {v(vt)}, 3, {v(vLANE)}")
    A(f"v_lshl_add_u32 {v(vd)}, {v(vt)}, 4, {v(vd)}")
    A(f"s_and_b32 {s(sW4K)}, {s(sWAVE)}, 3")
    A(f"s_mul_i32 {s(sDoff)}, {s(sW4K)}, {224*896}")
    A(f"s_lshl_b32 {s(sT1)}, {s(sCB)}, 7")
    A(f"s_add_u32 {s(sDoff)}, {s(sDoff)}, {s(sT1)}")
    A(f"s_lshr_b32 {s(sT1)}, {s(sXCD)}, 2")
    if first_piece:
        A(f"s_xor_b32 {s(sT1)}, {s(sT1)}, 1")
    A(f"s_mul_i32 {s(sT1)}, {s(sT1)}, {896*896}")
    A(f"s_add_u32 {s(sDoff)}, {s(sDoff)}, {s(sT1)}")
    A(f"s_sub_u32 {s(sDoff)}, {s(sDoff)}, {8*896}")
    A(f"s_lshl_b32 {s(sW4K)}, {s(sW4K)}, 12")
    srd(rWD, pWD, 448 * 1792 * 2)


cXA, cWA, cL16, cT, cT2, cFL, cD, cZ, cDB = 2, 6, 8, 9, 10, 11, 12, 13, 14
cSM, cSEL, cSAC = 64, 88, 96
sRH, sFH = sW1, sW2
xRow, xC8, xT, xT2, xT3, xMine, xOther, xB, xKA, xUA, xG4 = 2, 3, 4, 5, 6, 7, 8, 9, 10, 14, 15
xGA, xPA, xTA = 64, 82, 84
xPF, sPB = 86, 80
xFP, xFO = 252, 254
sXW, sPH, sUBc, sTBc, sKR = sW1, sW2, sW3, 77, 78


def by_ph(f0, f1):
    hi, join = A.new("ph"), A.new("pj")
    A(f"s_cmp_eq_u32 {s(sPH)}, 1")
    A(f"s_cbranch_scc1 {hi}")
    f0()
    A(f"s_branch {join}")
    A.label(hi)
    f1()
    A.label(join)


def c_setup():
    vT, vT2, vFL, vL16 = cT, cT2, cFL, cL16
    A(f"s_and_b32 {s(sRH)}, {s(sWAVE)}, 1")
    A(f"s_lshr_b32 {s(sFH)}, {s(sWAVE)}, 1")
    A(f"v_and_b32 {v(vT)}, 31, {v(vLANE)}")
    A(f"s_lshl_b32 {s(sT0)}, {s(sRH)}, 13")
    A(f"s_add_u32 {s(sT0)}, {s(sT0)}, {XR}")
    A(f"v_lshl_add_u32 {v(vT)}, {v(vT)}, 7, {s(sT0)}")
    A(f"v_bfe_u32 {v(vT2)}, {v(vLANE)}, 1, 3")
    A(f"v_lshrrev_b32 {v(vFL)}, 5, {v(vLANE)}")
    A(f"v_xor_b32 {v(vT2)}, {v(vT2)}, {v(vFL)}")
    for k in range(4):
        A(f"v_xor_b32 {v(cXA+k)}, {2*k}, {v(vT2)}")
        A(f"v_lshl_add_u32 {v(cXA+k)}, {v(cXA+k)}, 4, {v(vT)}")
    wd_setup(cD, vT, vT2, 7)
    A(f"v_bfe_u32 {v(vL16)}, {v(vLANE)}, 4, 1")
    A(f"v_lshlrev_b32 {v(vL16)}, 5, {v(vL16)}")
    A(f"v_and_b32 {v(vT)}, 3, {v(vLANE)}")
    A(f"v_lshl_add_u32 {v(vL16)}, {v(vT)}, 3, {v(vL16)}")
    A(f"v_bfe_u32 {v(vT2)}, {v(vLANE)}, 2, 2")
    A(f"v_lshl_add_u32 {v(cDB)}, {v(vFL)}, 2, {v(vT2)}")
    A(f"v_lshl_add_u32 {v(cDB)}, {v(cDB)}, 7, {s(sW4K)}")
    A(f"v_add_u32 {v(cDB)}, {v(cDB)}, {v(vL16)}")
    A(f"v_bfe_u32 {v(vT)}, {v(vLANE)}, 3, 1")
    A(f"v_lshl_add_u32 {v(cDB)}, {v(vT)}, 6, {v(cDB)}")
    A(f"v_lshl_add_u32 {v(vT)}, {v(vFL)}, 3, {v(vT2)}")
    A(f"v_lshl_add_u32 {v(vT)}, {v(vT)}, 8, {v(vL16)}")
    A(f"v_add_u32 {v(vT)}, {WR}, {v(vT)}")
    A(f"v_xor_b32 {v(vT2)}, {s(sWAVE)}, {v(vT2)}")
    A(f"v_lshl_add_u32 {v(cWA)}, {v(vT2)}, 6, {v(vT)}")
    A(f"v_xor_b32 {v(cWA+1)}, 64, {v(cWA)}")
    A(f"v_lshlrev_b32 {v(vL16)}, 4, {v(vLANE)}")
    A(f"s_lshl_b32 {s(sT0)}, {s(sWAVE)}, 2")
    A(f"v_mov_b32 {v(cZ)}, {s(sT0)}")
    for i in range(28):
        A(f"v_mov_b32 {v(cSM+i)}, 0")
    A("s_mov_b32 exec_lo, 0x00100001")
    A("s_mov_b32 exec_hi, 0x00100001")
    for i in range(4):
        A(f"v_mov_b32 {v(cSEL+i)}, 0x3f803f80")
    A("s_mov_b64 exec, -1")
    A(f"v_min_u32 {v(vFL)}, 27, {v(vLANE)}")
    A(f"s_lshl_b32 {s(sT0)}, {s(sRB64)}, 7")
    A(f"s_add_u32 {s(sT0)}, {s(sT0)}, {OFF_FL}")
    A(f"v_lshl_add_u32 {v(vFL)}, {v(vFL)}, 2, {s(sT0)}")
    A(f"s_lshl_b32 {s(sT2)}, {s(sRH)}, 13")
    A(f"s_cmp_eq_u32 {s(sCI)}, 0")
    A(f"s_mov_b32 {s(sKB)}, {XR+2*16384}")
    A(f"s_cselect_b32 {s(sKB)}, {WR+3*16384}, {s(sKB)}")
    A(f"s_add_u32 {s(sKB)}, {s(sKB)}, {s(sT2)}")


def x_setup():
    vT, vT2, vT3 = xT, xT2, xT3
    A(f"s_sub_u32 {s(sXW)}, {s(sWAVE)}, 4")
    A(f"s_and_b32 {s(sPH)}, {s(sXW)}, 1")
    A(f"s_mul_i32 {s(sKB)}, {s(sXW)}, {KA_SZ}")
    A(f"s_mul_i32 {s(sKR)}, {s(sCI)}, {2*KA_SZ}")
    A(f"s_mul_i32 {s(sUBc)}, {s(sCI)}, {UB_SZ}")
    A(f"s_add_u32 {s(sUBc)}, {s(sUBc)}, {UB}")
    A(f"s_mul_i32 {s(sTBc)}, {s(sCI)}, {TB_SZ}")
    A(f"s_add_u32 {s(sTBc)}, {s(sTBc)}, {TB}")
    for i in range(4):
        A(f"v_mov_b32 {v(16+i)}, 0")
    A(f"v_min_u32 {v(vT2)}, 29, {v(vLANE)}")
    A(f"v_lshl_add_u32 {v(vT2)}, {v(vT2)}, 4, {s(sUBc)}")
    A(f"ds_write_b128 {v(vT2)}, {v(16,4)}")
    A(f"v_and_b32 {v(vT2)}, 3, {v(vLANE)}")
    A(f"v_lshlrev_b32 {v(vT2)}, 4, {v(vT2)}")
    A(f"ds_write_b128 {v(vT2)}, {v(16,4)} offset:{FG}")
    A(f"v_mov_b32 {v(vT2)}, {s(sTBc)}")
    A(f"ds_write_b32 {v(vT2)}, {v(16)}")
    A(f"s_add_u32 {s(sTBc)}, {s(sTBc)}, 4")
    A(f"s_lshl_b32 {s(sT0)}, {s(sXW)}, 2")
    A(f"v_mov_b32 {v(xMine)}, {s(sT0)}")
    A(f"v_xor_b32 {v(xOther)}, 4, {v(xMine)}")
    A(f"s_cmp_eq_u32 {s(sGRP)}, 0")
    A(f"s_mov_b32 {s(sT0)}, {((OPT['rot1']*64+96)%448)*3584}")
    A(f"s_cselect_b32 {s(sWoff)}, {96*3584}, {s(sT0)}")
    A(f"s_mov_b32 {s(sT0)}, {((OPT['rot1']+2)%7)*128}")
    A(f"s_cselect_b32 {s(sXoff)}, 256, {s(sT0)}")
    A(f"s_add_u32 {s(sWoff1)}, {s(sWoff)}, {4*3584}")
    wd_setup(vDO, vT, vT2, 0)
    r2 = 2 * OPT["rot1"]
    got = {0, 1, 2, r2 % 14, (r2 + 1) % 14, (r2 + 2) % 14}
    rest = []
    for k in range(3, 14):
        for c in (k, (k + r2) % 14):
            if c not in got and c not in rest:
                rest.append(c)
    rest = (rest + [rest[-1]] * 8)[:8]
    A(f"s_lshr_b32 {s(sT0)}, {s(sXW)}, 1")
    A(f"s_lshl_b32 {s(sT0)}, {s(sT0)}, 4")
    A(f"s_lshr_b32 {s(sT0)}, {sum(c << (4*i) for i, c in enumerate(rest)):#x}, {s(sT0)}")
    A(f"v_lshrrev_b32 {v(vT)}, 4, {v(vLANE)}")
    A(f"v_lshlrev_b32 {v(vT)}, 2, {v(vT)}")
    A(f"v_bfe_u32 {v(vT)}, {s(sT0)}, {v(vT)}, 4")
    A(f"v_bfe_u32 {v(vT2)}, {v(vLANE)}, 1, 3")
    A(f"v_lshl_add_u32 {v(vT)}, {v(vT)}, 5, {v(vT2)}")
    A(f"v_mul_u32_u24 {v(vT)}, 3584, {v(vT)}")
    A(f"v_and_b32 {v(vT2)}, 1, {v(vLANE)}")
    A(f"v_lshl_add_u32 {v(vT)}, {v(vT2)}, 7, {v(vT)}")
    A(f"s_and_b32 {s(sT0)}, {s(sJ)}, 3")
    A(f"s_mul_i32 {s(sT0)}, {s(sT0)}, {8*3584}")
    A(f"s_lshl_b32 {s(sT1)}, {s(sFB)}, 8")
    A(f"s_add_u32 {s(sT0)}, {s(sT0)}, {s(sT1)}")
    A(f"v_add_u32 {v(xPF)}, {s(sT0)}, {v(vT)}")
    A(f"s_cmp_eq_u32 {s(sPH)}, 0")
    A(f"s_cselect_b32 {s(sPB)}, {s(pWG)}, {s(pWU)}")
    A(f"s_cselect_b32 {s(sPB+1)}, {s(pWG+1)}, {s(pWU+1)}")
    gx = {0, 1, OPT["rot1"] % 7, (OPT["rot1"] + 1) % 7}
    rx = []
    for k in range(2, 7):
        for c in (k, (k + OPT["rot1"]) % 7):
            if c not in gx and c not in rx:
                rx.append(c)
    rx = (rx + [rx[-1]] * 4)[:4]
    A(f"s_lshr_b32 {s(sT0)}, {s(sCB)}, 1")
    A(f"s_lshl_b32 {s(sT0)}, {s(sT0)}, 2")
    A(f"s_lshr_b32 {s(sT0)}, {sum(c << (4*i) for i, c in enumerate(rx)):#x}, {s(sT0)}")
    A(f"s_and_b32 {s(sT0)}, {s(sT0)}, 15")
    A(f"s_lshl_b32 {s(sT0)}, {s(sT0)}, 7")
    A(f"s_lshl_b32 {s(sT1)}, {s(sRB)}, 1")
    A(f"s_and_b32 {s(sT2)}, {s(sCB)}, 1")
    A(f"s_add_u32 {s(sT1)}, {s(sT1)}, {s(sT2)}")
    A(f"s_lshl_b32 {s(sT1)}, {s(sT1)}, 2")
    A(f"s_add_u32 {s(sT1)}, {s(sT1)}, {s(sXW)}")
    A(f"s_mul_i32 {s(sT1)}, {s(sT1)}, {16*896}")
    A(f"s_add_u32 {s(sT0)}, {s(sT0)}, {s(sT1)}")
    A(f"v_and_b32 {v(vT)}, 15, {v(vLANE)}")
    A(f"v_mul_u32_u24 {v(vT)}, 896, {v(vT)}")
    A(f"v_add_u32 {v(xPF+1)}, {s(sT0)}, {v(vT)}")
    A(f"s_cmp_eq_u32 {s(sCI)}, 0")
    A(f"s_mov_b32 {s(sT0)}, {XR+2*16384}")
    A(f"s_cselect_b32 {s(sT0)}, {WR+3*16384}, {s(sT0)}")
    A(f"v_lshl_add_u32 {v(xPA)}, {v(vLANE)}, 2, {s(sT0)}")
    A(f"s_xor_b32 {s(sT0)}, {s(sXW)}, 1")
    A(f"s_mul_i32 {s(sT0)}, {s(sT0)}, {KA_SZ}")
    A(f"v_lshl_add_u32 {v(xPA+1)}, {v(vLANE)}, 2, {s(sT0)}")

    def gaddr(ph):
        A(f"v_and_b32 {v(vT)}, 31, {v(vLANE)}")
        A(f"v_lshrrev_b32 {v(vT2)}, 5, {v(vLANE)}")
        if ph == 0:
            A(f"v_lshl_add_u32 {v(vT)}, {v(vT)}, 1, {v(vT2)}")
            A(f"v_lshl_add_u32 {v(xTA)}, {v(vT)}, 4, {s(sTBc)}")
            A(f"s_add_u32 {s(sT0)}, {s(sTBc)}, 1024")
            A(f"v_lshl_add_u32 {v(xTA+1)}, {v(vT)}, 3, {s(sT0)}")
        else:
            A(f"s_add_u32 {s(sT0)}, {s(sTBc)}, {384*4}")
            A(f"v_lshl_add_u32 {v(xTA)}, {v(vLANE)}, 3, {s(sT0)}")
            A(f"v_lshl_add_u32 {v(vT)}, {v(vT2)}, 6, {v(vT)}")
            A(f"s_add_u32 {s(sT0)}, {s(sTBc)}, {512*4}")
            A(f"v_lshl_add_u32 {v(xTA+1)}, {v(vT)}, 2, {s(sT0)}")
        A(f"v_lshlrev_b32 {v(vT)}, 4, {v(vLANE)}")
        A(f"v_sub_u32 {v(vT)}, {2047-1024*ph}, {v(vT)}")
        if ph:
            A(f"v_cmp_gt_u32 vcc, 256, {v(vT)}")
            A(f"v_subrev_u32 {v(vT2)}, 16, {v(vT)}")
            A(f"v_mov_b32 {v(vT3)}, 144")
            A(f"v_cndmask_b32 {v(vT)}, {v(vT)}, {v(vT3)}, vcc")
            A(f"v_mov_b32 {v(vT3)}, 128")
            A(f"v_cndmask_b32 {v(vT2)}, {v(vT3)}, {v(vT2)}, vcc")
        else:
            A(f"v_mov_b32 {v(vT2)}, 128")
        A(f"v_cvt_f32_u32 {v(vT)}, {v(vT)}")
        A(f"v_subrev_u32 {v(vT2)}, 0x4300, {v(vT2)}")
        A(f"v_lshl_add_u32 {v(vT2)}, {v(vT2)}, 2, {s(sTBc)}")
        for k in (range(0, 17, 2) if ph else (0, 8, 16)):
            A(f"v_subrev_f32 {v(xGA+k)}, {f2u(float(k)):#x}, {v(vT)}")
            A(f"v_subrev_f32 {v(xGA+k+1)}, {f2u(float(k+1)):#x}, {v(vT)}")
            A(f"v_cvt_pk_bf16_f32 {v(vT3)}, {v(xGA+k)}, {v(xGA+k+1)}")
            A(f"v_mad_u32_u16 {v(xGA+k)}, {v(vT3)}, 4, {v(vT2)}")
            if k < 16 and ph:
                A(f"v_mad_u32_u16 {v(xGA+k+1)}, {v(vT3)}, 4, {v(vT2)} op_sel:[1,0,0,0]")
    by_ph(lambda: gaddr(0), lambda: gaddr(1))


def warm_d():
    sk = A.new("wd")
    if OPT["nmain"] < 4:
        A(f"s_cmp_ge_u32 {s(sXW)}, {OPT['nmain']}")
        A(f"s_cbranch_scc1 {sk}")
    A(f"global_load_dword {v(xPF+5)}, {v(xPF+4)}, {s(pWD,2)}")
    A.label(sk)


def phase0():
    A.vm = 0
    R = KR_
    vT, vT2, vT3 = 120, 121, 122
    P = R["P"]
    A(f"s_mul_i32 {s(sCH0)}, {s(sXCD)}, 28")
    A(f"s_add_u32 {s(sCH0)}, {s(sCH0)}, {s(sJ)}")
    A(f"s_lshl_b32 {s(sCH0)}, {s(sCH0)}, 1")
    A(f"s_bfe_u32 {s(sCI)}, {s(sWAVE)}, 0x10001")
    A(f"s_add_u32 {s(sCH)}, {s(sCH0)}, {s(sCI)}")
    A(f"s_lshr_b32 {s(sT0)}, {s(sWAVE)}, 2")
    A(f"s_lshl_b32 {s(sT0)}, {s(sT0)}, 1")
    A(f"s_and_b32 {s(sT1)}, {s(sWAVE)}, 1")
    A(f"s_add_u32 {s(sT0)}, {s(sT0)}, {s(sT1)}")
    A(f"s_lshl_b32 {s(sT0)}, {s(sT0)}, 7")
    A(f"s_lshl_b32 {s(sT3)}, {s(sCH)}, 9")
    A(f"s_add_u32 {s(sT0)}, {s(sT0)}, {s(sT3)}")
    A(f"v_lshl_add_u32 {v(vT3)}, {v(vLANE)}, 1, {s(sT0)}")
    A(f"s_lshl_b32 {s(sT3)}, {s(sCH0)}, 1")
    A(f"s_and_b32 {s(sT5)}, {s(sWAVE)}, 3")
    A(f"v_lshrrev_b32 {v(vT)}, 4, {v(vLANE)}")
    A(f"v_mul_u32_u24 {v(vWO)}, 3584, {v(vT)}")
    A(f"v_bfe_u32 {v(vT2)}, {v(vLANE)}, 2, 2")
    A(f"v_xor_b32 {v(vT2)}, {v(vT2)}, {v(vT)}")
    A(f"v_lshl_add_u32 {v(vWO)}, {v(vT2)}, 6, {v(vWO)}")
    A(f"v_and_b32 {v(vT2)}, 3, {v(vLANE)}")
    A(f"v_lshl_add_u32 {v(vWO)}, {v(vT2)}, 4, {v(vWO)}")
    A(f"s_mul_i32 {s(sT0)}, {s(sT5)}, {8*3584}")
    A(f"s_lshl_b32 {s(sT2)}, {s(sFB)}, 8")
    A(f"s_add_u32 {s(sT0)}, {s(sT0)}, {s(sT2)}")
    A(f"v_add_u32 {v(vWO)}, {s(sT0)}, {v(vWO)}")
    A(f"s_lshl_b32 {s(sT0)}, {s(sT1)}, 2")
    A(f"v_add_u32 {v(vT)}, {s(sT0)}, {v(vT)}")
    A(f"v_and_b32 {v(vT2)}, 7, {v(vLANE)}")
    A(f"v_xor_b32 {v(vT2)}, {v(vT2)}, {v(vT)}")
    A(f"v_lshrrev_b32 {v(vT)}, 3, {v(vLANE)}")
    A(f"v_mul_u32_u24 {v(vXO)}, 896, {v(vT)}")
    A(f"v_lshl_add_u32 {v(vXO)}, {v(vT2)}, 4, {v(vXO)}")
    A(f"s_lshl_b32 {s(sT0)}, {s(sRB)}, 4")
    A(f"s_add_u32 {s(sT0)}, {s(sT0)}, {s(sT5)}")
    A(f"s_mul_i32 {s(sT0)}, {s(sT0)}, {8*896}")
    A(f"v_add_u32 {v(vXO)}, {s(sT0)}, {v(vXO)}")
    A(f"s_lshl_b32 {s(sWO)}, {s(sT5)}, 11")
    A(f"s_lshl_b32 {s(sXO)}, {s(sT5)}, 10")
    A(f"s_mul_i32 {s(sWoff)}, {s(sGRP)}, {OPT['rot1']*64*3584}")
    A(f"s_add_u32 {s(sWoff1)}, {s(sWoff)}, {4*3584}")
    A(f"s_mul_i32 {s(sXoff)}, {s(sGRP)}, {OPT['rot1']*128}")
    kernarg_ready()
    for k, p in enumerate((pLA, pAI, pCR, pCI)):
        par = A.vmem(f"global_load_ushort {v(P+k)}, {v(vT3)}, {s(p,2)}")
    A(f"s_load_dword {s(sT4)}, {s(pLDT,2)}, {s(sT3)}")
    srd(rWG, pWG, 448 * 1792 * 2)
    srd(rWU, pWU, 448 * 1792 * 2)
    srd(rX, pX, 2048 * 448 * 2)
    isx, join = A.new("px"), A.new("pj")
    A(f"s_cmp_ge_u32 {s(sWAVE)}, 4")
    A(f"s_cbranch_scc1 {isx}")
    dma_w(0); dma_x(0, range(4))
    c_setup()
    A(f"s_branch {join}")
    A.label(isx)
    x_setup()
    A.label(join)
    srd(rWS, pWS, WS_BYTES)

    def c_only(f):
        sk = A.new("co")
        A(f"s_cmp_ge_u32 {s(sWAVE)}, 4")
        A(f"s_cbranch_scc1 {sk}")
        f()
        A.label(sk)
    A(f"v_lshl_add_u32 {v(vT)}, {v(vLANE)}, 6, {s(sKB)}")
    A(f"v_bfe_u32 {v(vT2)}, {v(vLANE)}, 1, 2")
    for k in range(4):
        A(f"v_xor_b32 {v(vT3)}, {k}, {v(vT2)}")
        A(f"v_lshl_add_u32 {v(R['wa']+k)}, {v(vT3)}, 4, {v(vT)}")
    A(f"v_bfe_u32 {v(vT2)}, {v(vLANE)}, 2, 2")
    A(f"v_lshrrev_b32 {v(vT)}, 5, {v(vLANE)}")
    A(f"v_lshl_add_u32 {v(vT)}, {v(vT)}, 3, {v(vT2)}")
    A(f"v_lshl_add_u32 {v(vT)}, {v(vT)}, 6, {s(sKB)}")
    A(f"v_bfe_u32 {v(vT2)}, {v(vLANE)}, 4, 1")
    A(f"v_lshl_add_u32 {v(vT)}, {v(vT2)}, 5, {v(vT)}")
    A(f"v_lshrrev_b32 {v(vT2)}, 1, {v(vLANE)}")
    A(f"v_lshrrev_b32 {v(vT3)}, 3, {v(vLANE)}")
    A(f"v_xor_b32 {v(vT2)}, {v(vT2)}, {v(vT3)}")
    A(f"v_and_b32 {v(vT2)}, 1, {v(vT2)}")
    A(f"v_lshl_add_u32 {v(vT)}, {v(vT2)}, 4, {v(vT)}")
    A(f"v_and_b32 {v(vT2)}, 1, {v(vLANE)}")
    A(f"v_lshl_add_u32 {v(R['ra'])}, {v(vT2)}, 3, {v(vT)}")
    A(f"v_add_u32 {v(R['ra']+1)}, 256, {v(R['ra'])}")
    A(f"v_xor_b32 {v(R['ra']+1)}, 32, {v(R['ra']+1)}")
    A("s_waitcnt lgkmcnt(0)")
    A(f"s_lshl_b32 {s(sT0)}, {s(sT4)}, 16")
    A(f"s_and_b32 {s(sT2)}, {s(sT4)}, 0xffff0000")
    A(f"s_cmp_eq_u32 {s(sCI)}, 0")
    A(f"s_cselect_b32 {s(sT0)}, {s(sT0)}, {s(sT2)}")
    A(f"v_mov_b32 {v(vT)}, {LOG2E:#x}")
    A(f"v_mul_f32 {v(vT)}, {s(sT0)}, {v(vT)}")
    A(f"v_exp_f32 {v(vT)}, {v(vT)}")
    A("s_nop 0")
    A(f"v_cvt_pk_bf16_f32 {v(vT)}, {v(vT)}, {v(vT)}")
    A(f"v_lshlrev_b32 {v(P+4)}, 16, {v(vT)}")
    A(f"v_add_f32 {v(P+5)}, {v(P+4)}, {v(P+4)}")
    A(f"v_lshl_add_u32 {v(vT)}, {v(vLANE)}, 2, {s(sKB)}")
    stamp(6)
    isx, join = A.new("px"), A.new("pj")
    A(f"s_cmp_ge_u32 {s(sWAVE)}, 4")
    A(f"s_cbranch_scc1 {isx}")
    if OPT["w1h"] < 0:
        dma_w(1)
    A.wait_vm(par)
    A(f"s_branch {join}")
    A.label(isx)
    A("s_waitcnt vmcnt(0)")
    if OPT["pfh"] == -2:
        A(f"global_load_dword {v(xPF+2)}, {v(xPF+1)}, {s(pX,2)}")
        A(f"global_load_dword {v(xPF+3)}, {v(xPF)}, {s(sPB,2)}")
    A.label(join)
    stamp(7)
    for k in range(4):
        A(f"v_lshlrev_b32 {v(P+k)}, 16, {v(P+k)}")
    def warm():
        A(f"global_load_dword {v(xPF+2)}, {v(xPF+1)}, {s(pX,2)}")
        A(f"global_load_dword {v(xPF+3)}, {v(xPF)}, {s(sPB,2)}")

    def hook(n):
        isx, join = A.new("hx"), A.new("hj")
        A(f"s_cmp_ge_u32 {s(sWAVE)}, 4")
        A(f"s_cbranch_scc1 {isx}")
        if OPT["w1h"] < 0:
            dma_w(2) if n == 0 else dma_x(1, range(4))
        elif OPT["w1h"] == 0:
            if n == 0:
                dma_w(1)
            else:
                dma_w(2); dma_x(1, range(4))
        elif n == 1:
            dma_w(1); dma_w(2); dma_x(1, range(4))
        A(f"s_branch {join}")
        A.label(isx)
        if OPT["pfh"] == n:
            warm()
        if OPT["wdh"] == n:
            warm_d()
        A.label(join)
    kgen_slot(R, hook)
    A("s_nop 11")
    DK = R["DK"]
    for r in range(0, 10, 2):
        A(f"ds_write2st64_b32 {v(vT)}, {v(DK+r)}, {v(DK+r+1)} offset0:{r} offset1:{r+1}")
    A(f"ds_write_b32 {v(vT)}, {v(DK+10)} offset:2560")
    stamp(8)
    A(f"s_cmp_ge_u32 {s(sWAVE)}, 4")
    A("s_cbranch_scc1 L_xw")
    if OPT.get("p0"):
        STAMP_ON[0] = False


def cwave():
    vXA, vWA, vL16, vT, vT2, vFL, vD, vZ = cXA, cWA, cL16, cT, cT2, cFL, cD, cZ
    FR = 16
    SM, SEL, SAC = cSM, cSEL, cSAC
    ACC = 128

    def xf(st, rbk): return FR + 24 * st + 4 * rbk
    def wf(st, mat, j): return FR + 24 * st + 8 + 4 * (2 * mat + j)
    def acc(mat, j, rbk): return ACC + 16 * ((mat * 2 + j) * 2 + rbk)

    if OPT["prio"]:
        A(f"s_setprio {OPT['prio']}")

    def reads(st, c, ks):
        xs = ((c // 2) % 3) * 16384
        k4 = (c % 2) * 2 + ks
        ws_ = (c % 4) * 16384 + ks * 4096
        r = []
        r.append(f"ds_read_b128 {v(xf(st,0),4)}, {v(vXA+k4)} offset:{xs}")
        for j in range(2):
            for mat in range(2):
                for h in range(2):
                    r.append(f"ds_read_b64_tr_b16 {v(wf(st,mat,j)+2*h,2)}, {v(vWA+j)} offset:{ws_+mat*8192+h*1024}")
            if j == 0:
                r.append(f"ds_read_b128 {v(xf(st,1),4)}, {v(vXA+k4)} offset:{xs+4096}")
        return r

    def mf(st, first):
        if OPT["snake"] == 1:
            order = [(0, 0, 0), (0, 0, 1), (0, 1, 1), (0, 1, 0), (1, 1, 0), (1, 1, 1), (1, 0, 1), (1, 0, 0)]
        elif OPT["snake"] == 2:
            order = [(0, 0, 0), (0, 1, 0), (0, 1, 1), (0, 0, 1), (1, 0, 1), (1, 1, 1), (1, 1, 0), (1, 0, 0)]
        elif OPT["snake"] == 3:
            order = [(0, 0, 0), (0, 0, 1), (1, 0, 1), (1, 0, 0), (1, 1, 0), (1, 1, 1), (0, 1, 1), (0, 1, 0)]
        else:
            order = [(j, rbk, mat) for j in range(2) for rbk in range(2) for mat in range(2)]
        m = []
        for j, rbk, mat in order:
            a = acc(mat, j, rbk)
            cc = "0" if first else v(a, 16)
            m.append(f"v_mfma_f32_32x32x16_bf16 {v(a,16)}, {v(wf(st,mat,j),4)}, {v(xf(st,rbk),4)}, {cc}")
        return m

    def smf(st, first):
        return [f"v_mfma_f32_16x16x32_bf16 {v(SAC+4*mat,4)}, {v(SEL,4)}, {v(wf(st,mat,0),4)}, {'0' if first else v(SAC+4*mat,4)}"
                for mat in range(2)]

    def mix(st, first):
        b, sm = mf(st, first), smf(st, first)
        if OPT["nos"]:
            return b
        return b[:5] + sm + b[5:]

    def phase(ms, rs, extra=None):
        rs = list(rs)
        for i, m in enumerate(ms):
            if i == len(ms) - 1:
                A("s_waitcnt lgkmcnt(0)")
            A(m)
            for _ in range(2):
                if rs:
                    A(rs.pop(0))
            if i == 6 and extra:
                extra()

    mid = [0]

    def mloads():
        A(f"s_lshl_b32 {s(sT2)}, {s(sRB)}, 1")
        A(f"s_add_u32 {s(sT2)}, {s(sT2)}, {s(sRH)}")
        A(f"s_lshl_b32 {s(sT2)}, {s(sT2)}, 9")
        A(f"s_add_u32 {s(sT2)}, {s(sT2)}, {OFF_ST}")
        A(f"v_lshrrev_b32 {v(vT)}, 1, {v(vL16)}")
        A("s_mov_b32 exec_hi, 0")
        for rbk in range(2):
            mid[0] = A.vmem(f"buffer_load_dword {v(SM+16+4*rbk)}, {v(vT)}, {s(rWS,4)}, {s(sT2)} offen offset:{256*rbk} sc1")
        A("s_mov_b32 exec_hi, -1")

    sHA = 78

    def haddr():
        A(f"s_lshl_b32 {s(sT0)}, {s(sRB)}, 1")
        A(f"s_add_u32 {s(sT0)}, {s(sT0)}, {s(sRH)}")
        A(f"s_lshl_b32 {s(sT1)}, {s(sFB)}, 1")
        A(f"s_add_u32 {s(sT1)}, {s(sT1)}, {s(sFH)}")
        A(f"s_mul_i32 {s(sT2)}, {s(sT0)}, {224*1024}")
        A(f"s_lshl_b32 {s(sT3)}, {s(sT1)}, 12")
        A(f"s_add_u32 {s(sT2)}, {s(sT2)}, {s(sT3)}")
        A(f"s_add_u32 {s(sT2)}, {s(sT2)}, {OFF_H}")
        A(f"s_lshl_b32 {s(sT3)}, {s(sRH)}, 11")
        A(f"s_add_u32 {s(sHA)}, {s(sT2)}, {s(sT3)}")
        A(f"s_xor_b32 {s(sHA+1)}, {s(sHA)}, 2048")
        A(f"s_add_u32 {s(sHA+2)}, {s(sHA)}, {112*1024}")
        A(f"s_add_u32 {s(sHA+3)}, {s(sHA+1)}, {112*1024}")
        A(f"s_lshl_b32 {s(sT4)}, {s(sT0)}, 7")
        A(f"s_lshl_b32 {s(sT1)}, {s(sT1)}, 2")
        A(f"s_add_u32 {s(sT4)}, {s(sT4)}, {s(sT1)}")
        A(f"s_add_u32 {s(sT4)}, {s(sT4)}, {OFF_FL}")
    haddr()
    A.wait_vm(xid[0])
    A("s_waitcnt lgkmcnt(0)")
    A("s_barrier")
    stamp(1)
    for r in reads(0, 0, 0):
        A(r)
    A("s_waitcnt lgkmcnt(0)")
    for c in range(14):
        phase(mix(0, c == 0), reads(1, c, 1))
        if c < 13:
            if c == 0:
                A.wait_vm(wid[1])
            if c == 1:
                A.wait_vm(xid[1])
            A("s_barrier")
            if c in (3, 8):
                stamp({3: 9, 8: 10}[c])
            phase(mix(1, False), reads(0, c + 1, 0), mloads if c + 1 == H1_BAR else None)
    vDA = 2
    ms = mf(1, False)
    for m in smf(1, False) + ms[:3]:
        A(m)
    A(f"s_lshl_b32 {s(sT0)}, {s(sWAVE)}, 9")
    A(f"v_lshrrev_b32 {v(vT)}, 2, {v(vL16)}")
    A(f"v_add_u32 {v(vT)}, {s(sT0)}, {v(vT)}")
    A(f"v_add_u32 {v(vDA)}, {XR}, {v(cDB)}")
    A(f"v_xor_b32 {v(vDA+1)}, 64, {v(vDA)}")
    for mat in range(2):
        d = SM + 8 * mat
        A(f"v_cvt_pk_bf16_f32 {v(d)}, {v(SAC+4*mat)}, {v(SAC+4*mat)}")
        A(f"v_lshlrev_b32 {v(d)}, 16, {v(d)}")
        A(f"v_sub_f32 {v(vT2)}, {v(SAC+4*mat)}, {v(d)}")
        A(f"v_cvt_pk_bf16_f32 {v(d)}, {v(d)}, {v(vT2)}")
        if mat == 0:
            A(ms[3])
    A(f"v_add_u32 {v(vT2)}, {SX}, {v(vT)}")
    A(f"ds_write2st64_b32 {v(vT2)}, {v(SM)}, {v(SM+8)} offset0:0 offset1:1")
    A(f"v_xor_b32 {v(vT)}, 512, {v(vT)}")
    A(ms[4])
    A(f"v_add_u32 {v(vDA+2)}, {WR}, {v(cDB)}")
    A(f"v_xor_b32 {v(vDA+3)}, 64, {v(vDA+2)}")
    A(ms[5])
    A("s_waitcnt lgkmcnt(0)")
    A("s_barrier")
    ACC2, HB, W2 = 192, 128, 176
    HD = OPT["hd"]

    def w1(pos):
        return 104 + 8 * pos if pos < 3 else 16 + 8 * (pos - 3)

    def wd_reads(dst, pos):
        sl = WD_SLOT[(pos % 14) // 2]
        hi = sl >= WR
        off = sl - (WR if hi else XR) + (pos % 2) * 2048
        return [f"ds_read_b64_tr_b16 {v(dst+4*cj+2*h,2)}, {v(vDA+2*hi+cj)} offset:{off+h*1024}"
                for cj in range(2) for h in range(2)]
    for mat in range(2):
        A(f"ds_read_b32 {v(SM+8*mat+4)}, {v(vT)} offset:{SX+256*mat}")
    for m in ms[6:]:
        A(m)
    A.wait_vm(mid[0])
    rs = [r for pos in range(4) for r in wd_reads(w1(pos), pos)]
    for j in range(2):
        if j == 1:
            A("s_waitcnt lgkmcnt(8)")
        for rbk in range(2):
            for mat in range(2):
                a = acc(mat, j, rbk)
                A(f"v_mfma_f32_32x32x16_bf16 {v(a,16)}, {v(SM+4*(2*mat+j),4)}, {v(SM+16+4*rbk,4)}, {v(a,16)}")
                A(rs.pop(0))
                A(rs.pop(0))
    stamp(2)
    if OPT["eprio"]:
        A(f"s_setprio {OPT['eprio']}")
    for j in range(2):
        for rbk in range(2):
            g_, u_ = acc(0, j, rbk), acc(1, j, rbk)
            for ab in range(2):
                b = 8 * ab
                for e in range(8):
                    A(f"v_max_f32 {v(g_+b+e)}, 0, {v(g_+b+e)}")
                if OPT["b15"]:
                    for e in range(0, 8, 2):
                        A(f"v_pk_mul_f32 {v(g_+b+e,2)}, {v(g_+b+e,2)}, {v(u_+b+e,2)}")
                else:
                    for e in range(8):
                        A(f"v_mul_f32 {v(g_+b+e)}, {v(g_+b+e)}, {v(u_+b+e)}")
                for e in range(4):
                    A(f"v_cvt_pk_bf16_f32 {v(g_+b+e)}, {v(g_+b+2*e)}, {v(g_+b+2*e+1)}")
                hs = A.vmem(f"buffer_store_dwordx4 {v(g_+b,4)}, {v(vL16)}, {s(rWS,4)}, {s(sHA+2*rbk+j)} offen offset:{ab*1024} sc1")
    stamp(6)
    if OPT["eprio"]:
        A("s_setprio 0")
    A("s_waitcnt lgkmcnt(0)")
    if OPT["b15"]:
        A("s_barrier")
    else:
        lds_wait(vZ, F_WD, 1, vT)
    for pos in range(4, 10):
        for r in wd_reads(w1(pos), pos):
            A(r)
    vPL = 15
    pl = 0
    for pp in range(7, 14):
        if pp == 9:
            A("s_waitcnt lgkmcnt(0)")
        if pp == 7 + OPT["npre"]:
            A(f"v_mov_b32 {v(vT)}, {s(sT4)}")
            A(f"v_mov_b32 {v(vT2)}, 1")
            A.wait_vm(hs)
            A("s_mov_b64 exec, 1")
            A.vmem(f"global_store_dword {v(vT)}, {v(vT2)}, {s(pWS,2)} sc1")
            A("s_mov_b64 exec, -1")
            if OPT["selfpf"]:
                A(f"v_lshrrev_b32 {v(vT)}, 5, {v(vLANE)}")
                A(f"v_mul_u32_u24 {v(vT)}, {112*1024}, {v(vT)}")
                A(f"v_and_b32 {v(vT2)}, 31, {v(vLANE)}")
                A(f"v_lshl_add_u32 {v(vT)}, {v(vT2)}, 7, {v(vT)}")
                A(f"s_and_b32 {s(sT1)}, {s(sHA)}, {0xffffffff ^ 2048:#x}")
                A(f"s_bfe_u32 {s(sT2)}, {s(sJ)}, 0x10001")
                A(f"s_lshr_b32 {s(sT3)}, {s(sXCD)}, 2")
                A(f"s_cmp_eq_u32 {s(sT2)}, {s(sT3)}")
                A("s_cselect_b64 exec, -1, 1")
                A.vmem(f"buffer_load_dword {v(vPL)}, {v(vT)}, {s(rWS,4)}, {s(sT1)} offen sc1")
                A("s_mov_b64 exec, -1")
            stamp(3)
        if pp == 11:
            lds_wait(vZ, F_WD, 2, vT)
            for pos in range(10, 14):
                for r in wd_reads(w1(pos), pos):
                    A(r)
        if pp == 12:
            A("s_waitcnt lgkmcnt(0)")
        if pp == OPT["stat"]:
            lds_set(vZ, F_GO, 1, vT)
        dma_d(pp, vD)
        if pp == OPT["pollat"]:
            pl = A.vmem(f"global_load_dword {v(vPL)}, {v(vFL)}, {s(pWS,2)} sc1")
    sHB, sHB2, sH0, sH1 = 78, 79, 80, 81
    A(f"s_mul_i32 {s(sHB)}, {s(sRB64)}, {224*1024}")
    A(f"s_mul_i32 {s(sT0)}, {s(sWAVE)}, {14*1024}")
    A(f"s_add_u32 {s(sHB)}, {s(sHB)}, {s(sT0)}")
    A(f"s_add_u32 {s(sHB)}, {s(sHB)}, {OFF_H}")
    A(f"s_lshr_b32 {s(sT0)}, {s(sXCD)}, 2")
    A(f"s_mul_i32 {s(sT0)}, {s(sT0)}, {56*1024}")
    A(f"s_sub_u32 {s(sHB2)}, {s(sHB)}, {s(sT0)}")
    A(f"s_add_u32 {s(sHB2)}, {s(sHB2)}, {56*1024}")
    A(f"s_add_u32 {s(sHB)}, {s(sHB)}, {s(sT0)}")
    vPW = [6, 7, 12, 14]
    A(f"s_add_u32 {s(sT0)}, {s(sW4K)}, {WR}")
    A(f"v_lshl_add_u32 {v(vPW[0])}, {v(vLANE)}, 2, {s(sT0)}")
    for k, rot in ((1, 16), (2, 128), (3, 144)):
        A(f"v_xor_b32 {v(vPW[k])}, {rot}, {v(vPW[0])}")
    ok = A.new("h2")
    A.wait_vm(pl)
    stamp(8)
    A(f"v_cmp_ne_u32 vcc, 0, {v(vPL)}")
    A("s_nop 0")
    A("s_cmp_eq_u64 vcc, exec")
    A(f"s_cbranch_scc1 {ok}")
    poll_global(vFL, vT, pWS, sleep=OPT["psl"])
    A.label(ok)
    stamp(4)
    hid = {}

    def h_load(ks):
        p = ks % 14
        if p % 4 == 0:
            A(f"s_add_u32 {s(sH0)}, {s(sHB if ks < 14 else sHB2)}, {p*1024}")
            A(f"s_add_u32 {s(sH1)}, {s(sH0)}, {112*1024}")
        for rbk in range(2):
            hid[ks] = A.vmem(f"buffer_load_dwordx4 {v(HB+8*(ks%HD)+4*rbk,4)}, {v(vL16)}, {s(rWS,4)}, {s(sH0+rbk)} offen offset:{(p%4)*1024} sc1")
    for ks in range(HD):
        h_load(ks)
    for ks in range(28):
        A.wait_vm(hid[ks])
        if ks == OPT["goat"]:
            lds_set(vZ, F_GO, 2, vT)
        if OPT["go2"] and ks == OPT["go2"]:
            lds_set(vZ, F_GO, 3, vT)
        if ks >= 13 and ks + 1 < 28:
            for r in wd_reads(W2 + 8 * ((ks + 1) % 2), ks + 1):
                A(r)
        if ks >= 14:
            A(f"s_waitcnt lgkmcnt({4 if ks + 1 < 28 else 0})")
        wb = w1(ks) if ks < 14 else W2 + 8 * (ks % 2)
        for rbk in range(2):
            for cj in ((0, 1) if (rbk == 0 or not OPT["snake"]) else (1, 0)):
                a = ACC2 + 16 * (2 * rbk + cj)
                cc = "0" if ks == 0 else v(a, 16)
                A(f"v_mfma_f32_32x32x16_bf16 {v(a,16)}, {v(HB+8*(ks%HD)+4*rbk,4)}, {v(wb+4*cj,4)}, {cc}")
        if ks + HD < 28:
            h_load(ks + HD)
    stamp(7)
    A("s_nop 8")
    for t in range(4):
        for r in (0, 1, 2, 3, 8, 9, 10, 11):
            A(f"ds_write2st64_b32 {v(vPW[r%4])}, {v(ACC2+16*t+r)}, {v(ACC2+16*t+r+4)} offset0:{64*t+r} offset1:{64*t+r+4}")
    A("s_waitcnt lgkmcnt(0)")
    A("s_barrier")
    A("s_branch L_fin")


def xwave():
    A.label("L_xw")
    A.vm = 0
    A.xw = True
    vT, vT2, vT3, vMine, vOther = xT, xT2, xT3, xMine, xOther
    vRow, vC8, vKA, vUA, vB, vG4 = xRow, xC8, xKA, xUA, xB, xG4
    DK = KR_["DK"]
    U0 = 204
    XV, STV, DV, TV, DF = 212, 220, 224, 228, 244
    GV, PK = 16, 40
    vFLG, vFV = 16, 17
    CA, FS = 32, 64

    def sum_partials(regs):
        prs = [regs[i:i + 2] for i in range(0, len(regs), 2)]
        for n, (va, o) in enumerate(((xPA, 0), (xPA, 32), (xPA + 1, 0))):
            for k, pr in enumerate(prs):
                d = GV + 8 * n + 2 * k
                if len(pr) == 2:
                    A(f"ds_read2st64_b32 {v(d,2)}, {v(va)} offset0:{o+pr[0]} offset1:{o+pr[1]}")
                else:
                    A(f"ds_read_b32 {v(d)}, {v(va)} offset:{(o+pr[0])*256}")
        A("s_waitcnt lgkmcnt(0)")
        for n in range(3):
            for k, r in enumerate(regs):
                A(f"v_add_f32 {v(DK+r)}, {v(DK+r)}, {v(GV+8*n+k)}")

    def i1_lo():
        sum_partials([0, 1, 2, 3, 4, 5])
        A(f"ds_write2_b32 {v(xTA)}, {v(DK)}, {v(DK+1)} offset0:0 offset1:1")
        A(f"ds_write2_b32 {v(xTA)}, {v(DK+2)}, {v(DK+3)} offset0:2 offset1:3")
        A(f"ds_write2_b32 {v(xTA+1)}, {v(DK+4)}, {v(DK+5)} offset0:0 offset1:1")

    def i1_hi():
        sum_partials([6, 7, 8, 9, 10])
        A(f"ds_write2_b32 {v(xTA)}, {v(DK+6)}, {v(DK+7)} offset0:0 offset1:1")
        A(f"ds_write2_b32 {v(xTA+1)}, {v(DK+8)}, {v(DK+9)} offset0:0 offset1:32")
        A("s_mov_b64 exec, 1")
        A(f"ds_write_b32 {v(xTA+1)}, {v(DK+10)} offset:{128*4}")
        A("s_mov_b64 exec, -1")

    def gather(ph):
        for k in (range(17) if ph else (0, 8, 16)):
            A(f"ds_read_b32 {v(GV+k)}, {v(xGA+k)}")
        A("s_waitcnt lgkmcnt(0)")
        src = list(range(GV, GV + 17)) if ph else [GV] * 4 + [GV + 8] * 7 + [GV + 16] * 6
        for cp in range(2):
            for k in range(8):
                A(f"v_cvt_pk_bf16_f32 {v(PK+8*cp+k)}, {v(src[2*k+cp])}, {v(src[2*k+cp+1])}")

    def kr_addr():
        A(f"s_lshl_b32 {s(sT0)}, {s(sPH)}, 11")
        A(f"s_add_u32 {s(sT1)}, {s(sT0)}, {s(sKR)}")
        A(f"v_lshl_add_u32 {v(vT)}, {v(vLANE)}, 5, {s(sT1)}")
        for i in range(4):
            A(f"v_mov_b32 {v(GV+i)}, 0")
        A(f"s_mul_i32 {s(sT0)}, {s(sPH)}, {KR_PITCH}")
        A(f"s_add_u32 {s(sT0)}, {s(sT0)}, {s(sKR)}")
        A(f"v_and_b32 {v(vT2)}, 1, {v(vLANE)}")
        A(f"v_lshl_add_u32 {v(vT2)}, {v(vT2)}, 4, {s(sT0)}")

    def kr_write(cp):
        A(f"ds_write_b128 {v(vT)}, {v(PK+8*cp,4)} offset:{cp*KR_PITCH}")
        A(f"ds_write_b128 {v(vT)}, {v(PK+8*cp+4,4)} offset:{cp*KR_PITCH+16}")
        if cp:
            A(f"ds_write_b128 {v(vT2)}, {v(GV,4)} offset:4096")

    def conv_setup():
        A(f"v_and_b32 {v(vB)}, 15, {v(vLANE)}")
        A(f"v_lshrrev_b32 {v(vG4)}, 4, {v(vLANE)}")
        A(f"v_sub_u32 {v(vT)}, 2031, {v(vB)}")
        A(f"v_and_b32 {v(vT2)}, 1, {v(vT)}")
        A(f"v_mul_u32_u24 {v(vT2)}, {KR_PITCH}, {v(vT2)}")
        A(f"v_lshrrev_b32 {v(vT)}, 1, {v(vT)}")
        A(f"v_lshl_add_u32 {v(vT)}, {v(vT)}, 2, {v(vT2)}")
        A(f"v_lshl_add_u32 {v(vT)}, {v(vG4)}, 4, {v(vT)}")
        A(f"s_lshl_b32 {s(sT0)}, {s(sPH)}, 8")
        A(f"s_sub_u32 {s(sT1)}, {s(sKR)}, {s(sT0)}")
        A(f"v_add_u32 {v(vT)}, {s(sT1)}, {v(vT)}")
        for p in range(4):
            A(f"v_subrev_u32 {v(vKA+p)}, {512*(2*p+1)+192}, {v(vT)}")
        A(f"s_sub_u32 {s(sT1)}, {s(sUBc)}, {s(sT0)}")
        A(f"s_add_u32 {s(sT1)}, {s(sT1)}, {448-192}")
        A(f"v_lshl_add_u32 {v(vUA)}, {v(vB)}, 5, {s(sT1)}")
        A(f"v_lshl_add_u32 {v(vUA)}, {v(vG4)}, 4, {v(vUA)}")

    ids = {}

    def t_loads():
        A(f"v_bfe_u32 {v(vRow)}, v0, 3, 5")
        A(f"v_and_b32 {v(vC8)}, 7, v0")
        A(f"v_mul_u32_u24 {v(xFO)}, 896, {v(vRow)}")
        A(f"v_lshl_add_u32 {v(xFO)}, {v(vC8)}, 4, {v(xFO)}")
        A(f"s_mul_i32 {s(sT1)}, {s(sRB64)}, {64*896}")
        A(f"s_lshl_b32 {s(sT2)}, {s(sCB)}, 7")
        A(f"s_add_u32 {s(sT1)}, {s(sT1)}, {s(sT2)}")
        A(f"v_add_u32 {v(xFO)}, {s(sT1)}, {v(xFO)}")
        A(f"v_add_u32 {v(xFO+1)}, {32*896}, {v(xFO)}")
        A.vmem(f"global_load_dwordx4 {v(XV,4)}, {v(xFO)}, {s(pX,2)}")
        A.vmem(f"global_load_dwordx4 {v(XV+4,4)}, {v(xFO+1)}, {s(pX,2)}")
        A(f"v_lshl_add_u32 {v(vT)}, {v(vC8)}, 4, {s(sT2)}")
        A.vmem(f"global_load_dwordx4 {v(DV,4)}, {v(vT)}, {s(pDS,2)}")
        A(f"v_lshrrev_b32 {v(vT)}, 2, {v(vC8)}")
        A(f"v_lshlrev_b32 {v(xFP)}, 14, {v(vT)}")
        A(f"v_lshrrev_b32 {v(vT)}, 3, {v(vRow)}")
        A(f"v_lshl_add_u32 {v(xFP)}, {v(vT)}, 10, {v(xFP)}")
        A(f"v_and_b32 {v(vT)}, 3, {v(vRow)}")
        A(f"v_lshl_add_u32 {v(xFP)}, {v(vT)}, 8, {v(xFP)}")
        A(f"v_lshrrev_b32 {v(vT)}, 1, {v(vRow)}")
        A(f"v_lshrrev_b32 {v(vT2)}, 2, {v(vRow)}")
        A(f"v_xor_b32 {v(vT)}, {v(vT)}, {v(vT2)}")
        A(f"v_and_b32 {v(vT)}, 1, {v(vT)}")
        A(f"v_lshl_add_u32 {v(xFP)}, {v(vT)}, 7, {v(xFP)}")
        A(f"v_and_b32 {v(vT)}, 3, {v(vC8)}")
        A(f"v_lshl_add_u32 {v(xFP)}, {v(vT)}, 5, {v(xFP)}")
        A(f"v_and_b32 {v(vT)}, 1, {v(vRow)}")
        A(f"v_lshl_add_u32 {v(xFP)}, {v(vT)}, 4, {v(xFP)}")
        A(f"v_add_u32 {v(xFP)}, {WR}, {v(xFP)}")
        A(f"v_xor_b32 {v(xFP+1)}, 16, {v(xFP)}")

    def h1_issue():
        A(f"v_or_b32 {v(vFLG)}, 32, {v(vLANE)}")
        A(f"v_lshlrev_b32 {v(vFLG)}, 2, {v(vFLG)}")
        ids["h1"] = A.vmem(f"global_load_dword {v(vFV)}, {v(vFLG)}, {s(pDBG,2)} sc1")

    def h1_check():
        ok = A.new("h1")
        A.wait_vm(ids["h1"])
        A(f"v_cmp_ne_u32 vcc, 0, {v(vFV)}")
        A("s_nop 0")
        A("s_cmp_eq_u64 vcc, exec")
        A(f"s_cbranch_scc1 {ok}")
        poll_global(vFLG, vFV, pDBG, sleep=8)
        A.label(ok)
        stamp(9)

    def u_loads():
        A(f"s_lshl_b32 {s(sT0)}, {s(sPH)}, 11")
        A(f"s_lshl_b32 {s(sT1)}, {s(sCH)}, 12")
        A(f"s_add_u32 {s(sT1)}, {s(sT1)}, {s(sT0)}")
        A(f"v_lshlrev_b32 {v(vT)}, 4, {v(vLANE)}")
        A.vmem(f"buffer_load_dwordx4 {v(U0,4)}, {v(vT)}, {s(rWS,4)}, {s(sT1)} offen sc1")
        A.vmem(f"buffer_load_dwordx4 {v(U0+4,4)}, {v(vT)}, {s(rWS,4)}, {s(sT1)} offen offset:1024 sc1")
        A(f"s_lshl_b32 {s(sT1)}, {s(sRB64)}, 9")
        A(f"s_add_u32 {s(sT1)}, {s(sT1)}, {OFF_ST}")
        A(f"v_lshlrev_b32 {v(vT)}, 3, {v(vRow)}")
        A.vmem(f"buffer_load_dwordx2 {v(STV,2)}, {v(vT)}, {s(rWS,4)}, {s(sT1)} offen sc1")
        ids["u"] = A.vmem(f"buffer_load_dwordx2 {v(STV+2,2)}, {v(vT)}, {s(rWS,4)}, {s(sT1)} offen offset:256 sc1")
        A(f"s_add_u32 {s(sT1)}, {s(sT0)}, {s(sUBc)}")
        A(f"v_lshl_add_u32 {v(vT2)}, {v(vLANE)}, 4, {s(sT1)}")

    def u_write():
        A.wait_vm(ids["u"])
        A(f"ds_write_b128 {v(vT2)}, {v(U0,4)} offset:480")
        A(f"ds_write_b128 {v(vT2)}, {v(U0+4,4)} offset:{480+1024}")

    def t_compute():
        for d in range(4):
            A(f"v_lshlrev_b32 {v(DF+2*d)}, 16, {v(DV+d)}")
            A(f"v_and_b32 {v(DF+2*d+1)}, 0xffff0000, {v(DV+d)}")
        for i in range(2):
            A(f"v_lshlrev_b32 {v(STV+2*i)}, 16, {v(STV+2*i)}")
            for d in range(4):
                A(f"v_lshlrev_b32 {v(TV+8*i+2*d)}, 16, {v(XV+4*i+d)}")
                A(f"v_and_b32 {v(TV+8*i+2*d+1)}, 0xffff0000, {v(XV+4*i+d)}")
            for k in range(8):
                A(f"v_add_f32 {v(vT3)}, {v(TV+8*i+k)}, {v(STV+2*i)}")
                A(f"v_mul_f32 {v(vT3)}, {v(vT3)}, {v(STV+2*i+1)}")
                A(f"v_fmac_f32 {v(TV+8*i+k)}, {v(DF+k)}, {v(vT3)}")
            A(f"v_mul_f32 {v(STV+2*i+1)}, {v(STV+2*i+1)}, {v(STV+2*i+1)}")

    def fa(st, q): return FS + 64 * st + 4 * q
    def fb_(st, x): return FS + 64 * st + 32 + 4 * x

    def creads(st, kp):
        r = []
        for q in range(8):
            o = 128 * (1 - (q & 1)) + 16 * (3 - kp)
            r.append(f"ds_read_b128 {v(fb_(st,q),4)}, {v(vUA)} offset:{512*q+64*(3-kp)}")
            r.append(f"ds_read2_b32 {v(fa(st,q),2)}, {v(vKA+q//2)} offset0:{o} offset1:{o+1}")
            r.append(f"ds_read2_b32 {v(fa(st,q)+2,2)}, {v(vKA+q//2)} offset0:{o+2} offset1:{o+3}")
        return r

    lg = lambda: A("s_waitcnt lgkmcnt(0)")
    pre = {b: [] for b in range(15)}
    post = {b: [] for b in range(15)}
    post[0] = [lg]
    post[1] = [lambda: by_ph(i1_lo, i1_hi)]
    post[2] = [lg]
    post[3] = [lambda: by_ph(lambda: gather(0), lambda: gather(1)), kr_addr]
    pre[4] = [lambda: kr_write(0)]
    pre[5] = [lambda: kr_write(1)]
    post[6] = [conv_setup]
    post[7] = [t_loads]
    post[H1_BAR - 1] += [h1_issue]
    post[H1_BAR] += [h1_check, u_loads]
    pre[max(H1_BAR + 2, OPT['uw'])] += [u_write]
    post[13] += [lg]
    assert H1_BAR + 2 <= 13
    post[14] += [lambda: [A(r) for r in creads(0, 0)], lambda: A.wait_vm(did[1])]
    for b in range(15):
        for f in pre[b]:
            f()
        if OPT["wdh"] == 10 + b:
            A.vmem(f"global_load_dword {v(xPF+5)}, {v(xPF+4)}, {s(pWD,2)}")
        if b == 2:
            dma_w(3); dma_w(4); dma_x(2, (0, 1))
        if b == 3:
            dma_x(2, (2, 3))
        if 3 <= b <= 11:
            dma_w(b + 2)
        if 3 <= b <= 10:
            dma_x((b - 3) // 2 + 3, (0, 1) if (b - 3) % 2 == 0 else (2, 3))
        for pp in {11: [0], 12: [1], 13: [2, 3], 14: [4]}.get(b, []):
            dma_d(pp, vDO)
        for f in post[b]:
            f()
        if 3 <= b < 14:
            need = wid[b]
            if b % 2 == 0:
                need = max(need, xid[b // 2])
            A.wait_vm(need)
        A("s_barrier")
        if b == 0:
            stamp(1)
    stamp(2)
    dma_d(5, vDO)
    dma_d(6, vDO)
    if OPT["b15"]:
        A.wait_vm(did[4])
        A("s_barrier")
        stamp(8)
    for kp in range(4):
        st = kp % 2
        A("s_waitcnt lgkmcnt(0)")
        rs = creads(1 - st, kp + 1) if kp < 3 else []
        for q in range(8):
            for t in range(q, 8):
                cc = "0" if (kp == 0 and q == 0) else v(CA + 4 * t, 4)
                A(f"v_mfma_f32_16x16x32_bf16 {v(CA+4*t,4)}, {v(fa(st,q),4)}, {v(fb_(st,t-q),4)}, {cc}")
                if rs:
                    A(rs.pop(0))
            if OPT["b15"]:
                if kp == 0 and q == 4:
                    A.wait_vm(did[6])
                    lds_set(vMine, F_WD, 2, vT)
            elif kp in (0, 1) and q == 4:
                A.wait_vm(did[4] if kp == 0 else did[6])
                lds_set(vMine, F_WD, kp + 1, vT)
    stamp(3)
    A(f"s_lshl_b32 {s(sT0)}, {s(sPH)}, 12")
    A(f"s_add_u32 {s(sT0)}, {s(sT0)}, {s(sKR)}")
    A(f"v_lshl_add_u32 {v(vT2)}, {v(vLANE)}, 4, {s(sT0)}")
    A(f"s_xor_b32 {s(sT1)}, {s(sPH)}, 1")
    A(f"s_lshl_b32 {s(sT1)}, {s(sT1)}, 12")
    A(f"s_add_u32 {s(sT1)}, {s(sT1)}, {s(sKR)}")
    A(f"v_lshl_add_u32 {v(vT3)}, {v(vLANE)}, 4, {s(sT1)}")
    A("s_setprio 3")

    def ex_lo():
        for t in range(4):
            A(f"ds_write_b128 {v(vT2)}, {v(CA+16+4*t,4)} offset:{EX_OFF+1024*t}")

    def ex_hi():
        for t in range(4):
            A(f"ds_write_b128 {v(vT2)}, {v(CA+4*t,4)} offset:{EX_OFF+1024*t}")
        for r in range(16):
            A(f"v_mov_b32 {v(CA+r)}, {v(CA+16+r)}")
    by_ph(ex_lo, ex_hi)
    lds_set(vMine, F_PAIR, 1, vT)
    lds_wait(vOther, F_PAIR, 1, vT)
    for t in range(4):
        A(f"ds_read_b128 {v(FS+4*t,4)}, {v(vT3)} offset:{EX_OFF+1024*t}")
    A(f"v_and_b32 {v(vT)}, 1, {v(vG4)}")
    A(f"v_lshlrev_b32 {v(vT)}, 9, {v(vT)}")
    A(f"v_lshl_add_u32 {v(vT)}, {v(vB)}, 5, {v(vT)}")
    A(f"v_lshrrev_b32 {v(vT2)}, 1, {v(vG4)}")
    A(f"v_lshl_add_u32 {v(vT)}, {v(vT2)}, 4, {v(vT)}")
    A(f"s_lshl_b32 {s(sT0)}, {s(sCH)}, 12")
    A(f"s_lshl_b32 {s(sT1)}, {s(sPH)}, 11")
    A(f"s_add_u32 {s(sT0)}, {s(sT0)}, {s(sT1)}")
    A(f"s_add_u32 {s(sT0)}, {s(sT0)}, {OFF_Y}")
    A("s_waitcnt lgkmcnt(0)")
    for r in range(16):
        A(f"v_add_f32 {v(CA+r)}, {v(CA+r)}, {v(FS+r)}")
    YP = 100
    for pr in range(2):
        for tt in range(2):
            for d in range(2):
                src = CA + 4 * (2 * pr + tt) + 2 * d
                A(f"v_cvt_pk_bf16_f32 {v(YP+4*pr+2*tt+d)}, {v(src)}, {v(src+1)}")
    A("s_nop 1")
    for pr in range(2):
        A(f"v_permlane16_swap_b32 {v(YP+4*pr)}, {v(YP+4*pr+2)}")
        A(f"v_permlane16_swap_b32 {v(YP+4*pr+1)}, {v(YP+4*pr+3)}")
    if OPT["stat"]:
        t_compute()
        lds_wait(vMine, F_GO, 1, vT2, sleep=1)
    stamp(8)
    for pr in range(2):
        A(f"buffer_store_dwordx4 {v(YP+4*pr,4)}, {v(vT)}, {s(rWS,4)}, {s(sT0)} offen offset:{1024*pr} sc1")
    if not OPT["stat"]:
        t_compute()
    A(f"s_lshr_b32 {s(sT0)}, {s(sCH)}, 6")
    A(f"s_lshl_b32 {s(sT0)}, {s(sT0)}, 1")
    A(f"s_add_u32 {s(sT0)}, {s(sT0)}, {s(sPH)}")
    A(f"s_lshl_b32 {s(sT0)}, {s(sT0)}, 8")
    A(f"s_and_b32 {s(sT1)}, {s(sCH)}, 63")
    A(f"s_lshl_b32 {s(sT1)}, {s(sT1)}, 2")
    A(f"s_add_u32 {s(sT0)}, {s(sT0)}, {s(sT1)}")
    A(f"s_add_u32 {s(sT0)}, {s(sT0)}, {OFF_FL+4096}")
    A(f"v_mov_b32 {v(vT)}, {s(sT0)}")
    A(f"v_mov_b32 {v(vT2)}, 1")
    A("s_waitcnt vmcnt(0)")
    A("s_mov_b64 exec, 1")
    A(f"global_store_dword {v(vT)}, {v(vT2)}, {s(pWS,2)} sc1")
    A("s_mov_b64 exec, -1")
    stamp(4)
    YV = 64
    A(f"s_lshl_b32 {s(sT1)}, {s(sCB)}, 1")
    A(f"s_lshr_b32 {s(sT3)}, {s(sRB64)}, 4")
    A(f"s_add_u32 {s(sT1)}, {s(sT1)}, {s(sT3)}")
    A(f"s_lshl_b32 {s(sT1)}, {s(sT1)}, 8")
    A(f"s_lshl_b32 {s(sT3)}, {s(sXW)}, 6")
    A(f"s_add_u32 {s(sT1)}, {s(sT1)}, {s(sT3)}")
    A(f"s_add_u32 {s(sT1)}, {s(sT1)}, {OFF_FL+4096}")
    A(f"v_lshl_add_u32 {v(vT)}, {v(vB)}, 2, {s(sT1)}")
    lds_wait(vMine, F_GO, 2, vT2, sleep=2)
    stamp(6)
    poll_global(vT, vT2, pWS, sleep=16)
    stamp(7)
    A(f"s_lshl_b32 {s(sT0)}, {s(sCB)}, 2")
    A(f"s_add_u32 {s(sT0)}, {s(sT0)}, {s(sXW)}")
    A(f"s_lshl_b32 {s(sT0)}, {s(sT0)}, 16")
    A(f"s_lshl_b32 {s(sT1)}, {s(sRB64)}, 7")
    A(f"s_add_u32 {s(sT0)}, {s(sT0)}, {s(sT1)}")
    A(f"s_add_u32 {s(sT0)}, {s(sT0)}, {OFF_Y}")
    A(f"s_add_u32 {s(sT1)}, {s(sT0)}, {8*4096}")
    A(f"v_lshrrev_b32 {v(vT)}, 3, {v(vLANE)}")
    A(f"v_lshlrev_b32 {v(vT)}, 12, {v(vT)}")
    A(f"v_lshl_add_u32 {v(vT)}, {v(vC8)}, 4, {v(vT)}")
    if OPT["go2"]:
        lds_wait(vMine, F_GO, 3, vT2, sleep=1)
    A(f"buffer_load_dwordx4 {v(YV,4)}, {v(vT)}, {s(rWS,4)}, {s(sT0)} offen sc1")
    A(f"buffer_load_dwordx4 {v(YV+4,4)}, {v(vT)}, {s(rWS,4)}, {s(sT1)} offen sc1")
    A(f"s_mul_i32 {s(sT0)}, {s(sXW)}, {YS_SZ}")
    A(f"s_add_u32 {s(sT0)}, {s(sT0)}, {UB}")
    A(f"v_lshl_add_u32 {v(vT)}, {v(vLANE)}, 4, {s(sT0)}")
    A(f"v_lshrrev_b32 {v(vT2)}, 1, {v(vC8)}")
    A(f"v_mul_u32_u24 {v(vT2)}, {YS_SZ}, {v(vT2)}")
    A(f"v_and_b32 {v(vT3)}, 1, {v(vC8)}")
    A(f"v_mul_u32_u24 {v(vT3)}, 1040, {v(vT3)}")
    A(f"v_add_u32 {v(vT2)}, {v(vT2)}, {v(vT3)}")
    A(f"v_lshl_add_u32 {v(vT2)}, {v(vRow)}, 1, {v(vT2)}")
    for k in range(16):
        A(f"v_mov_b32 {v(YV+8+k)}, 0")
    A(f"v_and_b32 {v(vOther)}, 3, {v(vLANE)}")
    A(f"v_lshlrev_b32 {v(vOther)}, 2, {v(vOther)}")
    A("s_waitcnt vmcnt(0)")
    A(f"ds_write_b128 {v(vT)}, {v(YV,4)}")
    A(f"ds_write_b128 {v(vT)}, {v(YV+4,4)} offset:1040")
    lds_set(vMine, F_Y, 1, vT)
    lds_wait(vOther, F_Y, 1, vT, sleep=1, every=True)
    for i in range(2):
        for k in range(8):
            A(f"ds_read_u16_d16_hi {v(YV+8+8*i+k)}, {v(vT2)} offset:{UB+128*k+64*i}")
    A("s_waitcnt lgkmcnt(0)")
    for k in range(16):
        A(f"v_add_f32 {v(TV+k)}, {v(TV+k)}, {v(YV+8+k)}")
    stamp(10)
    A("s_barrier")
    PB = 64
    for i in range(2):
        for q in range(4):
            for h in range(2):
                A(f"ds_read_b128 {v(PB+32*i+8*q+4*h,4)}, {v(xFP+h)} offset:{32768*i+4096*q}")
    for i in range(2):
        P = PB + 32 * i
        A(f"s_waitcnt lgkmcnt({12-8*i})")
        for e in range(0, 8, 2):
            A(f"v_pk_add_f32 {v(P+e,2)}, {v(P+e,2)}, {v(P+8+e,2)}")
        A(f"s_waitcnt lgkmcnt({8-8*i})")
        for e in range(0, 8, 2):
            A(f"v_pk_add_f32 {v(P+16+e,2)}, {v(P+16+e,2)}, {v(P+24+e,2)}")
        for e in range(0, 8, 2):
            A(f"v_pk_add_f32 {v(P+e,2)}, {v(P+e,2)}, {v(P+16+e,2)}")
        for e in range(0, 8, 2):
            A(f"v_pk_fma_f32 {v(P+e,2)}, {v(P+e,2)}, {v(STV+2*i,2)}, {v(TV+8*i+e,2)} op_sel:[0,1,0] op_sel_hi:[1,1,1]")
        for e in range(4):
            A(f"v_cvt_pk_bf16_f32 {v(P+8+e)}, {v(P+2*e)}, {v(P+2*e+1)}")
        A(f"global_store_dwordx4 {v(xFO+i)}, {v(P+8,4)}, {s(pOUT,2)}{['',' sc1',' nt',' sc0 sc1'][OPT['outsc']]}")
    if OPT["diag"]:
        A("s_waitcnt vmcnt(0)")


def main():
    hdr = open("cdna_kernels/" + NAME + ".s.ref").read().split("\n")
    out = [l for l in hdr if l.startswith(";") and "@launch" not in l and "Override" not in l and "grid=ceil" not in l]
    out.append(f"; @launch grid=(256,1,1) block=(512,1,1) lds={LDS_BYTES}")
    out.append('.amdgcn_target "amdgcn-amd-amdhsa--gfx950"')
    out.append(".text")
    out.append(f".globl {NAME}_kernel")
    out.append(".p2align 8")
    out.append(f".type {NAME}_kernel,@function")
    out.append(f"{NAME}_kernel:")
    prologue()
    phase0()
    cwave()
    side()
    xwave()
    final()
    out += A.l
    out.append('.section .rodata,"a"')
    out.append(".p2align 6")
    out.append(f".amdhsa_kernel {NAME}_kernel")
    out.append("  .amdhsa_next_free_vgpr 256")
    out.append("  .amdhsa_next_free_sgpr 102")
    out.append("  .amdhsa_accum_offset 256")
    out.append("  .amdhsa_group_segment_fixed_size 0")
    out.append("  .amdhsa_kernarg_size 112")
    out.append("  .amdhsa_user_sgpr_count 2")
    out.append("  .amdhsa_user_sgpr_kernarg_segment_ptr 1")
    out.append("  .amdhsa_system_sgpr_workgroup_id_x 1")
    out.append(".end_amdhsa_kernel")
    open(sys.argv[1], "w").write("\n".join(out) + "\n")


main()
```

```python
import sys, struct

NAME = "parallel_sum__ssm_conv_s4d__glu_gated_reglu__prompt"
OPT = dict(diag=0, nodma=0, nos=0, rot1=4, rot2=4, sidepf=1, pfe=1, uw=13, w1h=-4, pfh=0, nmain=0, wdh=-1, npre=2, pollat=12, eprio=3, stat=12, go2=0, selfpf=0, sidehp=0, hpsl=2, h1b=11, snake=0, nmid=13, split=0, allrd=1, noy=0, xrot=0, fill2=0, xp=0, early3=0, fine=1, pf2=0, nm2=2, wat=11, h1one=1, tail2=1, hrot=0, pbar=1, pnt=1, wsplit=0, qat=12, r2at=5, ssl=2, sidelast=0, b15=0, cint=0, rep=0, mid=0, sld=0, kq=1, prio=0, hd=6, psl=8, goat=7, outsc=2, dwg=100, dwave=0, dst=5, amp=10, base=5000)
for a in sys.argv[2:]:
    k, val = a.split("=")
    OPT[k] = int(val)

OFF_U = 0x0
OFF_ST = 0x200000
OFF_FL = 0x220000
OFF_Y = 0xC00000
OFF_H = 0x400000
OFF_TS = 0x240000
WS_BYTES = 0x1000000

KA, KA_SZ = 0, 8320
UB, UB_SZ = 33280, 4576
TB, TB_SZ = 42432, 2568
R2 = 47568
FG = 47824
F_PAIR, F_WD, F_GO, F_Y = FG, FG + 16, FG + 32, FG + 48
SX = TB
YS_SZ = UB_SZ // 2
TT, T_PITCH = 0, 272
XR = 49152
WR = 98304
PR = 49152
PR_SZ = 20480
KR_PITCH = 4160
EX_OFF = 8320
LDS_BYTES = 163840
H1_BAR = OPT["h1b"]

LOG2E = 0x3fb8aa3b
NLOG2E = 0xbfb8aa3b
INV2PI = 0x3e22f983


def wd_order():
    order = []
    for g in range(7):
        for c in (g, (g + OPT["rot2"]) % 7):
            if c not in order:
                order.append(c)
    return order


def f2u(x):
    return struct.unpack("<I", struct.pack("<f", x))[0]


def v(n, c=1):
    return f"v{n}" if c == 1 else f"v[{n}:{n+c-1}]"


def s(n, c=1):
    return f"s{n}" if c == 1 else f"s[{n}:{n+c-1}]"


class Asm:
    def __init__(self):
        self.l = []
        self.vm = 0
        self.uid = 0
        self.xw = False

    def __call__(self, t):
        self.l.append("    " + t)

    def label(self, n):
        self.l.append(n + ":")

    def c(self, t):
        self.l.append("    ; " + t)

    def vmem(self, t):
        if OPT["nodma"] and t.endswith(" lds") and self.xw:
            t = "s_nop 0"
        self(t)
        self.vm += 1
        return self.vm

    def wait_vm(self, ident):
        n = self.vm - ident
        assert 0 <= n <= 63, n
        self(f"s_waitcnt vmcnt({n})")

    def new(self, p):
        self.uid += 1
        return f"L_{p}{self.uid}"


A = Asm()

sWG, sWAVE = 2, 3
pX, pLA, pAI, pCR, pCI, pLDT, pDS = 4, 6, 8, 10, 12, 14, 16
pWG, pWU, pWD, pOUT, pDBG, pWS = 20, 22, 24, 26, 28, 30
rX, rWG, rWU, rWD, rWS = 32, 36, 40, 44, 48
sXCD, sJ, sRB, sFB, sRB64, sCB, sCH0 = 52, 53, 54, 55, 56, 57, 58
sT0, sT1, sT2, sT3, sT4, sT5 = 59, 60, 61, 62, 63, 64
sW1, sW2, sW3, sCNT = 65, 66, 67, 68
sGRP = 87
sXR, sR0 = 18, 19
sDK = 72
sTS = 88
vLANE = 1


STAMP_ON = [True]


def stamp(i):
    if OPT["diag"] and (STAMP_ON[0] or i in (1, 5)):
        A(f"{'s_memtime' if OPT['diag']==2 else 's_memrealtime'} {s(sTS,2)}")
        A("s_waitcnt lgkmcnt(0)")
        A(f"s_mov_b32 {s(sTS+2+i)}, {s(sTS)}")


def stamp_flush(n):
    if not OPT["diag"]:
        return
    if OPT["diag"] == 4:
        sk, lp = A.new("dg"), A.new("dl")
        A(f"s_lshl_b32 {s(sT0)}, {s(sWG)}, 3")
        A(f"s_add_u32 {s(sT0)}, {s(sT0)}, {s(sWAVE)}")
        A(f"s_cmp_lg_u32 {s(sT0)}, {OPT['dwg']*8+OPT['dwave']}")
        A(f"s_cbranch_scc1 {sk}")
        A(f"s_sub_u32 {s(sT0)}, {s(sTS+2+OPT['dst'])}, {s(sTS+2)}")
        A(f"s_min_u32 {s(sT0)}, {s(sT0)}, 10000")
        A(f"s_mul_i32 {s(sT0)}, {s(sT0)}, {OPT['amp']}")
        A(f"s_add_u32 {s(sT0)}, {s(sT0)}, {OPT['base']}")
        A.label(lp)
        A(f"s_memrealtime {s(sTS,2)}")
        A("s_waitcnt lgkmcnt(0)")
        A(f"s_sub_u32 {s(sT1)}, {s(sTS)}, {s(sTS+2)}")
        A(f"s_cmp_lt_u32 {s(sT1)}, {s(sT0)}")
        A(f"s_cbranch_scc1 {lp}")
        A.label(sk)
        return
    if OPT["diag"] == 3:
        sk = A.new("dg")
        A(f"s_lshl_b32 {s(sT0)}, {s(sWG)}, 3")
        A(f"s_add_u32 {s(sT0)}, {s(sT0)}, {s(sWAVE)}")
        A(f"s_cmp_lg_u32 {s(sT0)}, {OPT['dwg']*8+OPT['dwave']}")
        A(f"s_cbranch_scc1 {sk}")
        A("v_mov_b32 v2, 0")
        for i in range(12):
            A(f"s_sub_u32 {s(sT0)}, {s(sTS+2+i)}, {s(sTS+2)}")
            A(f"v_mov_b32 v3, {s(sT0)}")
            A(f"global_store_dword v2, v3, {s(pDBG,2)} offset:{4*i}")
            A("s_nop 1")
        A.label(sk)
        return
    A(f"s_lshl_b32 {s(sT0)}, {s(sWG)}, 3")
    A(f"s_add_u32 {s(sT0)}, {s(sT0)}, {s(sWAVE)}")
    A(f"s_lshl_b32 {s(sT0)}, {s(sT0)}, 6")
    A(f"s_add_u32 {s(sT0)}, {s(sT0)}, {OFF_TS}")
    A(f"v_mov_b32 v2, {s(sT0)}")
    for i in range(12):
        A(f"v_mov_b32 v3, {s(sTS+2+i)}")
        A(f"global_store_dword v2, v3, {s(pWS,2)} offset:{4*i}")
        A("s_nop 1")


def srd(r, p, nbytes):
    A(f"s_mov_b32 {s(r)}, {s(p)}")
    A(f"s_and_b32 {s(r+1)}, {s(p+1)}, 0xffff")
    A(f"s_mov_b32 {s(r+2)}, {nbytes}")
    A(f"s_mov_b32 {s(r+3)}, 0x20000")


SPIN_MAX = 1 << 16


def poll_global(vaddr, vtmp, base, first_issued=False, sleep=1):
    lp, done, chk = A.new("pl"), A.new("pd"), A.new("pc")
    A(f"s_mov_b32 {s(sCNT)}, 0")
    if first_issued:
        A(f"s_branch {chk}")
    A.label(lp)
    A(f"global_load_dword {v(vtmp)}, {v(vaddr)}, {s(base,2)} sc1")
    A.label(chk)
    A("s_waitcnt vmcnt(0)")
    A(f"v_cmp_ne_u32 vcc, 0, {v(vtmp)}")
    A(f"s_add_u32 {s(sCNT)}, {s(sCNT)}, 1")
    A("s_cmp_eq_u64 vcc, exec")
    A(f"s_cbranch_scc1 {done}")
    A(f"s_sleep {sleep}")
    A(f"s_cmp_lt_u32 {s(sCNT)}, {SPIN_MAX}")
    A(f"s_cbranch_scc1 {lp}")
    A.label(done)


def q_read(sval, soff):
    if OPT["sld"]:
        A(f"s_load_dword {s(sval)}, {s(pWS,2)}, {s(soff)} glc")
    else:
        A(f"s_mov_b32 {s(sval)}, 0")
        A(f"s_atomic_add {s(sval)}, {s(pWS,2)}, {s(soff)} glc")


def poll_scalar(soff, want, sval, sleep, first_issued=False):
    lp, done, chk = A.new("ql"), A.new("qd"), A.new("qc")
    A(f"s_mov_b32 {s(sCNT)}, 0")
    if first_issued:
        A(f"s_branch {chk}")
    A.label(lp)
    q_read(sval, soff)
    A.label(chk)
    A("s_waitcnt lgkmcnt(0)")
    A(f"s_cmp_ge_u32 {s(sval)}, {want}")
    A(f"s_cbranch_scc1 {done}")
    A(f"s_add_u32 {s(sCNT)}, {s(sCNT)}, 1")
    A(f"s_sleep {sleep}")
    A(f"s_cmp_lt_u32 {s(sCNT)}, {SPIN_MAX}")
    A(f"s_cbranch_scc1 {lp}")
    A.label(done)


def lds_wait(vaddr, off, val, vt, sleep=0, every=False):
    lp, done = A.new("sl"), A.new("sd")
    A(f"s_mov_b32 {s(sCNT)}, 0")
    A.label(lp)
    A(f"ds_read_b32 {v(vt)}, {v(vaddr)} offset:{off}")
    A(f"s_add_u32 {s(sCNT)}, {s(sCNT)}, 1")
    A("s_waitcnt lgkmcnt(0)")
    if every:
        A(f"v_cmp_gt_u32 vcc, {val}, {v(vt)}")
        A(f"s_cbranch_vccz {done}")
    else:
        A(f"v_cmp_le_u32 vcc, {val}, {v(vt)}")
        A(f"s_cbranch_vccnz {done}")
    if sleep:
        A(f"s_sleep {sleep}")
    A(f"s_cmp_lt_u32 {s(sCNT)}, {SPIN_MAX*16}")
    A(f"s_cbranch_scc1 {lp}")
    A.label(done)


def lds_set(vaddr, off, val, vt):
    A(f"v_mov_b32 {v(vt)}, {val}")
    A(f"ds_write_b32 {v(vaddr)}, {v(vt)} offset:{off}")


def prologue():
    A(f"s_cmp_ge_u32 {s(sWG)}, 256")
    A("s_cbranch_scc1 L_end")
    A(f"s_load_dwordx16 {s(4,16)}, s[0:1], 0")
    A(f"s_load_dwordx8 {s(20,8)}, s[0:1], 64")
    A(f"s_load_dwordx4 {s(28,4)}, s[0:1], 96")
    if OPT["diag"]:
        A(f"{'s_memtime' if OPT['diag']==2 else 's_memrealtime'} {s(sTS,2)}")
    A("v_lshrrev_b32 v2, 6, v0")
    A(f"v_and_b32 {v(vLANE)}, 63, v0")
    A(f"v_readfirstlane_b32 {s(sWAVE)}, v2")
    A(f"s_and_b32 {s(sXCD)}, {s(sWG)}, 7")
    A(f"s_lshr_b32 {s(sJ)}, {s(sWG)}, 3")
    A(f"s_getpc_b64 {s(sT1,2)}")
    A.label("L_pc")
    A("v_and_b32 v2, 0x1e0, v0")
    A(f"v_add_u32 v2, {s(sJ)}, v2")
    A("v_lshlrev_b32 v2, 7, v2")
    A("v_min_u32 v2, L_end-L_pc, v2")
    A(f"global_load_dword v95, v2, {s(sT1,2)}")
    A(f"s_and_b32 {s(sT0)}, {s(sXCD)}, 3")
    A(f"s_lshr_b32 {s(sT1)}, {s(sXCD)}, 2")
    A(f"s_cmp_lt_u32 {s(sJ)}, 4")
    A("s_cbranch_scc1 L_side")
    A(f"s_sub_u32 {s(sJ)}, {s(sJ)}, 4")
    A(f"s_and_b32 {s(sT2)}, {s(sJ)}, 3")
    A(f"s_lshr_b32 {s(sCB)}, {s(sJ)}, 2")
    A(f"s_lshl_b32 {s(sRB)}, {s(sT0)}, 2")
    A(f"s_add_u32 {s(sRB)}, {s(sRB)}, {s(sT2)}")
    A(f"s_mul_i32 {s(sFB)}, {s(sT1)}, 7")
    A(f"s_add_u32 {s(sFB)}, {s(sFB)}, {s(sCB)}")
    A(f"s_lshl_b32 {s(sRB64)}, {s(sT0)}, 1")
    A(f"s_add_u32 {s(sRB64)}, {s(sRB64)}, {s(sT1)}")
    A(f"s_lshl_b32 {s(sRB64)}, {s(sRB64)}, 2")
    A(f"s_add_u32 {s(sRB64)}, {s(sRB64)}, {s(sT2)}")
    A(f"s_add_u32 {s(sGRP)}, {s(sT2)}, {s(sCB)}")
    A(f"s_and_b32 {s(sGRP)}, {s(sGRP)}, 1")


def kernarg_ready():
    A("s_waitcnt lgkmcnt(0)")
    if OPT["diag"]:
        for i in range(12):
            A(f"s_mov_b32 {s(sTS+2+i)}, {s(sTS)}")
        stamp(11)


def side():
    A.label("L_side")
    A.vm = 0
    XB, F, SA = 8, 40, 100
    vR, vQ, vOFF, vT, vT2, vRI = 2, 3, 4, 5, 6, 36
    vM = 38
    sRG, sR64 = sRB, sRB64
    A(f"s_lshl_b32 {s(sR64)}, {s(sT0)}, 1")
    A(f"s_add_u32 {s(sR64)}, {s(sR64)}, {s(sT1)}")
    A(f"s_lshl_b32 {s(sR64)}, {s(sR64)}, 2")
    A(f"s_add_u32 {s(sR64)}, {s(sR64)}, {s(sJ)}")
    A(f"s_lshl_b32 {s(sRG)}, {s(sR64)}, 3")
    A(f"s_add_u32 {s(sRG)}, {s(sRG)}, {s(sWAVE)}")
    A(f"v_lshrrev_b32 {v(vR)}, 3, {v(vLANE)}")
    A(f"v_and_b32 {v(vQ)}, 7, {v(vLANE)}")
    A(f"v_mul_u32_u24 {v(vOFF)}, 896, {v(vR)}")
    A(f"v_lshl_add_u32 {v(vOFF)}, {v(vQ)}, 4, {v(vOFF)}")
    A(f"s_mul_i32 {s(sT2)}, {s(sRG)}, {8*896}")
    A(f"v_add_u32 {v(vOFF)}, {s(sT2)}, {v(vOFF)}")
    kernarg_ready()
    xl = []
    for i in range(7):
        xl.append(A.vmem(f"global_load_dwordx4 {v(XB+4*i,4)}, {v(vOFF)}, {s(pX,2)} offset:{128*i}"))
    srd(rWS, pWS, WS_BYTES)
    vPF = 110
    A(f"s_mul_i32 {s(sT3)}, {s(sJ)}, {224*896}")
    A(f"s_mul_i32 {s(sT4)}, {s(sT1)}, {896*896}")
    A(f"v_min_u32 {v(vPF+1)}, 447, v0")
    A(f"v_lshl_add_u32 {v(vPF+2)}, {v(vPF+1)}, 7, {s(sT3)}")
    A(f"v_add_u32 {v(vPF)}, {s(sT4)}, {v(vPF+2)}")
    A(f"s_sub_u32 {s(sT4)}, {896*896-1568*128}, {s(sT4)}")
    A(f"v_cmp_gt_u32 vcc, {1568-3*448}, {v(vPF+1)}")
    A(f"v_add_u32 {v(vPF+1)}, {s(sT4)}, {v(vPF+2)}")
    A("s_nop 0")
    A(f"v_cndmask_b32 {v(vPF+2)}, {v(vPF+1)}, {v(vPF)}, vcc")

    if OPT["kq"]:
        A(f"s_mul_i32 {s(sT3)}, {s(sJ)}, {448*896}")
        A(f"v_min_u32 {v(vPF)}, 447, v0")
        A(f"v_lshl_add_u32 {v(vPF)}, {v(vPF)}, 7, {s(sT3)}")

    def pf(ns):
        for n in ns:
            if OPT["hrot"]:
                n = [0, 4, 3, 1, 5, 2, 6][n]
            A(f"v_add_u32 {v(vPF+3)}, {n*448*128}, {v(vPF + (0 if (n < 3 or OPT['kq']) else 2 if n == 3 else 1))}")
            A.vmem(f"global_load_dword {v(vPF+4+n)}, {v(vPF+3)}, {s(pWD,2)}")
    C = SA
    A(f"s_mov_b32 {s(sT3)}, 0x3f803f80")
    A(f"v_mov_b32 {v(C)}, 0")
    A(f"v_mov_b32 {v(C+1)}, 0")
    for i in range(7):
        A.wait_vm(xl[i])
        if i == 6:
            stamp(1)
            if OPT["sidepf"]:
                pf(range(OPT["pfe"]))
        for d in range(4):
            k = 4 * i + d
            A(f"v_dot2c_f32_bf16 {v(C+k%2)}, {s(sT3)}, {v(XB+k)}")
            A(f"v_lshlrev_b32 {v(F+2*k)}, 16, {v(XB+k)}")
            A(f"v_and_b32 {v(F+2*k+1)}, 0xffff0000, {v(XB+k)}")

    def reduce8():
        for m in ("quad_perm:[1,0,3,2]", "quad_perm:[2,3,0,1]", "row_half_mirror"):
            A("s_nop 1")
            A(f"v_add_f32_dpp {v(C)}, {v(C)}, {v(C)} {m} row_mask:0xf bank_mask:0xf")
    A("s_nop 2")
    A(f"v_add_f32 {v(C)}, {v(C)}, {v(C+1)}")
    reduce8()
    A(f"v_mul_f32 {v(vM)}, {f2u(-1.0/448):#x}, {v(C)}")
    A(f"v_mov_b32 {v(vM+1)}, {v(vM)}")
    for k in range(28):
        A(f"v_pk_add_f32 {v(F+2*k,2)}, {v(F+2*k,2)}, {v(vM,2)}")
    for k in range(28):
        a = C + 2 * (k % 2)
        if k < 2:
            A(f"v_pk_mul_f32 {v(a,2)}, {v(F+2*k,2)}, {v(F+2*k,2)}")
        else:
            A(f"v_pk_fma_f32 {v(a,2)}, {v(F+2*k,2)}, {v(F+2*k,2)}, {v(a,2)}")
    A(f"v_pk_add_f32 {v(C,2)}, {v(C,2)}, {v(C+2,2)}")
    A("s_nop 0")
    A(f"v_add_f32 {v(C)}, {v(C)}, {v(C+1)}")
    reduce8()
    A(f"v_mul_f32 {v(C)}, {f2u(1.0/448):#x}, {v(C)}")
    A(f"v_cvt_pk_bf16_f32 {v(vRI)}, {v(vM)}, {v(vM)}")
    A(f"v_cvt_pk_bf16_f32 {v(C)}, {v(C)}, {v(C)}")
    A(f"v_lshlrev_b32 {v(C)}, 16, {v(C)}")
    A(f"v_add_f32 {v(C)}, {f2u(1e-5):#x}, {v(C)}")
    A(f"v_cvt_pk_bf16_f32 {v(C)}, {v(C)}, {v(C)}")
    A(f"v_lshlrev_b32 {v(C)}, 16, {v(C)}")
    A(f"v_sqrt_f32 {v(C)}, {v(C)}")
    A(f"v_lshlrev_b32 {v(C+2)}, 16, {v(vRI)}")
    A(f"v_cvt_pk_bf16_f32 {v(C)}, {v(C)}, {v(C)}")
    A(f"v_lshlrev_b32 {v(C)}, 16, {v(C)}")
    A(f"v_rcp_f32 {v(vRI+1)}, {v(C)}")
    A(f"v_sub_f32 {v(C+2)}, {v(C+2)}, {v(vM)}")
    A(f"v_mul_f32 {v(C+2)}, {v(C+2)}, {v(vRI+1)}")
    A(f"v_mov_b32 {v(C+3)}, {v(C+2)}")
    A(f"v_mov_b32 {v(C)}, {v(vRI+1)}")
    A(f"v_mov_b32 {v(C+1)}, {v(vRI+1)}")
    A(f"v_lshlrev_b32 {v(vT2)}, 3, {v(vR)}")
    A(f"s_lshl_b32 {s(sT3)}, {s(sRG)}, 6")
    A(f"s_add_u32 {s(sT3)}, {s(sT3)}, {OFF_ST}")
    A(f"s_mov_b32 exec_lo, 0x01010101")
    A(f"s_mov_b32 exec_hi, 0x01010101")
    A.vmem(f"buffer_store_dwordx2 {v(vRI,2)}, {v(vT2)}, {s(rWS,4)}, {s(sT3)} offen sc1")
    A("s_mov_b64 exec, -1")
    A(f"v_mov_b32 {v(vT)}, 0")
    A(f"v_lshlrev_b32 {v(vT2)}, 2, v0")
    A(f"s_lshl_b32 {s(sT3)}, {s(sWG)}, 11")
    A(f"s_add_u32 {s(sT3)}, {s(sT3)}, {OFF_FL}")
    A.vmem(f"buffer_store_dword {v(vT)}, {v(vT2)}, {s(rWS,4)}, {s(sT3)} offen sc1")
    A(f"s_mul_i32 {s(sT3)}, {s(sWAVE)}, 7680")
    A(f"v_mul_u32_u24 {v(vT2)}, 960, {v(vR)}")
    A(f"v_lshl_add_u32 {v(vT2)}, {v(vQ)}, 4, {v(vT2)}")
    A(f"v_add_u32 {v(vT2)}, {s(sT3)}, {v(vT2)}")
    for k in range(28):
        A(f"v_pk_fma_f32 {v(F+2*k,2)}, {v(F+2*k,2)}, {v(C,2)}, {v(C+2,2)}")
    for i in range(7):
        for d in range(4):
            k = 4 * i + d
            A(f"v_cvt_pk_bf16_f32 {v(XB+k)}, {v(F+2*k)}, {v(F+2*k+1)}")
        A(f"ds_write_b128 {v(vT2)}, {v(XB+4*i,4)} offset:{128*i}")
    A(f"v_bfe_u32 {v(vT2)}, {v(vLANE)}, 2, 2")
    A(f"v_mul_u32_u24 {v(vT2)}, 960, {v(vT2)}")
    A(f"v_lshrrev_b32 {v(vOFF)}, 4, {v(vLANE)}")
    A(f"v_lshl_add_u32 {v(vT2)}, {v(vOFF)}, 5, {v(vT2)}")
    A(f"v_and_b32 {v(vOFF)}, 3, {v(vLANE)}")
    A(f"v_lshl_add_u32 {v(vT2)}, {v(vOFF)}, 3, {v(vT2)}")
    A(f"v_add_u32 {v(vT2)}, {s(sT3)}, {v(vT2)}")
    for i in range(7):
        A(f"ds_read_b64_tr_b16 {v(F+4*i,2)}, {v(vT2)} offset:{128*i}")
        A(f"ds_read_b64_tr_b16 {v(F+4*i+2,2)}, {v(vT2)} offset:{128*i+3840}")
    L2B = 65536
    A(f"s_lshl_b32 {s(sT3)}, {s(sWAVE)}, 4")
    A(f"s_add_u32 {s(sT3)}, {s(sT3)}, {L2B}")
    A(f"v_mul_u32_u24 {v(vT2)}, 144, {v(vLANE)}")
    A(f"v_add_u32 {v(vT2)}, {s(sT3)}, {v(vT2)}")
    for i in range(7):
        A(f"s_waitcnt lgkmcnt({min(15, 12-2*i+i)})")
        A(f"ds_write_b128 {v(vT2)}, {v(F+4*i,4)} offset:{64*144*i}")
    A(f"s_mul_i32 {s(sT3)}, {s(sWAVE)}, {56*144}")
    A(f"s_add_u32 {s(sT3)}, {s(sT3)}, {L2B}")
    A(f"v_mul_u32_u24 {v(vT2)}, 144, {v(vR)}")
    A(f"v_lshl_add_u32 {v(vT2)}, {v(vQ)}, 4, {v(vT2)}")
    A(f"v_add_u32 {v(vT2)}, {s(sT3)}, {v(vT2)}")
    A(f"v_lshlrev_b32 {v(vOFF)}, 12, {v(vR)}")
    A(f"v_lshl_add_u32 {v(vOFF)}, {v(vQ)}, 4, {v(vOFF)}")
    A(f"s_mul_i32 {s(sT3)}, {s(sWAVE)}, {56*4096}")
    A(f"s_lshl_b32 {s(sT4)}, {s(sR64)}, 7")
    A(f"s_add_u32 {s(sT3)}, {s(sT3)}, {s(sT4)}")
    A("s_waitcnt lgkmcnt(0)")
    A("s_barrier")
    for i in range(7):
        A(f"ds_read_b128 {v(XB+4*i,4)}, {v(vT2)} offset:{8*144*i}")
    for i in range(7):
        A(f"s_waitcnt lgkmcnt({6-i})")
        us = A.vmem(f"buffer_store_dwordx4 {v(XB+4*i,4)}, {v(vOFF)}, {s(rWS,4)}, {s(sT3)} offen sc1")
        if i < 6:
            A(f"s_add_u32 {s(sT3)}, {s(sT3)}, {8*4096}")
    stamp(2)
    n2 = OPT["pfe"] + OPT["pf2"]
    pf(range(OPT["pfe"], n2))
    A.wait_vm(us)
    A("s_barrier")
    stamp(3)
    skip = A.new("nf")
    A(f"s_cmp_lg_u32 {s(sWAVE)}, 0")
    A(f"s_cbranch_scc1 {skip}")
    A(f"s_lshl_b32 {s(sT3)}, {s(sWG)}, 2")
    if OPT["pf2"]:
        A(f"s_add_u32 {s(sT3)}, {s(sT3)}, 128")
        A(f"s_mov_b32 {s(sT4)}, 1")
        A(f"s_atomic_add {s(sT4)}, {s(pDBG,2)}, {s(sT3)}")
    else:
        A(f"v_mov_b32 {v(vT2)}, {s(sT3)}")
        A(f"v_mov_b32 {v(vT)}, 1")
        A("s_mov_b64 exec, 1")
        A(f"global_store_dword {v(vT2)}, {v(vT)}, {s(pDBG,2)} offset:128 sc1")
        A("s_mov_b64 exec, -1")
    A.label(skip)
    if OPT["sidepf"]:
        pf(range(n2, 7 - OPT['nm2']))
        A("s_waitcnt vmcnt(0)")
        stamp(4)
    stamp_flush(4)
    A("s_endpgm")


def final():
    A.label("L_fin")
    stamp(5)
    stamp_flush(6)
    A.label("L_end")
    A("s_endpgm")


def kgen_slot(R, hook):
    e = A
    la, ai, cr, ci, dt, dt2 = [R["P"] + k for k in range(6)]
    t = R["tmp"]
    z = t
    E = {1: t + 2, 8: t + 4, 256: t + 6}
    q = [t + 8, t + 10]
    Ak = [t + 12 + 2 * k for k in range(8)]
    PK = R["PK"]
    AF, BF, DK, wa, ra = R["AF"], R["BF"], R["DK"], R["wa"], R["ra"]
    q0 = q[0]
    e(f"v_mul_f32 {v(q0)}, {LOG2E:#x}, {v(la)}")
    e(f"v_exp_f32 {v(q0)}, {v(q0)}")
    e(f"v_mul_f32 {v(z+1)}, {v(ai)}, {v(dt)}")
    e(f"v_cvt_pk_bf16_f32 {v(q0)}, {v(q0)}, {v(q0)}")
    e(f"v_mul_f32 {v(z+1)}, {INV2PI:#x}, {v(z+1)}")
    e(f"v_lshlrev_b32 {v(q0)}, 16, {v(q0)}")
    e(f"v_mul_f32 {v(q0)}, {v(q0)}, {v(dt)}")
    e(f"v_mul_f32 {v(z)}, {NLOG2E:#x}, {v(q0)}")
    tmp = {1: Ak[1], 8: Ak[2], 256: Ak[3]}
    for p in (1, 8, 256):
        a = z if p == 1 else tmp[p]
        if p > 1:
            e(f"v_mul_f32 {v(a)}, {f2u(float(p)):#x}, {v(z)}")
            e(f"v_mul_f32 {v(a+1)}, {f2u(float(p)):#x}, {v(z+1)}")
        e(f"v_fract_f32 {v(tmp[p]+1)}, {v(a+1)}")
        e(f"v_exp_f32 {v(tmp[p])}, {v(a)}")
        e(f"v_cos_f32 {v(E[p])}, {v(tmp[p]+1)}")
        e(f"v_sin_f32 {v(E[p]+1)}, {v(tmp[p]+1)}")
    e(f"v_pk_mul_f32 {v(Ak[0],2)}, {v(cr,2)}, {v(dt,2)} op_sel:[0,1] op_sel_hi:[1,1]")
    for p in (1, 8, 256):
        e(f"v_pk_mul_f32 {v(E[p],2)}, {v(E[p],2)}, {v(tmp[p],2)} op_sel_hi:[1,0]" + (" neg_hi:[1,0]" if p == 8 else ""))
    st = [0]
    if OPT.get("p0"):
        stamp(2)

    def pack(dw, a, b):
        e(f"v_cvt_pk_bf16_f32 {v(PK+8*st[0]+dw)}, {v(a)}, {v(b)}")
        e(f"v_cvt_pk_bf16_f32 {v(PK+8*st[0]+4+dw)}, {v(a+1)}, {v(b+1)}")

    def flush(slot):
        e(f"ds_write_b128 {v(wa+slot)}, {v(PK+8*st[0],4)}")
        e(f"ds_write_b128 {v(wa+slot)}, {v(PK+8*st[0]+4,4)} offset:4096")
        st[0] ^= 1

    def cmul(*ops):
        for n, (d, a, b) in enumerate(ops):
            e(f"v_pk_mul_f32 {v(q[n],2)}, {v(a,2)}, {v(b,2)} op_sel:[1,1] op_sel_hi:[1,0]")
        for n, (d, a, b) in enumerate(ops):
            e(f"v_pk_fma_f32 {v(d,2)}, {v(a,2)}, {v(b,2)}, {v(q[n],2)} op_sel:[0,0,0] op_sel_hi:[0,1,1] neg_lo:[0,0,1]")

    def frags(dst):
        for i in range(8):
            for h in range(2):
                e(f"ds_read_b64_tr_b16 {v(dst+4*i+2*h,2)}, {v(ra+h)} offset:{1024*i}")
    E2 = z
    cmul((Ak[1], Ak[0], E[1]), (E2, E[1], E[1]))
    pack(0, Ak[0], Ak[1])
    for k in (2, 4, 6):
        cmul((Ak[k], Ak[k - 2], E2), (Ak[k + 1], Ak[k - 1], E2))
        pack(k // 2, Ak[k], Ak[k + 1])
    flush(0)
    G = E[256]
    cmul((Ak[0], Ak[0], G), (Ak[2], Ak[2], G)); pack(0, Ak[0], Ak[2])
    cmul((Ak[4], Ak[4], G), (Ak[6], Ak[6], G)); pack(2, Ak[4], Ak[6])
    cmul((Ak[1], Ak[0], G), (Ak[4], Ak[4], G)); pack(1, Ak[1], Ak[4])
    cmul((Ak[0], Ak[1], G), (Ak[4], Ak[4], G)); pack(3, Ak[0], Ak[4])
    flush(1)
    G2, E16 = Ak[2], E[1]
    cmul((G2, G, G), (E16, E[8], E[8]))
    cmul((Ak[1], Ak[1], G2), (Ak[0], Ak[0], G2)); pack(0, Ak[1], Ak[0])
    cmul((Ak[1], Ak[1], G2), (Ak[0], Ak[0], G2)); pack(2, Ak[1], Ak[0])
    X, Y = Ak[3], Ak[5]
    cmul((Ak[1], Ak[1], G2), (Y, E[8], E16)); pack(1, Ak[1], Ak[1])
    flush(2)
    if OPT.get("p0"):
        stamp(3)
    frags(AF)
    hook(0)
    if OPT.get("p0"):
        stamp(4)
    e(f"v_cvt_pk_bf16_f32 {v(PK+8*st[0])}, 1.0, {v(E[8])}")
    e(f"v_cvt_pk_bf16_f32 {v(PK+8*st[0]+4)}, 0, {v(E[8]+1)}")
    pack(1, E16, Y)
    px = E16
    for i in range(2, 16):
        cmul((X, px, E16), (Y, Y, E16))
        px = X
        pack(i % 4, X, Y)
        if i % 4 == 3:
            flush(i // 4)
    if OPT.get("p0"):
        stamp(9)
    frags(BF)
    hook(1)
    if OPT.get("p0"):
        stamp(10)
    for i in range(8):
        e(f"s_waitcnt lgkmcnt({14-2*i})")
        e(f"v_mfma_f32_32x32x16_bf16 {v(DK,16)}, {v(AF+4*i,4)}, {v(BF+4*i,4)}, {v(DK,16) if i else 0}")


WD_SLOT = [XR + 16384, WR + 2 * 16384, WR + 3 * 16384, XR + 2 * 16384, WR, WR + 16384, XR]
vWO, vXO, vDO = 200, 201, 202
sWO, sXO, sWoff, sWoff1, sXoff, sDoff, sDbase, sW4K = 69, 70, 71, 72, 73, 74, 75, 76
sCH, sCI, sKB = 82, 83, 84
KR_ = dict(P=128, tmp=134, PK=48, wa=162, ra=166, AF=16, BF=168, DK=104)
wid, xid, did = {}, {}, {}


def dma_w(c):
    for i in range(2):
        for mat in range(2):
            A(f"s_add_u32 m0, {s(sWO)}, {WR+(c%4)*16384+mat*8192+i*1024}")
            last = (i == 1 and mat == 1)
            if i == 1 and mat == 0:
                A(f"s_add_u32 {s(sWoff)}, {s(sWoff)}, {32*3584}")
            elif last:
                A(f"s_cmp_eq_u32 {s(sWoff)}, {448*3584}")
            else:
                A("s_nop 0")
            wid[c] = A.vmem(f"buffer_load_dwordx4 {v(vWO)}, {s(rWU if mat else rWG,4)}, {s(sWoff1 if i else sWoff)} offen lds")
            if last:
                A(f"s_cselect_b32 {s(sWoff)}, 0, {s(sWoff)}")
                A(f"s_add_u32 {s(sWoff1)}, {s(sWoff)}, {4*3584}")


def dma_x(xc, iis):
    for ii in iis:
        A(f"s_add_u32 m0, {s(sXO)}, {XR+(xc%3)*16384+ii*4096}")
        A(f"s_add_u32 {s(sT0)}, {s(sXoff)}, {ii*32*896}")
        xid[xc] = A.vmem(f"buffer_load_dwordx4 {v(vXO)}, {s(rX,4)}, {s(sT0)} offen lds")
        if ii == 3:
            A(f"s_add_u32 {s(sXoff)}, {s(sXoff)}, 128")
            A(f"s_cmp_eq_u32 {s(sXoff)}, 896")
            A(f"s_cselect_b32 {s(sXoff)}, 0, {s(sXoff)}")


def dma_d(pp, vd):
    for i in range(4):
        A(f"s_add_u32 m0, {s(sW4K)}, {WD_SLOT[pp%7]+i*1024}")
        A(f"s_add_u32 {s(sDoff)}, {s(sDoff)}, {8*896}")
        did[pp] = A.vmem(f"buffer_load_dwordx4 {v(vd)}, {s(rWD,4)}, {s(sDoff)} offen lds")


def wd_setup(vd, vt, vt2, first_piece):
    A(f"v_lshrrev_b32 {v(vt)}, 3, {v(vLANE)}")
    A(f"v_mul_u32_u24 {v(vd)}, 896, {v(vt)}")
    A(f"v_lshrrev_b32 {v(vt)}, 2, {v(vLANE)}")
    A(f"v_lshrrev_b32 {v(vt2)}, 4, {v(vLANE)}")
    A(f"v_xor_b32 {v(vt)}, {v(vt)}, {v(vt2)}")
    A(f"v_and_b32 {v(vt)}, 1, {v(vt)}")
    A(f"v_lshl_add_u32 {v(vd)}, {v(vt)}, 6, {v(vd)}")
    A(f"v_and_b32 {v(vt)}, 3, {v(vLANE)}")
    A(f"v_lshl_add_u32 {v(vd)}, {v(vt)}, 4, {v(vd)}")
    A(f"s_and_b32 {s(sW4K)}, {s(sWAVE)}, 3")
    A(f"s_lshl_b32 {s(sT1)}, {s(sCB)}, 7")
    if OPT["kq"]:
        A(f"s_mul_i32 {s(sDoff)}, {s(sW4K)}, {448*896}")
        A(f"s_add_u32 {s(sDoff)}, {s(sDoff)}, {s(sT1)}")
        if OPT["hrot"]:
            A(f"s_xor_b32 {s(sT1)}, {s(sGRP)}, {1 if first_piece else 0}")
            A(f"s_mul_i32 {s(sT1)}, {s(sT1)}, {224*896}")
            A(f"s_add_u32 {s(sDoff)}, {s(sDoff)}, {s(sT1)}")
        elif first_piece:
            A(f"s_add_u32 {s(sDoff)}, {s(sDoff)}, {first_piece*32*896}")
    else:
        A(f"s_mul_i32 {s(sDoff)}, {s(sW4K)}, {224*896}")
        A(f"s_add_u32 {s(sDoff)}, {s(sDoff)}, {s(sT1)}")
        A(f"s_lshr_b32 {s(sT1)}, {s(sXCD)}, 2")
        if first_piece:
            A(f"s_xor_b32 {s(sT1)}, {s(sT1)}, 1")
        A(f"s_mul_i32 {s(sT1)}, {s(sT1)}, {896*896}")
        A(f"s_add_u32 {s(sDoff)}, {s(sDoff)}, {s(sT1)}")
    A(f"s_sub_u32 {s(sDoff)}, {s(sDoff)}, {8*896}")
    A(f"s_lshl_b32 {s(sW4K)}, {s(sW4K)}, 12")
    srd(rWD, pWD, 448 * 1792 * 2)


cXA, cWA, cL16, cT, cT2, cFL, cD, cZ, cDB = 2, 6, 8, 9, 10, 11, 12, 13, 14
cSM, cSEL, cSAC = 64, 88, 96
sRH, sFH = sW1, sW2
xRow, xC8, xT, xT2, xT3, xMine, xOther, xB, xKA, xUA, xG4 = 2, 3, 4, 5, 6, 7, 8, 9, 10, 14, 15
xGA, xPA, xTA = 64, 82, 84
xPF, sPB = 86, 80
xFP, xFO = 252, 254
sXW, sPH, sUBc, sTBc, sKR = sW1, sW2, sW3, 77, 78


def by_ph(f0, f1):
    hi, join = A.new("ph"), A.new("pj")
    A(f"s_cmp_eq_u32 {s(sPH)}, 1")
    A(f"s_cbranch_scc1 {hi}")
    f0()
    A(f"s_branch {join}")
    A.label(hi)
    f1()
    A.label(join)


def c_setup():
    vT, vT2, vFL, vL16 = cT, cT2, cFL, cL16
    A(f"s_and_b32 {s(sRH)}, {s(sWAVE)}, 1")
    A(f"s_lshr_b32 {s(sFH)}, {s(sWAVE)}, 1")
    A(f"v_and_b32 {v(vT)}, 31, {v(vLANE)}")
    A(f"s_lshl_b32 {s(sT0)}, {s(sRH)}, 13")
    A(f"s_add_u32 {s(sT0)}, {s(sT0)}, {XR}")
    A(f"v_lshl_add_u32 {v(vT)}, {v(vT)}, 7, {s(sT0)}")
    A(f"v_bfe_u32 {v(vT2)}, {v(vLANE)}, 1, 3")
    A(f"v_lshrrev_b32 {v(vFL)}, 5, {v(vLANE)}")
    A(f"v_xor_b32 {v(vT2)}, {v(vT2)}, {v(vFL)}")
    for k in range(4):
        A(f"v_xor_b32 {v(cXA+k)}, {2*k}, {v(vT2)}")
        A(f"v_lshl_add_u32 {v(cXA+k)}, {v(cXA+k)}, 4, {v(vT)}")
    wd_setup(cD, vT, vT2, 7)
    A(f"v_bfe_u32 {v(vL16)}, {v(vLANE)}, 4, 1")
    A(f"v_lshlrev_b32 {v(vL16)}, 5, {v(vL16)}")
    A(f"v_and_b32 {v(vT)}, 3, {v(vLANE)}")
    A(f"v_lshl_add_u32 {v(vL16)}, {v(vT)}, 3, {v(vL16)}")
    A(f"v_bfe_u32 {v(vT2)}, {v(vLANE)}, 2, 2")
    A(f"v_lshl_add_u32 {v(cDB)}, {v(vFL)}, 2, {v(vT2)}")
    A(f"v_lshl_add_u32 {v(cDB)}, {v(cDB)}, 7, {s(sW4K)}")
    A(f"v_add_u32 {v(cDB)}, {v(cDB)}, {v(vL16)}")
    A(f"v_bfe_u32 {v(vT)}, {v(vLANE)}, 3, 1")
    A(f"v_lshl_add_u32 {v(cDB)}, {v(vT)}, 6, {v(cDB)}")
    A(f"v_lshl_add_u32 {v(vT)}, {v(vFL)}, 3, {v(vT2)}")
    A(f"v_lshl_add_u32 {v(vT)}, {v(vT)}, 8, {v(vL16)}")
    A(f"v_add_u32 {v(vT)}, {WR}, {v(vT)}")
    A(f"v_xor_b32 {v(vT2)}, {s(sWAVE)}, {v(vT2)}")
    A(f"v_lshl_add_u32 {v(cWA)}, {v(vT2)}, 6, {v(vT)}")
    A(f"v_xor_b32 {v(cWA+1)}, 64, {v(cWA)}")
    A(f"v_lshlrev_b32 {v(vL16)}, 4, {v(vLANE)}")
    A(f"s_lshl_b32 {s(sT0)}, {s(sWAVE)}, 2")
    A(f"v_mov_b32 {v(cZ)}, {s(sT0)}")
    for i in range(28):
        A(f"v_mov_b32 {v(cSM+i)}, 0")
    A("s_mov_b32 exec_lo, 0x00100001")
    A("s_mov_b32 exec_hi, 0x00100001")
    for i in range(4):
        A(f"v_mov_b32 {v(cSEL+i)}, 0x3f803f80")
    A("s_mov_b64 exec, -1")
    A(f"s_lshl_b32 {s(sT2)}, {s(sRH)}, 13")
    A(f"s_cmp_eq_u32 {s(sCI)}, 0")
    A(f"s_mov_b32 {s(sKB)}, {XR+2*16384}")
    A(f"s_cselect_b32 {s(sKB)}, {WR+3*16384}, {s(sKB)}")
    A(f"s_add_u32 {s(sKB)}, {s(sKB)}, {s(sT2)}")


def x_setup():
    vT, vT2, vT3 = xT, xT2, xT3
    A(f"s_sub_u32 {s(sXW)}, {s(sWAVE)}, 4")
    A(f"s_and_b32 {s(sPH)}, {s(sXW)}, 1")
    A(f"s_mul_i32 {s(sKB)}, {s(sXW)}, {KA_SZ}")
    A(f"s_mul_i32 {s(sKR)}, {s(sCI)}, {2*KA_SZ}")
    A(f"s_mul_i32 {s(sUBc)}, {s(sCI)}, {UB_SZ}")
    A(f"s_add_u32 {s(sUBc)}, {s(sUBc)}, {UB}")
    A(f"s_mul_i32 {s(sTBc)}, {s(sCI)}, {TB_SZ}")
    A(f"s_add_u32 {s(sTBc)}, {s(sTBc)}, {TB}")
    for i in range(4):
        A(f"v_mov_b32 {v(16+i)}, 0")
    if not OPT["early3"]:
        A(f"v_min_u32 {v(vT2)}, 29, {v(vLANE)}")
        A(f"v_lshl_add_u32 {v(vT2)}, {v(vT2)}, 4, {s(sUBc)}")
        A(f"ds_write_b128 {v(vT2)}, {v(16,4)}")
    A(f"v_and_b32 {v(vT2)}, 3, {v(vLANE)}")
    A(f"v_lshlrev_b32 {v(vT2)}, 4, {v(vT2)}")
    A(f"ds_write_b128 {v(vT2)}, {v(16,4)} offset:{FG}")
    if not OPT["early3"]:
        A(f"v_mov_b32 {v(vT2)}, {s(sTBc)}")
        A(f"ds_write_b32 {v(vT2)}, {v(16)}")
    A(f"s_add_u32 {s(sTBc)}, {s(sTBc)}, 4")
    A(f"s_lshl_b32 {s(sT0)}, {s(sXW)}, 2")
    A(f"v_mov_b32 {v(xMine)}, {s(sT0)}")
    A(f"v_xor_b32 {v(xOther)}, 4, {v(xMine)}")
    A(f"s_add_u32 {s(sWoff)}, {s(sWoff)}, {96*3584}")
    A(f"s_sub_u32 {s(sT0)}, {s(sWoff)}, {448*3584}")
    A(f"s_cselect_b32 {s(sWoff)}, {s(sWoff)}, {s(sT0)}")
    A(f"s_add_u32 {s(sXoff)}, {s(sXoff)}, 256")
    A(f"s_sub_u32 {s(sT0)}, {s(sXoff)}, 896")
    A(f"s_cselect_b32 {s(sXoff)}, {s(sXoff)}, {s(sT0)}")
    A(f"s_add_u32 {s(sWoff1)}, {s(sWoff)}, {4*3584}")
    wd_setup(vDO, vT, vT2, 0)
    r2 = 2 * OPT["rot1"]
    got = {0, 1, 2, r2 % 14, (r2 + 1) % 14, (r2 + 2) % 14}
    rest = []
    for k in range(3, 14):
        for c in (k, (k + r2) % 14):
            if c not in got and c not in rest:
                rest.append(c)
    rest = (rest + [rest[-1]] * 8)[:8]
    A(f"s_lshr_b32 {s(sT0)}, {s(sXW)}, 1")
    A(f"s_lshl_b32 {s(sT0)}, {s(sT0)}, 4")
    A(f"s_lshr_b32 {s(sT0)}, {sum(c << (4*i) for i, c in enumerate(rest)):#x}, {s(sT0)}")
    A(f"v_lshrrev_b32 {v(vT)}, 4, {v(vLANE)}")
    A(f"v_lshlrev_b32 {v(vT)}, 2, {v(vT)}")
    A(f"v_bfe_u32 {v(vT)}, {s(sT0)}, {v(vT)}, 4")
    A(f"s_lshl_b32 {s(sT0)}, {s(sXR)}, 1")
    A(f"v_add_u32 {v(vT)}, {s(sT0)}, {v(vT)}")
    A(f"v_subrev_u32 {v(vT2)}, 14, {v(vT)}")
    A(f"v_min_u32 {v(vT)}, {v(vT)}, {v(vT2)}")
    A(f"v_bfe_u32 {v(vT2)}, {v(vLANE)}, 1, 3")
    A(f"v_lshl_add_u32 {v(vT)}, {v(vT)}, 5, {v(vT2)}")
    A(f"v_mul_u32_u24 {v(vT)}, 3584, {v(vT)}")
    A(f"v_and_b32 {v(vT2)}, 1, {v(vLANE)}")
    A(f"v_lshl_add_u32 {v(vT)}, {v(vT2)}, 7, {v(vT)}")
    A(f"s_and_b32 {s(sT0)}, {s(sJ)}, 3")
    A(f"s_mul_i32 {s(sT0)}, {s(sT0)}, {8*3584}")
    A(f"s_lshl_b32 {s(sT1)}, {s(sFB)}, 8")
    A(f"s_add_u32 {s(sT0)}, {s(sT0)}, {s(sT1)}")
    A(f"v_add_u32 {v(xPF)}, {s(sT0)}, {v(vT)}")
    A(f"s_cmp_eq_u32 {s(sPH)}, 0")
    A(f"s_cselect_b32 {s(sPB)}, {s(pWG)}, {s(pWU)}")
    A(f"s_cselect_b32 {s(sPB+1)}, {s(pWG+1)}, {s(pWU+1)}")
    gx = {0, 1, OPT["rot1"] % 7, (OPT["rot1"] + 1) % 7}
    rx = []
    for k in range(2, 7):
        for c in (k, (k + OPT["rot1"]) % 7):
            if c not in gx and c not in rx:
                rx.append(c)
    rx = (rx + [rx[-1]] * 4)[:4]
    A(f"s_lshr_b32 {s(sT0)}, {s(sCB)}, 1")
    A(f"s_lshl_b32 {s(sT0)}, {s(sT0)}, 2")
    A(f"s_lshr_b32 {s(sT0)}, {sum(c << (4*i) for i, c in enumerate(rx)):#x}, {s(sT0)}")
    A(f"s_and_b32 {s(sT0)}, {s(sT0)}, 15")
    A(f"s_add_u32 {s(sT0)}, {s(sT0)}, {s(sXR)}")
    A(f"s_sub_u32 {s(sT1)}, {s(sT0)}, 7")
    A(f"s_cselect_b32 {s(sT0)}, {s(sT0)}, {s(sT1)}")
    A(f"s_lshl_b32 {s(sT0)}, {s(sT0)}, 7")
    A(f"s_lshl_b32 {s(sT1)}, {s(sRB)}, 1")
    A(f"s_and_b32 {s(sT2)}, {s(sCB)}, 1")
    A(f"s_add_u32 {s(sT1)}, {s(sT1)}, {s(sT2)}")
    A(f"s_lshl_b32 {s(sT1)}, {s(sT1)}, 2")
    A(f"s_add_u32 {s(sT1)}, {s(sT1)}, {s(sXW)}")
    A(f"s_mul_i32 {s(sT1)}, {s(sT1)}, {16*896}")
    A(f"s_add_u32 {s(sT0)}, {s(sT0)}, {s(sT1)}")
    A(f"v_and_b32 {v(vT)}, 15, {v(vLANE)}")
    A(f"v_mul_u32_u24 {v(vT)}, 896, {v(vT)}")
    A(f"v_add_u32 {v(xPF+1)}, {s(sT0)}, {v(vT)}")
    A(f"s_cmp_eq_u32 {s(sCI)}, 0")
    A(f"s_mov_b32 {s(sT0)}, {XR+2*16384}")
    A(f"s_cselect_b32 {s(sT0)}, {WR+3*16384}, {s(sT0)}")
    if OPT["early3"]:
        A(f"s_mul_i32 {s(sT0)}, {s(sCI)}, {2*2816}")
        A(f"s_add_u32 {s(sT0)}, {s(sT0)}, {UB}")
    A(f"v_lshl_add_u32 {v(xPA)}, {v(vLANE)}, 2, {s(sT0)}")
    A(f"s_xor_b32 {s(sT0)}, {s(sXW)}, 1")
    A(f"s_mul_i32 {s(sT0)}, {s(sT0)}, {KA_SZ}")
    A(f"v_lshl_add_u32 {v(xPA+1)}, {v(vLANE)}, 2, {s(sT0)}")

    def gaddr(ph):
        A(f"v_and_b32 {v(vT)}, 31, {v(vLANE)}")
        A(f"v_lshrrev_b32 {v(vT2)}, 5, {v(vLANE)}")
        if ph == 0:
            A(f"v_lshl_add_u32 {v(vT)}, {v(vT)}, 1, {v(vT2)}")
            A(f"v_lshl_add_u32 {v(xTA)}, {v(vT)}, 4, {s(sTBc)}")
            A(f"s_add_u32 {s(sT0)}, {s(sTBc)}, 1024")
            A(f"v_lshl_add_u32 {v(xTA+1)}, {v(vT)}, 3, {s(sT0)}")
        else:
            A(f"s_add_u32 {s(sT0)}, {s(sTBc)}, {384*4}")
            A(f"v_lshl_add_u32 {v(xTA)}, {v(vLANE)}, 3, {s(sT0)}")
            A(f"v_lshl_add_u32 {v(vT)}, {v(vT2)}, 6, {v(vT)}")
            A(f"s_add_u32 {s(sT0)}, {s(sTBc)}, {512*4}")
            A(f"v_lshl_add_u32 {v(xTA+1)}, {v(vT)}, 2, {s(sT0)}")
        A(f"v_lshlrev_b32 {v(vT)}, 4, {v(vLANE)}")
        A(f"v_sub_u32 {v(vT)}, {2047-1024*ph}, {v(vT)}")
        if ph:
            A(f"v_cmp_gt_u32 vcc, 256, {v(vT)}")
            A(f"v_subrev_u32 {v(vT2)}, 16, {v(vT)}")
            A(f"v_mov_b32 {v(vT3)}, 144")
            A(f"v_cndmask_b32 {v(vT)}, {v(vT)}, {v(vT3)}, vcc")
            A(f"v_mov_b32 {v(vT3)}, 128")
            A(f"v_cndmask_b32 {v(vT2)}, {v(vT3)}, {v(vT2)}, vcc")
        else:
            A(f"v_mov_b32 {v(vT2)}, 128")
        A(f"v_cvt_f32_u32 {v(vT)}, {v(vT)}")
        A(f"v_subrev_u32 {v(vT2)}, 0x4300, {v(vT2)}")
        A(f"v_lshl_add_u32 {v(vT2)}, {v(vT2)}, 2, {s(sTBc)}")
        for k in (range(0, 17, 2) if ph else (0, 8, 16)):
            A(f"v_subrev_f32 {v(xGA+k)}, {f2u(float(k)):#x}, {v(vT)}")
            A(f"v_subrev_f32 {v(xGA+k+1)}, {f2u(float(k+1)):#x}, {v(vT)}")
            A(f"v_cvt_pk_bf16_f32 {v(vT3)}, {v(xGA+k)}, {v(xGA+k+1)}")
            A(f"v_mad_u32_u16 {v(xGA+k)}, {v(vT3)}, 4, {v(vT2)}")
            if k < 16 and ph:
                A(f"v_mad_u32_u16 {v(xGA+k+1)}, {v(vT3)}, 4, {v(vT2)} op_sel:[1,0,0,0]")
    by_ph(lambda: gaddr(0), lambda: gaddr(1))


def warm_d():
    sk = A.new("wd")
    if OPT["nmain"] < 4:
        A(f"s_cmp_ge_u32 {s(sXW)}, {OPT['nmain']}")
        A(f"s_cbranch_scc1 {sk}")
    A(f"global_load_dword {v(xPF+5)}, {v(xPF+4)}, {s(pWD,2)}")
    A.label(sk)


def phase0():
    A.vm = 0
    R = KR_
    vT, vT2, vT3 = 120, 121, 122
    P = R["P"]
    A(f"s_mul_i32 {s(sCH0)}, {s(sXCD)}, 28")
    A(f"s_add_u32 {s(sCH0)}, {s(sCH0)}, {s(sJ)}")
    A(f"s_lshl_b32 {s(sCH0)}, {s(sCH0)}, 1")
    A(f"s_bfe_u32 {s(sCI)}, {s(sWAVE)}, 0x10001")
    A(f"s_add_u32 {s(sCH)}, {s(sCH0)}, {s(sCI)}")
    A(f"s_lshr_b32 {s(sT0)}, {s(sWAVE)}, 2")
    A(f"s_lshl_b32 {s(sT0)}, {s(sT0)}, 1")
    A(f"s_and_b32 {s(sT1)}, {s(sWAVE)}, 1")
    A(f"s_add_u32 {s(sT0)}, {s(sT0)}, {s(sT1)}")
    A(f"s_lshl_b32 {s(sT0)}, {s(sT0)}, 7")
    A(f"s_lshl_b32 {s(sT3)}, {s(sCH)}, 9")
    A(f"s_add_u32 {s(sT0)}, {s(sT0)}, {s(sT3)}")
    A(f"v_lshl_add_u32 {v(vT3)}, {v(vLANE)}, 1, {s(sT0)}")
    A(f"s_lshl_b32 {s(sT3)}, {s(sCH0)}, 1")
    A(f"s_and_b32 {s(sT5)}, {s(sWAVE)}, 3")
    A(f"v_lshrrev_b32 {v(vT)}, 4, {v(vLANE)}")
    A(f"v_mul_u32_u24 {v(vWO)}, 3584, {v(vT)}")
    A(f"v_bfe_u32 {v(vT2)}, {v(vLANE)}, 2, 2")
    A(f"v_xor_b32 {v(vT2)}, {v(vT2)}, {v(vT)}")
    A(f"v_lshl_add_u32 {v(vWO)}, {v(vT2)}, 6, {v(vWO)}")
    A(f"v_and_b32 {v(vT2)}, 3, {v(vLANE)}")
    A(f"v_lshl_add_u32 {v(vWO)}, {v(vT2)}, 4, {v(vWO)}")
    A(f"s_mul_i32 {s(sT0)}, {s(sT5)}, {8*3584}")
    A(f"s_lshl_b32 {s(sT2)}, {s(sFB)}, 8")
    A(f"s_add_u32 {s(sT0)}, {s(sT0)}, {s(sT2)}")
    A(f"v_add_u32 {v(vWO)}, {s(sT0)}, {v(vWO)}")
    A(f"s_lshl_b32 {s(sT0)}, {s(sT1)}, 2")
    A(f"v_add_u32 {v(vT)}, {s(sT0)}, {v(vT)}")
    A(f"v_and_b32 {v(vT2)}, 7, {v(vLANE)}")
    A(f"v_xor_b32 {v(vT2)}, {v(vT2)}, {v(vT)}")
    A(f"v_lshrrev_b32 {v(vT)}, 3, {v(vLANE)}")
    A(f"v_mul_u32_u24 {v(vXO)}, 896, {v(vT)}")
    A(f"v_lshl_add_u32 {v(vXO)}, {v(vT2)}, 4, {v(vXO)}")
    A(f"s_lshl_b32 {s(sT0)}, {s(sRB)}, 4")
    A(f"s_add_u32 {s(sT0)}, {s(sT0)}, {s(sT5)}")
    A(f"s_mul_i32 {s(sT0)}, {s(sT0)}, {8*896}")
    A(f"v_add_u32 {v(vXO)}, {s(sT0)}, {v(vXO)}")
    A(f"s_lshl_b32 {s(sWO)}, {s(sT5)}, 11")
    A(f"s_lshl_b32 {s(sXO)}, {s(sT5)}, 10")
    tabs = {0: [0] * 8, 1: [0, 1, 2, 3, 2, 3, 4, 5], 2: [0, 2, 1, 3, 5, 0, 6, 1], 3: [0, 1, 2, 3, 1, 2, 3, 0]}[OPT["xrot"]]
    A(f"s_lshl_b32 {s(sDoff)}, {s(sXCD)}, 2")
    A(f"s_lshr_b32 {s(sDoff)}, {sum(c << (4*i) for i, c in enumerate(tabs)):#x}, {s(sDoff)}")
    A(f"s_and_b32 {s(sDoff)}, {s(sDoff)}, 15")
    A(f"s_mul_i32 {s(sDbase)}, {s(sGRP)}, {OPT['rot1']}")
    A(f"s_add_u32 {s(sDbase)}, {s(sDbase)}, {s(sDoff)}")
    A(f"s_sub_u32 {s(sT0)}, {s(sDbase)}, 7")
    A(f"s_cselect_b32 {s(sDbase)}, {s(sDbase)}, {s(sT0)}")
    A(f"s_mul_i32 {s(sWoff)}, {s(sDbase)}, {64*3584}")
    A(f"s_add_u32 {s(sWoff1)}, {s(sWoff)}, {4*3584}")
    A(f"s_lshl_b32 {s(sXoff)}, {s(sDbase)}, 7")
    if OPT["fill2"]:
        A(f"s_lshr_b32 {s(sT0)}, {s(sWAVE)}, 1")
        A(f"s_lshl_b32 {s(sT0)}, {s(sT0)}, 2")
        A(f"v_lshrrev_b32 {v(vT)}, 4, {v(vLANE)}")
        A(f"v_add_u32 {v(vT)}, {s(sT0)}, {v(vT)}")
        A(f"v_min_u32 {v(vT)}, 13, {v(vT)}")
        A(f"v_bfe_u32 {v(vT2)}, {v(vLANE)}, 1, 3")
        A(f"v_lshl_add_u32 {v(vT)}, {v(vT)}, 5, {v(vT2)}")
        A(f"v_mul_u32_u24 {v(vT)}, 3584, {v(vT)}")
        A(f"v_and_b32 {v(vT2)}, 1, {v(vLANE)}")
        A(f"v_lshl_add_u32 {v(vT)}, {v(vT2)}, 7, {v(vT)}")
        A(f"s_and_b32 {s(sT0)}, {s(sJ)}, 3")
        A(f"s_mul_i32 {s(sT0)}, {s(sT0)}, {8*3584}")
        A(f"s_lshl_b32 {s(sT2)}, {s(sFB)}, 8")
        A(f"s_add_u32 {s(sT0)}, {s(sT0)}, {s(sT2)}")
        A(f"v_add_u32 v92, {s(sT0)}, {v(vT)}")
        A(f"s_min_u32 {s(sT0)}, {s(sWAVE)}, 6")
        A(f"s_lshl_b32 {s(sT0)}, {s(sT0)}, 7")
        A(f"s_mul_i32 {s(sT2)}, {s(sRB)}, {128*896}")
        A(f"s_add_u32 {s(sT0)}, {s(sT0)}, {s(sT2)}")
        A(f"s_mul_i32 {s(sT2)}, {s(sCB)}, 19")
        A(f"v_min_u32 {v(vT)}, 18, {v(vLANE)}")
        A(f"v_add_u32 {v(vT)}, {s(sT2)}, {v(vT)}")
        A(f"v_min_u32 {v(vT)}, 127, {v(vT)}")
        A(f"v_mul_u32_u24 {v(vT)}, 896, {v(vT)}")
        A(f"v_add_u32 v93, {s(sT0)}, {v(vT)}")
    kernarg_ready()
    A(f"s_mov_b32 {s(sXR)}, {s(sDoff)}")

    def warm2(cond=None):
        if cond:
            A(cond)
            A("s_cselect_b64 exec, -1, 1")
        A.vmem(f"global_load_dword v94, v93, {s(pX,2)}")
        A.vmem(f"global_load_dword v94, v92, {s(sPB,2)}")
        if cond:
            A("s_mov_b64 exec, -1")
    for k, p in enumerate((pLA, pAI, pCR, pCI)):
        par = A.vmem(f"global_load_ushort {v(P+k)}, {v(vT3)}, {s(p,2)}{' nt' if OPT['pnt'] else ''}")
    A(f"s_load_dword {s(sT4)}, {s(pLDT,2)}, {s(sT3)}")
    if OPT["fill2"]:
        A(f"s_cmp_eq_u32 {s(sT1)}, 0")
        A(f"s_cselect_b32 {s(sPB)}, {s(pWG)}, {s(pWU)}")
        A(f"s_cselect_b32 {s(sPB+1)}, {s(pWG+1)}, {s(pWU+1)}")
    if OPT["pbar"]:
        A("s_barrier")
    srd(rWG, pWG, 448 * 1792 * 2)
    srd(rWU, pWU, 448 * 1792 * 2)
    srd(rX, pX, 2048 * 448 * 2)
    isx, join = A.new("px"), A.new("pj")
    A(f"s_cmp_ge_u32 {s(sWAVE)}, 4")
    A(f"s_cbranch_scc1 {isx}")
    if OPT["fill2"]:
        warm2(f"s_cmp_lt_u32 {s(sWAVE)}, {OPT['fill2']}")
        c_setup()
        dma_w(0); dma_x(0, range(4))
    else:
        dma_w(0); dma_x(0, range(4))
        c_setup()
    A(f"s_branch {join}")
    A.label(isx)
    x_setup()
    A.label(join)
    srd(rWS, pWS, WS_BYTES)

    def c_only(f):
        sk = A.new("co")
        A(f"s_cmp_ge_u32 {s(sWAVE)}, 4")
        A(f"s_cbranch_scc1 {sk}")
        f()
        A.label(sk)
    A(f"v_lshl_add_u32 {v(vT)}, {v(vLANE)}, 6, {s(sKB)}")
    A(f"v_bfe_u32 {v(vT2)}, {v(vLANE)}, 1, 2")
    for k in range(4):
        A(f"v_xor_b32 {v(vT3)}, {k}, {v(vT2)}")
        A(f"v_lshl_add_u32 {v(R['wa']+k)}, {v(vT3)}, 4, {v(vT)}")
    A(f"v_bfe_u32 {v(vT2)}, {v(vLANE)}, 2, 2")
    A(f"v_lshrrev_b32 {v(vT)}, 5, {v(vLANE)}")
    A(f"v_lshl_add_u32 {v(vT)}, {v(vT)}, 3, {v(vT2)}")
    A(f"v_lshl_add_u32 {v(vT)}, {v(vT)}, 6, {s(sKB)}")
    A(f"v_bfe_u32 {v(vT2)}, {v(vLANE)}, 4, 1")
    A(f"v_lshl_add_u32 {v(vT)}, {v(vT2)}, 5, {v(vT)}")
    A(f"v_lshrrev_b32 {v(vT2)}, 1, {v(vLANE)}")
    A(f"v_lshrrev_b32 {v(vT3)}, 3, {v(vLANE)}")
    A(f"v_xor_b32 {v(vT2)}, {v(vT2)}, {v(vT3)}")
    A(f"v_and_b32 {v(vT2)}, 1, {v(vT2)}")
    A(f"v_lshl_add_u32 {v(vT)}, {v(vT2)}, 4, {v(vT)}")
    A(f"v_and_b32 {v(vT2)}, 1, {v(vLANE)}")
    A(f"v_lshl_add_u32 {v(R['ra'])}, {v(vT2)}, 3, {v(vT)}")
    A(f"v_add_u32 {v(R['ra']+1)}, 256, {v(R['ra'])}")
    A(f"v_xor_b32 {v(R['ra']+1)}, 32, {v(R['ra']+1)}")
    A("s_waitcnt lgkmcnt(0)")
    A(f"s_lshl_b32 {s(sT0)}, {s(sT4)}, 16")
    A(f"s_and_b32 {s(sT2)}, {s(sT4)}, 0xffff0000")
    A(f"s_cmp_eq_u32 {s(sCI)}, 0")
    A(f"s_cselect_b32 {s(sT0)}, {s(sT0)}, {s(sT2)}")
    A(f"v_mov_b32 {v(vT)}, {LOG2E:#x}")
    A(f"v_mul_f32 {v(vT)}, {s(sT0)}, {v(vT)}")
    A(f"v_exp_f32 {v(vT)}, {v(vT)}")
    A("s_nop 0")
    A(f"v_cvt_pk_bf16_f32 {v(vT)}, {v(vT)}, {v(vT)}")
    A(f"v_lshlrev_b32 {v(P+4)}, 16, {v(vT)}")
    A(f"v_add_f32 {v(P+5)}, {v(P+4)}, {v(P+4)}")
    if OPT["early3"]:
        A(f"s_mul_i32 {s(sT0)}, {s(sWAVE)}, 2816")
        A(f"s_add_u32 {s(sT0)}, {s(sT0)}, {UB}")
        A(f"s_cmp_lt_u32 {s(sWAVE)}, 4")
        A(f"s_cselect_b32 {s(sKB)}, {s(sT0)}, {s(sKB)}")
    A(f"v_lshl_add_u32 {v(vT)}, {v(vLANE)}, 2, {s(sKB)}")
    stamp(6)
    isx, join = A.new("px"), A.new("pj")
    A(f"s_cmp_ge_u32 {s(sWAVE)}, 4")
    A(f"s_cbranch_scc1 {isx}")
    if OPT["w1h"] < 0 and OPT["w1h"] != -6:
        dma_w(1)
    if OPT["fill2"]:
        warm2(f"s_cmp_ge_u32 {s(sWAVE)}, {OPT['fill2']}")
    A.wait_vm(par)
    A(f"s_branch {join}")
    A.label(isx)
    A("s_waitcnt vmcnt(0)")
    if OPT["fill2"]:
        keep = A.vm
        warm2()
        A.vm = keep
    elif OPT["pfh"] == -2:
        A(f"global_load_dword {v(xPF+2)}, {v(xPF+1)}, {s(pX,2)}")
        A(f"global_load_dword {v(xPF+3)}, {v(xPF)}, {s(sPB,2)}")
    A.label(join)
    stamp(7)
    for k in range(4):
        A(f"v_lshlrev_b32 {v(P+k)}, 16, {v(P+k)}")
    def warm():
        A(f"global_load_dword {v(xPF+2)}, {v(xPF+1)}, {s(pX,2)}")
        A(f"global_load_dword {v(xPF+3)}, {v(xPF)}, {s(sPB,2)}")

    def hook(n):
        isx, join = A.new("hx"), A.new("hj")
        A(f"s_cmp_ge_u32 {s(sWAVE)}, 4")
        A(f"s_cbranch_scc1 {isx}")
        if OPT["w1h"] in (-5, -6):
            pass
        elif OPT["w1h"] == -2:
            if n == 0:
                dma_w(2); dma_x(1, range(4))
        elif OPT["w1h"] in (-3, -4):
            if n == 0:
                dma_w(2)
        elif OPT["w1h"] < 0:
            dma_w(2) if n == 0 else dma_x(1, range(4))
        elif OPT["w1h"] == 0:
            if n == 0:
                dma_w(1)
            else:
                dma_w(2); dma_x(1, range(4))
        elif n == 1:
            dma_w(1); dma_w(2); dma_x(1, range(4))
        A(f"s_branch {join}")
        A.label(isx)
        if OPT["wsplit"]:
            if n == 0:
                A(f"global_load_dword {v(xPF+2)}, {v(xPF+1)}, {s(pX,2)}")
            A(f"s_cmp_{'ge' if n == 0 else 'lt'}_u32 {s(sWAVE)}, 6")
            A(f"s_cbranch_scc1 {join}")
            A(f"global_load_dword {v(xPF+3)}, {v(xPF)}, {s(sPB,2)}")
        elif OPT["pfh"] == n and not OPT["fill2"]:
            warm()
        if OPT["wdh"] == n:
            warm_d()
        A.label(join)
    kgen_slot(R, hook)
    A("s_nop 11")
    DK = R["DK"]
    for r in range(0, 10, 2):
        A(f"ds_write2st64_b32 {v(vT)}, {v(DK+r)}, {v(DK+r+1)} offset0:{r} offset1:{r+1}")
    A(f"ds_write_b32 {v(vT)}, {v(DK+10)} offset:2560")
    stamp(8)
    A(f"s_cmp_ge_u32 {s(sWAVE)}, 4")
    A("s_cbranch_scc1 L_xw")
    if OPT.get("p0"):
        STAMP_ON[0] = False


def cwave():
    vXA, vWA, vL16, vT, vT2, vFL, vD, vZ = cXA, cWA, cL16, cT, cT2, cFL, cD, cZ
    FR = 16
    SM, SEL, SAC = cSM, cSEL, cSAC
    ACC = 128

    def xf(st, rbk): return FR + 24 * st + 4 * rbk
    def wf(st, mat, j): return FR + 24 * st + 8 + 4 * (2 * mat + j)
    def acc(mat, j, rbk): return ACC + 16 * ((mat * 2 + j) * 2 + rbk)

    if OPT["prio"]:
        A(f"s_setprio {OPT['prio']}")

    def reads(st, c, ks):
        xs = ((c // 2) % 3) * 16384
        k4 = (c % 2) * 2 + ks
        ws_ = (c % 4) * 16384 + ks * 4096
        r = []
        r.append(f"ds_read_b128 {v(xf(st,0),4)}, {v(vXA+k4)} offset:{xs}")
        for j in range(2):
            for mat in range(2):
                for h in range(2):
                    r.append(f"ds_read_b64_tr_b16 {v(wf(st,mat,j)+2*h,2)}, {v(vWA+j)} offset:{ws_+mat*8192+h*1024}")
            if j == 0:
                r.append(f"ds_read_b128 {v(xf(st,1),4)}, {v(vXA+k4)} offset:{xs+4096}")
        return r

    def mf(st, first):
        if OPT["snake"] == 1:
            order = [(0, 0, 0), (0, 0, 1), (0, 1, 1), (0, 1, 0), (1, 1, 0), (1, 1, 1), (1, 0, 1), (1, 0, 0)]
        elif OPT["snake"] == 2:
            order = [(0, 0, 0), (0, 1, 0), (0, 1, 1), (0, 0, 1), (1, 0, 1), (1, 1, 1), (1, 1, 0), (1, 0, 0)]
        elif OPT["snake"] == 3:
            order = [(0, 0, 0), (0, 0, 1), (1, 0, 1), (1, 0, 0), (1, 1, 0), (1, 1, 1), (0, 1, 1), (0, 1, 0)]
        else:
            order = [(j, rbk, mat) for j in range(2) for rbk in range(2) for mat in range(2)]
        m = []
        for j, rbk, mat in order:
            a = acc(mat, j, rbk)
            cc = "0" if first else v(a, 16)
            m.append(f"v_mfma_f32_32x32x16_bf16 {v(a,16)}, {v(wf(st,mat,j),4)}, {v(xf(st,rbk),4)}, {cc}")
        return m

    def smf(st, first):
        return [f"v_mfma_f32_16x16x32_bf16 {v(SAC+4*mat,4)}, {v(SEL,4)}, {v(wf(st,mat,0),4)}, {'0' if first else v(SAC+4*mat,4)}"
                for mat in range(2)]

    def mix(st, first):
        b, sm = mf(st, first), smf(st, first)
        if OPT["nos"]:
            return b
        return b[:5] + sm + b[5:]

    def phase(ms, rs, extra=None):
        rs = list(rs)
        for i, m in enumerate(ms):
            if i == len(ms) - 1:
                A("s_waitcnt lgkmcnt(0)")
            A(m)
            for _ in range(2):
                if rs:
                    A(rs.pop(0))
            if i == 6 and extra:
                extra()

    mid = [0]

    def mloads():
        A(f"s_lshl_b32 {s(sT2)}, {s(sRB)}, 1")
        A(f"s_add_u32 {s(sT2)}, {s(sT2)}, {s(sRH)}")
        A(f"s_lshl_b32 {s(sT2)}, {s(sT2)}, 9")
        A(f"s_add_u32 {s(sT2)}, {s(sT2)}, {OFF_ST}")
        A(f"v_lshrrev_b32 {v(vT)}, 1, {v(vL16)}")
        A("s_mov_b32 exec_hi, 0")
        for rbk in range(2):
            mid[0] = A.vmem(f"buffer_load_dword {v(SM+16+4*rbk)}, {v(vT)}, {s(rWS,4)}, {s(sT2)} offen offset:{256*rbk} sc1")
        A("s_mov_b32 exec_hi, -1")

    sHA = 78
    sQ2, sQV, sONE, sPC = 77, 85, 86, 16

    def haddr():
        A(f"s_lshl_b32 {s(sT0)}, {s(sRB)}, 1")
        A(f"s_add_u32 {s(sT0)}, {s(sT0)}, {s(sRH)}")
        A(f"s_lshl_b32 {s(sT1)}, {s(sFB)}, 1")
        A(f"s_add_u32 {s(sT1)}, {s(sT1)}, {s(sFH)}")
        A(f"s_mul_i32 {s(sT2)}, {s(sT0)}, {224*1024}")
        A(f"s_lshl_b32 {s(sT3)}, {s(sT1)}, 12")
        A(f"s_add_u32 {s(sT2)}, {s(sT2)}, {s(sT3)}")
        A(f"s_add_u32 {s(sT2)}, {s(sT2)}, {OFF_H}")
        A(f"s_lshl_b32 {s(sT3)}, {s(sRH)}, 11")
        A(f"s_add_u32 {s(sHA)}, {s(sT2)}, {s(sT3)}")
        A(f"s_xor_b32 {s(sHA+1)}, {s(sHA)}, 2048")
        A(f"s_add_u32 {s(sHA+2)}, {s(sHA)}, {112*1024}")
        A(f"s_add_u32 {s(sHA+3)}, {s(sHA+1)}, {112*1024}")
        A(f"s_lshl_b32 {s(sT4)}, {s(sT0)}, 10")
        A(f"s_add_u32 {s(sT4)}, {s(sT4)}, {OFF_FL}")
        if OPT["kq"]:
            A(f"s_mul_i32 {s(sT1)}, {s(sT1)}, 37")
            A(f"s_lshr_b32 {s(sT1)}, {s(sT1)}, 8")
            A(f"s_lshl_b32 {s(sT1)}, {s(sT1)}, 7")
            A(f"s_add_u32 {s(sT4)}, {s(sT4)}, {s(sT1)}")
        A(f"s_add_u32 {s(sPC)}, {s(pWS)}, {s(sT4)}")
        A(f"s_addc_u32 {s(sPC+1)}, {s(pWS+1)}, 0")
        A(f"s_lshl_b32 {s(sQ2)}, {s(sRB64)}, 3")
        if OPT["kq"]:
            A(f"s_add_u32 {s(sQ2)}, {s(sQ2)}, {s(sWAVE)}")
        A(f"s_lshl_b32 {s(sQ2)}, {s(sQ2)}, 7")
        A(f"s_add_u32 {s(sQ2)}, {s(sQ2)}, {OFF_FL}")
    if OPT["w1h"] == -6:
        dma_w(1)
    if OPT["w1h"] in (-5, -6):
        dma_w(2)
    if OPT["w1h"] == -3:
        dma_x(1, range(4))
    haddr()
    A.wait_vm(xid[0])
    A("s_waitcnt lgkmcnt(0)")
    A("s_barrier")
    stamp(1)
    for r in reads(0, 0, 0):
        A(r)
    if OPT["w1h"] in (-4, -5, -6):
        dma_x(1, range(4))
    A("s_waitcnt lgkmcnt(0)")
    for c in range(14):
        phase(mix(0, c == 0), reads(1, c, 1))
        if c < 13:
            if c == 0:
                A.wait_vm(wid[1])
            if c == 1:
                A.wait_vm(xid[1])
            A("s_barrier")
            if c in (OPT.get("sa", 3), OPT.get("sb", 8)):
                stamp(9 if c == OPT.get("sa", 3) else 10)
            phase(mix(1, False), reads(0, c + 1, 0), mloads if c + 1 == H1_BAR else None)
    vDA = 2
    ms = mf(1, False)
    for m in smf(1, False) + ms[:3]:
        A(m)
    A(f"s_lshl_b32 {s(sT0)}, {s(sWAVE)}, 9")
    A(f"v_lshrrev_b32 {v(vT)}, 2, {v(vL16)}")
    A(f"v_add_u32 {v(vT)}, {s(sT0)}, {v(vT)}")
    A(f"v_add_u32 {v(vDA)}, {XR}, {v(cDB)}")
    A(f"v_xor_b32 {v(vDA+1)}, 64, {v(vDA)}")
    for mat in range(2):
        d = SM + 8 * mat
        A(f"v_cvt_pk_bf16_f32 {v(d)}, {v(SAC+4*mat)}, {v(SAC+4*mat)}")
        A(f"v_lshlrev_b32 {v(d)}, 16, {v(d)}")
        A(f"v_sub_f32 {v(vT2)}, {v(SAC+4*mat)}, {v(d)}")
        A(f"v_cvt_pk_bf16_f32 {v(d)}, {v(d)}, {v(vT2)}")
        if mat == 0:
            A(ms[3])
    A(f"v_add_u32 {v(vT2)}, {SX}, {v(vT)}")
    if not OPT["xp"] & 4:
        A(f"ds_write2st64_b32 {v(vT2)}, {v(SM)}, {v(SM+8)} offset0:0 offset1:1")
    A(f"v_xor_b32 {v(vT)}, 512, {v(vT)}")
    A(ms[4])
    A(f"v_add_u32 {v(vDA+2)}, {WR}, {v(cDB)}")
    A(f"v_xor_b32 {v(vDA+3)}, 64, {v(vDA+2)}")
    A(ms[5])
    A("s_waitcnt lgkmcnt(0)")
    A("s_barrier")
    ACC2, HB, W2 = 192, 128, 176
    HD = OPT["hd"]

    def w1(pos):
        return 104 + 8 * pos if pos < 3 else 16 + 8 * (pos - 3)

    def wd_reads(dst, pos):
        sl = WD_SLOT[(pos % 14) // 2]
        hi = sl >= WR
        off = sl - (WR if hi else XR) + (pos % 2) * 2048
        return [f"ds_read_b64_tr_b16 {v(dst+4*cj+2*h,2)}, {v(vDA+2*hi+cj)} offset:{off+h*1024}"
                for cj in range(2) for h in range(2)]
    for mat in range(2):
        A(f"ds_read_b32 {v(SM+8*mat+4)}, {v(vT)} offset:{SX+256*mat}")
    for m in ms[6:]:
        A(m)
    A.wait_vm(mid[0])
    rs = [r for pos in range(4) for r in wd_reads(w1(pos), pos)]
    corr = []
    for j in range(2):
        for rbk in range(2):
            for mat in range(2):
                a = acc(mat, j, rbk)
                corr.append(f"v_mfma_f32_32x32x16_bf16 {v(a,16)}, {v(SM+4*(2*mat+j),4)}, {v(SM+16+4*rbk,4)}, {v(a,16)}")
    nfirst = 4 if OPT["cint"] else 8
    for n in range(nfirst):
        if n == 4:
            A("s_waitcnt lgkmcnt(8)")
        A(corr[n])
        for _ in range(16 // nfirst):
            A(rs.pop(0))
    stamp(2)
    if OPT["eprio"]:
        A(f"s_setprio {OPT['eprio']}")
    if OPT["cint"]:
        A("s_waitcnt lgkmcnt(15)")
    late = corr[nfirst:]
    for j in range(2):
        for rbk in range(2):
            g_, u_ = acc(0, j, rbk), acc(1, j, rbk)
            for ab in range(2):
                b = 8 * ab
                if late:
                    A(late.pop(0))
                for e in range(8):
                    A(f"v_max_f32 {v(g_+b+e)}, 0, {v(g_+b+e)}")
                if late and ab == 0 and False:
                    A(late.pop(0))
                if OPT["b15"] and not (OPT["cint"] and j == 0):
                    for e in range(0, 8, 2):
                        A(f"v_pk_mul_f32 {v(g_+b+e,2)}, {v(g_+b+e,2)}, {v(u_+b+e,2)}")
                else:
                    for e in range(8):
                        A(f"v_mul_f32 {v(g_+b+e)}, {v(g_+b+e)}, {v(u_+b+e)}")
                for e in range(4):
                    A(f"v_cvt_pk_bf16_f32 {v(g_+b+e)}, {v(g_+b+2*e)}, {v(g_+b+2*e+1)}")
                hs = A.vmem(f"buffer_store_dwordx4 {v(g_+b,4)}, {v(vL16)}, {s(rWS,4)}, {s(sHA+2*rbk+j)} offen offset:{ab*1024} sc1")
                nst = (j * 2 + rbk) * 2 + ab + 1
                if OPT["mid"] and nst == OPT["mid"]:
                    A("s_waitcnt lgkmcnt(0)")
                    dma_d(7, vD)
                if OPT["mid"] and nst == OPT["mid"] + 2:
                    dma_d(8, vD)
    stamp(6)
    if OPT["eprio"]:
        A("s_setprio 0")
    A("s_waitcnt lgkmcnt(0)")
    if OPT["b15"]:
        A("s_barrier")
    else:
        lds_wait(vZ, F_WD, 1, vT)
    for pos in range(4, 10):
        for r in wd_reads(w1(pos), pos):
            A(r)
    NM = OPT["nmid"]
    P0_ = 9 if OPT["mid"] else 7
    if OPT["mid"]:
        A("s_waitcnt lgkmcnt(0)")
    for pp in range(P0_, NM + 1):
        if pp == P0_ + OPT["npre"]:
            A(f"s_mov_b32 {s(sONE)}, 1")
            A.wait_vm(hs)
            stamp(3)
            for k in range(7 if OPT["rep"] else 1):
                A(f"s_atomic_add {s(sONE)}, {s(sPC,2)}, {128*k}")
        if pp == 9:
            A("s_waitcnt lgkmcnt(0)") if OPT["npre"] > 2 else None
        if pp == (P0_ + 1 if OPT["allrd"] else 11):
            lds_wait(vZ, F_WD, 2, vT)
            for pos in range(10, 14):
                for r in wd_reads(w1(pos), pos):
                    A(r)
        if pp == 12 and not OPT["allrd"]:
            A("s_waitcnt lgkmcnt(0)")
        if pp == OPT["stat"]:
            lds_set(vZ, F_GO, 1, vT)
        if pp == min(NM, OPT['qat']):
            q_read(sQV, sQ2)
        dma_d(pp, vD)
        if pp == P0_ + 1:
            A("s_waitcnt lgkmcnt(0)")
    assert NM >= 11 or OPT['allrd']
    sHB, sHB2, sH0, sH1 = 78, 79, 80, 81
    A(f"s_mul_i32 {s(sHB)}, {s(sRB64)}, {224*1024}")
    A(f"s_mul_i32 {s(sT0)}, {s(sWAVE)}, {(28 if OPT['kq'] else 14)*1024}")
    A(f"s_add_u32 {s(sHB)}, {s(sHB)}, {s(sT0)}")
    A(f"s_add_u32 {s(sHB)}, {s(sHB)}, {OFF_H}")
    if OPT["kq"]:
        A(f"s_add_u32 {s(sHB2)}, {s(sHB)}, {14*1024}")
        if OPT["hrot"]:
            A(f"s_mul_i32 {s(sT0)}, {s(sGRP)}, {14*1024}")
            A(f"s_add_u32 {s(sHB)}, {s(sHB)}, {s(sT0)}")
            A(f"s_sub_u32 {s(sHB2)}, {s(sHB2)}, {s(sT0)}")
    else:
        A(f"s_lshr_b32 {s(sT0)}, {s(sXCD)}, 2")
        A(f"s_mul_i32 {s(sT0)}, {s(sT0)}, {56*1024}")
        A(f"s_sub_u32 {s(sHB2)}, {s(sHB)}, {s(sT0)}")
        A(f"s_add_u32 {s(sHB2)}, {s(sHB2)}, {56*1024}")
        A(f"s_add_u32 {s(sHB)}, {s(sHB)}, {s(sT0)}")
    vPW = [6, 7, 11, 14]
    A(f"s_add_u32 {s(sT0)}, {s(sW4K)}, {WR}")
    A(f"v_lshl_add_u32 {v(vPW[0])}, {v(vLANE)}, 2, {s(sT0)}")
    for k, rot in ((1, 16), (2, 128), (3, 144)):
        A(f"v_xor_b32 {v(vPW[k])}, {rot}, {v(vPW[0])}")
    poll_scalar(sQ2, 7 if OPT['kq'] else 28, sQV, OPT["ssl"], first_issued=True)
    stamp(4)
    hid = {}

    def h_load(ks):
        p = ks % 14
        if p % 4 == 0:
            A(f"s_add_u32 {s(sH0)}, {s(sHB if ks < 14 else sHB2)}, {p*1024}")
            A(f"s_add_u32 {s(sH1)}, {s(sH0)}, {112*1024}")
        for rbk in range(2):
            hid[ks] = A.vmem(f"buffer_load_dwordx4 {v(HB+8*(ks%HD)+4*rbk,4)}, {v(vL16)}, {s(rWS,4)}, {s(sH0+rbk)} offen offset:{(p%4)*1024} sc1")
    for ks in range(HD):
        h_load(ks)
        if OPT["stat"] == 20 + ks:
            lds_set(vZ, F_GO, 1, vT)
    for ks in range(28):
        A.wait_vm(hid[ks])
        if ks == OPT["goat"]:
            lds_set(vZ, F_GO, 2, vT)
        if OPT["go2"] and ks == OPT["go2"]:
            lds_set(vZ, F_GO, 3, vT)
        if ks >= 13 and ks + 1 < 28:
            for r in wd_reads(W2 + 8 * ((ks + 1) % 2), ks + 1):
                A(r)
        if ks >= 14:
            A(f"s_waitcnt lgkmcnt({4 if ks + 1 < 28 else 0})")
        wb = w1(ks) if ks < 14 else W2 + 8 * (ks % 2)
        for rbk in range(2):
            for cj in ((0, 1) if (rbk == 0 or not OPT["snake"]) else (1, 0)):
                a = ACC2 + 16 * (2 * rbk + cj)
                cc = "0" if ks == 0 else v(a, 16)
                A(f"v_mfma_f32_32x32x16_bf16 {v(a,16)}, {v(HB+8*(ks%HD)+4*rbk,4)}, {v(wb+4*cj,4)}, {cc}")
        if ks + HD < 28:
            h_load(ks + HD)
        if ks % 2 == 0 and NM + 1 + ks // 2 < 14:
            if NM + 1 + ks // 2 == OPT["stat"]:
                lds_set(vZ, F_GO, 1, vT)
            dma_d(NM + 1 + ks // 2, vD)
    stamp(7)
    A("s_nop 8")
    for t in range(4):
        for r in (0, 1, 2, 3, 8, 9, 10, 11):
            A(f"ds_write2st64_b32 {v(vPW[r%4])}, {v(ACC2+16*t+r)}, {v(ACC2+16*t+r+4)} offset0:{64*t+r} offset1:{64*t+r+4}")
        if OPT["tail2"] and t == 2:
            A("s_waitcnt lgkmcnt(8)")
            A("s_barrier")
    A("s_waitcnt lgkmcnt(0)")
    A("s_barrier")
    A("s_branch L_fin")


def xwave():
    A.label("L_xw")
    A.vm = 0
    A.xw = True
    vT, vT2, vT3, vMine, vOther = xT, xT2, xT3, xMine, xOther
    vRow, vC8, vKA, vUA, vB, vG4 = xRow, xC8, xKA, xUA, xB, xG4
    DK = KR_["DK"]
    U0 = 204
    XV, STV, DV, TV, DF = 212, 220, 224, 228, 244
    GV, PK = 16, 40
    vFLG, vFV = 16, 17
    CA, FS = 32, 64

    def sum_partials(regs, part=3):
        prs = [regs[i:i + 2] for i in range(0, len(regs), 2)]
        for n, (va, o) in enumerate(((xPA, 0), (xPA, 11 if OPT['early3'] else 32), (xPA + 1, 0)) if part & 1 else ()):
            for k, pr in enumerate(prs):
                d = GV + 8 * n + 2 * k
                if len(pr) == 2:
                    A(f"ds_read2st64_b32 {v(d,2)}, {v(va)} offset0:{o+pr[0]} offset1:{o+pr[1]}")
                else:
                    A(f"ds_read_b32 {v(d)}, {v(va)} offset:{(o+pr[0])*256}")
        if not part & 2:
            return
        A("s_waitcnt lgkmcnt(0)")
        for n in range(3):
            for k, r in enumerate(regs):
                A(f"v_add_f32 {v(DK+r)}, {v(DK+r)}, {v(GV+8*n+k)}")

    def tb_lo():
        A(f"ds_write2_b32 {v(xTA)}, {v(DK)}, {v(DK+1)} offset0:0 offset1:1")
        A(f"ds_write2_b32 {v(xTA)}, {v(DK+2)}, {v(DK+3)} offset0:2 offset1:3")
        A(f"ds_write2_b32 {v(xTA+1)}, {v(DK+4)}, {v(DK+5)} offset0:0 offset1:1")

    def tb_hi():
        A(f"ds_write2_b32 {v(xTA)}, {v(DK+6)}, {v(DK+7)} offset0:0 offset1:1")
        A(f"ds_write2_b32 {v(xTA+1)}, {v(DK+8)}, {v(DK+9)} offset0:0 offset1:32")
        if OPT["early3"]:
            A(f"s_sub_u32 {s(sT0)}, {s(sTBc)}, 4")
            A(f"v_mov_b32 {v(vT)}, {s(sT0)}")
            A(f"v_mov_b32 {v(vT2)}, 0")
        A("s_mov_b64 exec, 1")
        A(f"ds_write_b32 {v(xTA+1)}, {v(DK+10)} offset:{128*4}")
        if OPT["early3"]:
            A(f"ds_write_b32 {v(vT)}, {v(vT2)}")
        A("s_mov_b64 exec, -1")

    def i1_lo():
        sum_partials([0, 1, 2, 3, 4, 5])
        if not OPT["early3"]:
            tb_lo()

    def i1_hi():
        sum_partials([6, 7, 8, 9, 10])
        if not OPT["early3"]:
            tb_hi()

    def pad_zero():
        A(f"v_min_u32 {v(vT3)}, 29, {v(vLANE)}")
        A(f"v_lshl_add_u32 {v(vT3)}, {v(vT3)}, 4, {s(sUBc)}")
        A(f"ds_write_b128 {v(vT3)}, {v(GV,4)}")

    def gather(ph, part=7):
        for k in (range(17) if ph else (0, 8, 16)):
            if part & (1 if k < 9 else 4):
                A(f"ds_read_b32 {v(GV+k)}, {v(xGA+k)}")
        if not part & 2:
            return
        A("s_waitcnt lgkmcnt(0)")
        src = list(range(GV, GV + 17)) if ph else [GV] * 4 + [GV + 8] * 7 + [GV + 16] * 6
        for cp in range(2):
            for k in range(8):
                A(f"v_cvt_pk_bf16_f32 {v(PK+8*cp+k)}, {v(src[2*k+cp])}, {v(src[2*k+cp+1])}")

    def kr_addr():
        A(f"s_lshl_b32 {s(sT0)}, {s(sPH)}, 11")
        A(f"s_add_u32 {s(sT1)}, {s(sT0)}, {s(sKR)}")
        A(f"v_lshl_add_u32 {v(vT)}, {v(vLANE)}, 5, {s(sT1)}")
        for i in range(4):
            A(f"v_mov_b32 {v(GV+i)}, 0")
        A(f"s_mul_i32 {s(sT0)}, {s(sPH)}, {KR_PITCH}")
        A(f"s_add_u32 {s(sT0)}, {s(sT0)}, {s(sKR)}")
        A(f"v_and_b32 {v(vT2)}, 1, {v(vLANE)}")
        A(f"v_lshl_add_u32 {v(vT2)}, {v(vT2)}, 4, {s(sT0)}")

    def kr_write(cp):
        A(f"ds_write_b128 {v(vT)}, {v(PK+8*cp,4)} offset:{cp*KR_PITCH}")
        A(f"ds_write_b128 {v(vT)}, {v(PK+8*cp+4,4)} offset:{cp*KR_PITCH+16}")
        if cp:
            A(f"ds_write_b128 {v(vT2)}, {v(GV,4)} offset:4096")

    def conv_setup():
        A(f"v_and_b32 {v(vB)}, 15, {v(vLANE)}")
        A(f"v_lshrrev_b32 {v(vG4)}, 4, {v(vLANE)}")
        A(f"v_sub_u32 {v(vT)}, 2031, {v(vB)}")
        A(f"v_and_b32 {v(vT2)}, 1, {v(vT)}")
        A(f"v_mul_u32_u24 {v(vT2)}, {KR_PITCH}, {v(vT2)}")
        A(f"v_lshrrev_b32 {v(vT)}, 1, {v(vT)}")
        A(f"v_lshl_add_u32 {v(vT)}, {v(vT)}, 2, {v(vT2)}")
        A(f"v_lshl_add_u32 {v(vT)}, {v(vG4)}, 4, {v(vT)}")
        A(f"s_lshl_b32 {s(sT0)}, {s(sPH)}, 8")
        A(f"s_sub_u32 {s(sT1)}, {s(sKR)}, {s(sT0)}")
        A(f"v_add_u32 {v(vT)}, {s(sT1)}, {v(vT)}")
        for p in range(4):
            A(f"v_subrev_u32 {v(vKA+p)}, {512*(2*p+1)+192}, {v(vT)}")
        A(f"s_sub_u32 {s(sT1)}, {s(sUBc)}, {s(sT0)}")
        A(f"s_add_u32 {s(sT1)}, {s(sT1)}, {448-192}")
        A(f"v_lshl_add_u32 {v(vUA)}, {v(vB)}, 5, {s(sT1)}")
        A(f"v_lshl_add_u32 {v(vUA)}, {v(vG4)}, 4, {v(vUA)}")

    ids = {}

    def t_loads():
        A(f"v_bfe_u32 {v(vRow)}, v0, 3, 5")
        A(f"v_and_b32 {v(vC8)}, 7, v0")
        A(f"v_mul_u32_u24 {v(xFO)}, 896, {v(vRow)}")
        A(f"v_lshl_add_u32 {v(xFO)}, {v(vC8)}, 4, {v(xFO)}")
        A(f"s_mul_i32 {s(sT1)}, {s(sRB64)}, {64*896}")
        A(f"s_lshl_b32 {s(sT2)}, {s(sCB)}, 7")
        A(f"s_add_u32 {s(sT1)}, {s(sT1)}, {s(sT2)}")
        A(f"v_add_u32 {v(xFO)}, {s(sT1)}, {v(xFO)}")
        A(f"v_add_u32 {v(xFO+1)}, {32*896}, {v(xFO)}")
        A.vmem(f"global_load_dwordx4 {v(XV,4)}, {v(xFO)}, {s(pX,2)}")
        A.vmem(f"global_load_dwordx4 {v(XV+4,4)}, {v(xFO+1)}, {s(pX,2)}")
        A(f"v_lshl_add_u32 {v(vT)}, {v(vC8)}, 4, {s(sT2)}")
        A.vmem(f"global_load_dwordx4 {v(DV,4)}, {v(vT)}, {s(pDS,2)}")
        A(f"v_lshrrev_b32 {v(vT)}, 2, {v(vC8)}")
        A(f"v_lshlrev_b32 {v(xFP)}, 14, {v(vT)}")
        A(f"v_lshrrev_b32 {v(vT)}, 3, {v(vRow)}")
        A(f"v_lshl_add_u32 {v(xFP)}, {v(vT)}, 10, {v(xFP)}")
        A(f"v_and_b32 {v(vT)}, 3, {v(vRow)}")
        A(f"v_lshl_add_u32 {v(xFP)}, {v(vT)}, 8, {v(xFP)}")
        A(f"v_lshrrev_b32 {v(vT)}, 1, {v(vRow)}")
        A(f"v_lshrrev_b32 {v(vT2)}, 2, {v(vRow)}")
        A(f"v_xor_b32 {v(vT)}, {v(vT)}, {v(vT2)}")
        A(f"v_and_b32 {v(vT)}, 1, {v(vT)}")
        A(f"v_lshl_add_u32 {v(xFP)}, {v(vT)}, 7, {v(xFP)}")
        A(f"v_and_b32 {v(vT)}, 3, {v(vC8)}")
        A(f"v_lshl_add_u32 {v(xFP)}, {v(vT)}, 5, {v(xFP)}")
        A(f"v_and_b32 {v(vT)}, 1, {v(vRow)}")
        A(f"v_lshl_add_u32 {v(xFP)}, {v(vT)}, 4, {v(xFP)}")
        A(f"v_add_u32 {v(xFP)}, {WR}, {v(xFP)}")
        A(f"v_xor_b32 {v(xFP+1)}, 16, {v(xFP)}")

    def h1_issue():
        A(f"v_or_b32 {v(vFLG)}, 32, {v(vLANE)}")
        A(f"v_lshlrev_b32 {v(vFLG)}, 2, {v(vFLG)}")
        ids["h1"] = A.vmem(f"global_load_dword {v(vFV)}, {v(vFLG)}, {s(pDBG,2)} sc1")

    def h1_check():
        ok = A.new("h1")
        A.wait_vm(ids["h1"])
        A(f"v_cmp_ne_u32 vcc, 0, {v(vFV)}")
        A("s_nop 0")
        A("s_cmp_eq_u64 vcc, exec")
        A(f"s_cbranch_scc1 {ok}")
        A("s_sleep 12")
        poll_global(vFLG, vFV, pDBG, sleep=20)
        A.label(ok)
        stamp(9)

    def u_loads():
        A(f"s_lshl_b32 {s(sT0)}, {s(sPH)}, 11")
        A(f"s_lshl_b32 {s(sT1)}, {s(sCH)}, 12")
        A(f"s_add_u32 {s(sT1)}, {s(sT1)}, {s(sT0)}")
        A(f"v_lshlrev_b32 {v(vT)}, 4, {v(vLANE)}")
        A.vmem(f"buffer_load_dwordx4 {v(U0,4)}, {v(vT)}, {s(rWS,4)}, {s(sT1)} offen sc1")
        A.vmem(f"buffer_load_dwordx4 {v(U0+4,4)}, {v(vT)}, {s(rWS,4)}, {s(sT1)} offen offset:1024 sc1")
        A(f"s_lshl_b32 {s(sT1)}, {s(sRB64)}, 9")
        A(f"s_add_u32 {s(sT1)}, {s(sT1)}, {OFF_ST}")
        A(f"v_lshlrev_b32 {v(vT)}, 3, {v(vRow)}")
        A.vmem(f"buffer_load_dwordx2 {v(STV,2)}, {v(vT)}, {s(rWS,4)}, {s(sT1)} offen sc1")
        ids["u"] = A.vmem(f"buffer_load_dwordx2 {v(STV+2,2)}, {v(vT)}, {s(rWS,4)}, {s(sT1)} offen offset:256 sc1")
        A(f"s_add_u32 {s(sT1)}, {s(sT0)}, {s(sUBc)}")
        A(f"v_lshl_add_u32 {v(vT2)}, {v(vLANE)}, 4, {s(sT1)}")

    def u_write():
        A.wait_vm(ids["u"])
        A(f"ds_write_b128 {v(vT2)}, {v(U0,4)} offset:480")
        A(f"ds_write_b128 {v(vT2)}, {v(U0+4,4)} offset:{480+1024}")

    def t_compute():
        for d in range(4):
            A(f"v_lshlrev_b32 {v(DF+2*d)}, 16, {v(DV+d)}")
            A(f"v_and_b32 {v(DF+2*d+1)}, 0xffff0000, {v(DV+d)}")
        for i in range(2):
            A(f"v_lshlrev_b32 {v(STV+2*i)}, 16, {v(STV+2*i)}")
            for d in range(4):
                A(f"v_lshlrev_b32 {v(TV+8*i+2*d)}, 16, {v(XV+4*i+d)}")
                A(f"v_and_b32 {v(TV+8*i+2*d+1)}, 0xffff0000, {v(XV+4*i+d)}")
            for k in range(8):
                A(f"v_add_f32 {v(vT3)}, {v(TV+8*i+k)}, {v(STV+2*i)}")
                A(f"v_mul_f32 {v(vT3)}, {v(vT3)}, {v(STV+2*i+1)}")
                A(f"v_fmac_f32 {v(TV+8*i+k)}, {v(DF+k)}, {v(vT3)}")
            A(f"v_mul_f32 {v(STV+2*i+1)}, {v(STV+2*i+1)}, {v(STV+2*i+1)}")

    def fa(st, q): return FS + 64 * st + 4 * q
    def fb_(st, x): return FS + 64 * st + 32 + 4 * x

    def creads(st, kp):
        r = []
        for q in range(8):
            o = 128 * (1 - (q & 1)) + 16 * (3 - kp)
            r.append(f"ds_read_b128 {v(fb_(st,q),4)}, {v(vUA)} offset:{512*q+64*(3-kp)}")
            r.append(f"ds_read2_b32 {v(fa(st,q),2)}, {v(vKA+q//2)} offset0:{o} offset1:{o+1}")
            r.append(f"ds_read2_b32 {v(fa(st,q)+2,2)}, {v(vKA+q//2)} offset0:{o+2} offset1:{o+3}")
        return r

    def warm_tail():
        A(f"s_min_u32 {s(sT0)}, {s(sXW)}, {OPT['nm2']-1}")
        A(f"s_add_u32 {s(sT0)}, {s(sT0)}, {7-OPT['nm2']}")
        A(f"s_and_b32 {s(sT1)}, {s(sJ)}, 3")
        A(f"s_mul_i32 {s(sT1)}, {s(sT1)}, 7")
        A(f"s_add_u32 {s(sT0)}, {s(sT0)}, {s(sT1)}")
        A(f"s_mul_i32 {s(sT0)}, {s(sT0)}, 7")
        A(f"s_add_u32 {s(sT0)}, {s(sT0)}, {s(sCB)}")
        A(f"s_lshl_b32 {s(sT0)}, {s(sT0)}, 13")
        A(f"v_lshl_add_u32 {v(vT3)}, {v(vLANE)}, 7, {s(sT0)}")
        A(f"s_cmp_lt_u32 {s(sXW)}, {OPT['nm2']}")
        A("s_cselect_b64 exec, -1, 1")
        A.vmem(f"global_load_dword v203, {v(vT3)}, {s(pWD,2)}")
        A("s_mov_b64 exec, -1")

    lg = lambda: A("s_waitcnt lgkmcnt(0)")
    pre = {b: [] for b in range(15)}
    post = {b: [] for b in range(15)}
    post[0] = [lg]
    post[1] = [lambda: by_ph(i1_lo, i1_hi)]
    post[2] = [lg]
    post[3] = [lambda: by_ph(lambda: gather(0), lambda: gather(1)), kr_addr]
    pre[4] = [lambda: kr_write(0)]
    pre[5] = [lambda: kr_write(1)]
    post[6] = [conv_setup]
    post[7] = [t_loads]
    if OPT["early3"]:
        e0 = OPT["early3"]
        for b in range(1, 9):
            pre[b], post[b] = [], []
        post[e0] = [lambda: by_ph(i1_lo, i1_hi)]
        pre[e0 + 1] = [lambda: by_ph(tb_lo, tb_hi)]
        post[e0 + 2] = [conv_setup, lg]
        post[e0 + 3] = [lambda: by_ph(lambda: gather(0), lambda: gather(1)), kr_addr]
        pre[e0 + 4] = [lambda: kr_write(0)]
        pre[e0 + 5] = [lambda: kr_write(1)]
        pre[e0 + 6] = [pad_zero]
        post[e0 + 6] = [t_loads]
        assert e0 + 6 < H1_BAR - 1
    LO, HI = [0, 1, 2, 3, 4, 5], [6, 7, 8, 9, 10]
    if OPT["fine"] and OPT["early3"]:
        for b in range(1, 10):
            pre[b], post[b] = [], []
        post[1] = [lambda: by_ph(lambda: sum_partials(LO, 1), lambda: sum_partials(HI, 1))]
        post[2] = [lambda: by_ph(lambda: sum_partials(LO, 2), lambda: sum_partials(HI, 2))]
        pre[3] = [lambda: by_ph(tb_lo, tb_hi)]
        post[3] = [conv_setup, lg]
        post[4] = [lambda: by_ph(lambda: gather(0, 1), lambda: gather(1, 1))]
        post[5] = [lambda: by_ph(lambda: gather(0, 4), lambda: gather(1, 4))]
        post[6] = [lambda: by_ph(lambda: gather(0, 2), lambda: gather(1, 2)), kr_addr]
        pre[7] = [lambda: kr_write(0)]
        pre[8] = [lambda: kr_write(1)]
        pre[9] = [pad_zero]
        post[9] = [t_loads]
    elif OPT["fine"]:
        post[3] = [lambda: by_ph(lambda: gather(0, 1), lambda: gather(1, 1))]
        post[4] = [lambda: by_ph(lambda: gather(0, 4), lambda: gather(1, 4))]
        post[5] = [lambda: by_ph(lambda: gather(0, 2), lambda: gather(1, 2)), kr_addr]
        pre[4], pre[5] = [], []
        pre[6] = [lambda: kr_write(0)]
        pre[7] = [lambda: kr_write(1)]
        post[6], post[7], post[8], post[9] = [], [], [conv_setup], [t_loads]
    post[H1_BAR - 1] += [h1_issue]
    post[H1_BAR] += [h1_check, u_loads]
    pre[max(H1_BAR + 2, OPT['uw'])] += [u_write]
    post[13] += [lg]
    if OPT["nm2"]:
        post[OPT["wat"]] += [warm_tail]
    assert H1_BAR + 2 <= 13
    post[14] += [lambda: [A(r) for r in creads(0, 0)], lambda: A.wait_vm(did[1])]
    if OPT["xp"] & 2:
        pre[13] = []
        post[14] = post[14][1:]
    if OPT["xp"] & 8:
        pre[13] = []
        post[H1_BAR] = [h1_check]
    for b in range(15):
        for f in pre[b]:
            f()
        if OPT["wdh"] == 10 + b:
            A.vmem(f"global_load_dword {v(xPF+5)}, {v(xPF+4)}, {s(pWD,2)}")
        if OPT["early3"]:
            if b == 1:
                dma_w(3); dma_x(2, (0, 1))
            if b == 2:
                dma_x(2, (2, 3)); dma_w(4)
        else:
            if b == 2:
                dma_w(3); dma_w(4); dma_x(2, (0, 1))
            if b == 3:
                dma_x(2, (2, 3))
        if 3 <= b <= 11:
            dma_w(b + 2)
        if 3 <= b <= 10:
            dma_x((b - 3) // 2 + 3, (0, 1) if (b - 3) % 2 == 0 else (2, 3))
        for pp in {11: [0], 12: [1], 13: [2, 3], 14: [4]}.get(b, []):
            if OPT["xp"] & 1:
                did[pp] = A.vm
            else:
                dma_d(pp, vDO)
        for f in post[b]:
            f()
        if 3 <= b < 14:
            need = wid[b]
            if b % 2 == 0:
                need = max(need, xid[b // 2])
            A.wait_vm(need)
        A("s_barrier")
        if b == 0:
            stamp(1)
    stamp(2)
    dma_d(5, vDO)
    dma_d(6, vDO)
    if OPT["b15"]:
        A.wait_vm(did[4])
        A("s_barrier")
        stamp(8)
    for kp in range(4):
        st = kp % 2
        A("s_waitcnt lgkmcnt(0)")
        rs = creads(1 - st, kp + 1) if kp < 3 else []
        for q in range(8):
            for t in range(q, 8):
                cc = "0" if (kp == 0 and q == 0) else v(CA + 4 * t, 4)
                A(f"v_mfma_f32_16x16x32_bf16 {v(CA+4*t,4)}, {v(fa(st,q),4)}, {v(fb_(st,t-q),4)}, {cc}")
                if rs:
                    A(rs.pop(0))
            if OPT["b15"]:
                if kp == 0 and q == 4:
                    A.wait_vm(did[6])
                    lds_set(vMine, F_WD, 2, vT)
            elif kp in (0, 1) and q == 4:
                A.wait_vm(did[4] if kp == 0 else did[6])
                lds_set(vMine, F_WD, kp + 1, vT)
    stamp(3)
    A(f"s_lshl_b32 {s(sT0)}, {s(sPH)}, 12")
    A(f"s_add_u32 {s(sT0)}, {s(sT0)}, {s(sKR)}")
    A(f"v_lshl_add_u32 {v(vT2)}, {v(vLANE)}, 4, {s(sT0)}")
    A(f"s_xor_b32 {s(sT1)}, {s(sPH)}, 1")
    A(f"s_lshl_b32 {s(sT1)}, {s(sT1)}, 12")
    A(f"s_add_u32 {s(sT1)}, {s(sT1)}, {s(sKR)}")
    A(f"v_lshl_add_u32 {v(vT3)}, {v(vLANE)}, 4, {s(sT1)}")
    A("s_setprio 3")

    def ex_lo():
        for t in range(4):
            A(f"ds_write_b128 {v(vT2)}, {v(CA+16+4*t,4)} offset:{EX_OFF+1024*t}")

    def ex_hi():
        for t in range(4):
            A(f"ds_write_b128 {v(vT2)}, {v(CA+4*t,4)} offset:{EX_OFF+1024*t}")
        for r in range(16):
            A(f"v_mov_b32 {v(CA+r)}, {v(CA+16+r)}")
    by_ph(ex_lo, ex_hi)
    lds_set(vMine, F_PAIR, 1, vT)
    lds_wait(vOther, F_PAIR, 1, vT)
    for t in range(4):
        A(f"ds_read_b128 {v(FS+4*t,4)}, {v(vT3)} offset:{EX_OFF+1024*t}")
    A(f"v_and_b32 {v(vT)}, 1, {v(vG4)}")
    A(f"v_lshlrev_b32 {v(vT)}, 9, {v(vT)}")
    A(f"v_lshl_add_u32 {v(vT)}, {v(vB)}, 5, {v(vT)}")
    A(f"v_lshrrev_b32 {v(vT2)}, 1, {v(vG4)}")
    A(f"v_lshl_add_u32 {v(vT)}, {v(vT2)}, 4, {v(vT)}")
    A(f"s_lshl_b32 {s(sT0)}, {s(sCH)}, 12")
    A(f"s_lshl_b32 {s(sT1)}, {s(sPH)}, 11")
    A(f"s_add_u32 {s(sT0)}, {s(sT0)}, {s(sT1)}")
    A(f"s_add_u32 {s(sT0)}, {s(sT0)}, {OFF_Y}")
    A("s_waitcnt lgkmcnt(0)")
    for r in range(16):
        A(f"v_add_f32 {v(CA+r)}, {v(CA+r)}, {v(FS+r)}")
    YP = 100
    for pr in range(2):
        for tt in range(2):
            for d in range(2):
                src = CA + 4 * (2 * pr + tt) + 2 * d
                A(f"v_cvt_pk_bf16_f32 {v(YP+4*pr+2*tt+d)}, {v(src)}, {v(src+1)}")
    A("s_nop 1")
    for pr in range(2):
        A(f"v_permlane16_swap_b32 {v(YP+4*pr)}, {v(YP+4*pr+2)}")
        A(f"v_permlane16_swap_b32 {v(YP+4*pr+1)}, {v(YP+4*pr+3)}")
    if OPT["stat"]:
        t_compute()
        lds_wait(vMine, F_GO, 1, vT2, sleep=1)
    stamp(8)
    for pr in range(0 if OPT["noy"] & 1 else 2):
        A(f"buffer_store_dwordx4 {v(YP+4*pr,4)}, {v(vT)}, {s(rWS,4)}, {s(sT0)} offen offset:{1024*pr} sc1")
    if not OPT["stat"]:
        t_compute()
    A(f"s_lshr_b32 {s(sT0)}, {s(sCH)}, 4")
    A(f"s_lshl_b32 {s(sT0)}, {s(sT0)}, 1")
    A(f"s_add_u32 {s(sT0)}, {s(sT0)}, {s(sPH)}")
    A(f"s_lshl_b32 {s(sT0)}, {s(sT0)}, 7")
    A(f"s_add_u32 {s(sT0)}, {s(sT0)}, {OFF_FL+32768}")
    A(f"s_mov_b32 {s(sT1)}, 1")
    A("s_waitcnt vmcnt(0)")
    A(f"s_atomic_add {s(sT1)}, {s(pWS,2)}, {s(sT0)}")
    stamp(4)
    YV = 64
    A(f"s_lshl_b32 {s(sT2)}, {s(sCB)}, 2")
    A(f"s_add_u32 {s(sT2)}, {s(sT2)}, {s(sXW)}")
    A(f"s_lshl_b32 {s(sT2)}, {s(sT2)}, 1")
    A(f"s_lshr_b32 {s(sT3)}, {s(sRB64)}, 4")
    A(f"s_add_u32 {s(sT2)}, {s(sT2)}, {s(sT3)}")
    A(f"s_lshl_b32 {s(sT2)}, {s(sT2)}, 7")
    A(f"s_add_u32 {s(sT2)}, {s(sT2)}, {OFF_FL+32768}")
    lds_wait(vMine, F_GO, 2, vT2, sleep=2)
    stamp(6)
    poll_scalar(sT2, 16, sT3, 4)
    stamp(7)
    A(f"s_lshl_b32 {s(sT0)}, {s(sCB)}, 2")
    A(f"s_add_u32 {s(sT0)}, {s(sT0)}, {s(sXW)}")
    A(f"s_lshl_b32 {s(sT0)}, {s(sT0)}, 16")
    A(f"s_lshl_b32 {s(sT1)}, {s(sRB64)}, 7")
    A(f"s_add_u32 {s(sT0)}, {s(sT0)}, {s(sT1)}")
    A(f"s_add_u32 {s(sT0)}, {s(sT0)}, {OFF_Y}")
    A(f"s_add_u32 {s(sT1)}, {s(sT0)}, {8*4096}")
    A(f"v_lshrrev_b32 {v(vT)}, 3, {v(vLANE)}")
    A(f"v_lshlrev_b32 {v(vT)}, 12, {v(vT)}")
    A(f"v_lshl_add_u32 {v(vT)}, {v(vC8)}, 4, {v(vT)}")
    if OPT["go2"]:
        lds_wait(vMine, F_GO, 3, vT2, sleep=1)
    if not OPT["noy"] & 2:
        A(f"buffer_load_dwordx4 {v(YV,4)}, {v(vT)}, {s(rWS,4)}, {s(sT0)} offen sc1")
        A(f"buffer_load_dwordx4 {v(YV+4,4)}, {v(vT)}, {s(rWS,4)}, {s(sT1)} offen sc1")
    A(f"s_mul_i32 {s(sT0)}, {s(sXW)}, {YS_SZ}")
    A(f"s_add_u32 {s(sT0)}, {s(sT0)}, {UB}")
    A(f"v_lshl_add_u32 {v(vT)}, {v(vLANE)}, 4, {s(sT0)}")
    A(f"v_lshrrev_b32 {v(vT2)}, 1, {v(vC8)}")
    A(f"v_mul_u32_u24 {v(vT2)}, {YS_SZ}, {v(vT2)}")
    A(f"v_and_b32 {v(vT3)}, 1, {v(vC8)}")
    A(f"v_mul_u32_u24 {v(vT3)}, 1040, {v(vT3)}")
    A(f"v_add_u32 {v(vT2)}, {v(vT2)}, {v(vT3)}")
    A(f"v_lshl_add_u32 {v(vT2)}, {v(vRow)}, 1, {v(vT2)}")
    for k in range(16):
        A(f"v_mov_b32 {v(YV+8+k)}, 0")
    A(f"v_and_b32 {v(vOther)}, 3, {v(vLANE)}")
    A(f"v_lshlrev_b32 {v(vOther)}, 2, {v(vOther)}")
    A("s_waitcnt vmcnt(0)")
    A(f"ds_write_b128 {v(vT)}, {v(YV,4)}")
    A(f"ds_write_b128 {v(vT)}, {v(YV+4,4)} offset:1040")
    lds_set(vMine, F_Y, 1, vT)
    lds_wait(vOther, F_Y, 1, vT, sleep=1, every=True)
    for i in range(2):
        for k in range(8):
            A(f"ds_read_u16_d16_hi {v(YV+8+8*i+k)}, {v(vT2)} offset:{UB+128*k+64*i}")
    A("s_waitcnt lgkmcnt(0)")
    for k in range(16):
        A(f"v_add_f32 {v(TV+k)}, {v(TV+k)}, {v(YV+8+k)}")
    stamp(10)
    A("s_barrier")
    PB = 64

    def preads(i):
        for q in range(4):
            for h in range(2):
                A(f"ds_read_b128 {v(PB+32*i+8*q+4*h,4)}, {v(xFP+h)} offset:{32768*i+4096*q}")
    preads(0)
    if OPT["tail2"]:
        A("s_barrier")
    preads(1)
    for i in range(2):
        P = PB + 32 * i
        A(f"s_waitcnt lgkmcnt({12-8*i})")
        for e in range(0, 8, 2):
            A(f"v_pk_add_f32 {v(P+e,2)}, {v(P+e,2)}, {v(P+8+e,2)}")
        A(f"s_waitcnt lgkmcnt({8-8*i})")
        for e in range(0, 8, 2):
            A(f"v_pk_add_f32 {v(P+16+e,2)}, {v(P+16+e,2)}, {v(P+24+e,2)}")
        for e in range(0, 8, 2):
            A(f"v_pk_add_f32 {v(P+e,2)}, {v(P+e,2)}, {v(P+16+e,2)}")
        for e in range(0, 8, 2):
            A(f"v_pk_fma_f32 {v(P+e,2)}, {v(P+e,2)}, {v(STV+2*i,2)}, {v(TV+8*i+e,2)} op_sel:[0,1,0] op_sel_hi:[1,1,1]")
        for e in range(4):
            A(f"v_cvt_pk_bf16_f32 {v(P+8+e)}, {v(P+2*e)}, {v(P+2*e+1)}")
        A(f"global_store_dwordx4 {v(xFO+i)}, {v(P+8,4)}, {s(pOUT,2)}{['',' sc1',' nt',' sc0 sc1'][OPT['outsc']]}")
    if OPT["diag"]:
        A("s_waitcnt vmcnt(0)")


def main():
    hdr = open("cdna_kernels/" + NAME + ".s.ref").read().split("\n")
    out = [l for l in hdr if l.startswith(";") and "@launch" not in l and "Override" not in l and "grid=ceil" not in l]
    out.append(f"; @launch grid=(256,1,1) block=(512,1,1) lds={LDS_BYTES}")
    out.append('.amdgcn_target "amdgcn-amd-amdhsa--gfx950"')
    out.append(".text")
    out.append(f".globl {NAME}_kernel")
    out.append(".p2align 8")
    out.append(f".type {NAME}_kernel,@function")
    out.append(f"{NAME}_kernel:")
    prologue()
    phase0()
    cwave()
    side()
    xwave()
    final()
    out += A.l
    out.append('.section .rodata,"a"')
    out.append(".p2align 6")
    out.append(f".amdhsa_kernel {NAME}_kernel")
    out.append("  .amdhsa_next_free_vgpr 256")
    out.append("  .amdhsa_next_free_sgpr 102")
    out.append("  .amdhsa_accum_offset 256")
    out.append("  .amdhsa_group_segment_fixed_size 0")
    out.append("  .amdhsa_kernarg_size 112")
    out.append("  .amdhsa_user_sgpr_count 2")
    out.append("  .amdhsa_user_sgpr_kernarg_segment_ptr 1")
    out.append("  .amdhsa_system_sgpr_workgroup_id_x 1")
    out.append(".end_amdhsa_kernel")
    open(sys.argv[1], "w").write("\n".join(out) + "\n")


main()
```

```python
import sys, struct

NAME = "parallel_sum__ssm_conv_s4d__glu_gated_reglu__prompt"
OPT = dict(diag=0, nodma=0, nos=0, rot1=4, rot2=4, sidepf=1, pfe=1, uw=13, w1h=-4, pfh=0, nmain=0, wdh=-1, npre=2, pollat=12, eprio=3, stat=0, go2=0, selfpf=0, sidehp=0, hpsl=2, h1b=11, snake=0, nmid=13, split=0, allrd=1, noy=0, xrot=0, fill2=0, xp=0, early3=0, fine=15, epk=0, wd2e=0, cvp=0, elong=1, pf2=0, nm2=2, wat=14, h1one=1, xp0=0, spos=5, psch=0, rpg=2, wlate=0, xs=0, ib=-1, wpri=0, tail2=0, hrot=0, pbar=1, pnt=1, wsplit=0, qat=12, r2at=5, ssl=2, sidelast=0, b15=0, cint=0, rep=0, mid=0, sld=0, kq=1, prio=0, hd=6, psl=8, goat=-1, outsc=2, dwg=100, dwave=0, dst=5, amp=10, base=5000)
for a in sys.argv[2:]:
    k, val = a.split("=")
    OPT[k] = int(val)

OFF_U = 0x0
OFF_ST = 0x200000
OFF_FL = 0x220000
OFF_Y = 0xC00000
OFF_H = 0x400000
OFF_TS = 0x240000
WS_BYTES = 0x1000000

KA, KA_SZ = 0, 8320
UB, UB_SZ = 33280, 4576
TB, TB_SZ = 42432, 2568
R2 = 47568
FG = 47824
F_PAIR, F_WD, F_GO, F_Y = FG, FG + 16, FG + 32, FG + 48
SX = TB
YS_SZ = UB_SZ // 2
TT, T_PITCH = 0, 272
XR = 49152
WR = 98304
PR = 49152
PR_SZ = 20480
KR_PITCH = 4160
EX_OFF = 8320
LDS_BYTES = 163840
H1_BAR = OPT["h1b"]

LOG2E = 0x3fb8aa3b
NLOG2E = 0xbfb8aa3b
INV2PI = 0x3e22f983


def wd_order():
    order = []
    for g in range(7):
        for c in (g, (g + OPT["rot2"]) % 7):
            if c not in order:
                order.append(c)
    return order


def f2u(x):
    return struct.unpack("<I", struct.pack("<f", x))[0]


def v(n, c=1):
    return f"v{n}" if c == 1 else f"v[{n}:{n+c-1}]"


def s(n, c=1):
    return f"s{n}" if c == 1 else f"s[{n}:{n+c-1}]"


class Asm:
    def __init__(self):
        self.l = []
        self.vm = 0
        self.uid = 0
        self.xw = False

    def __call__(self, t):
        self.l.append("    " + t)

    def label(self, n):
        self.l.append(n + ":")

    def c(self, t):
        self.l.append("    ; " + t)

    def vmem(self, t):
        if OPT["nodma"] and t.endswith(" lds") and self.xw:
            t = "s_nop 0"
        self(t)
        self.vm += 1
        return self.vm

    def wait_vm(self, ident):
        n = self.vm - ident
        assert 0 <= n <= 63, n
        self(f"s_waitcnt vmcnt({n})")

    def new(self, p):
        self.uid += 1
        return f"L_{p}{self.uid}"


A = Asm()

sWG, sWAVE = 2, 3
pX, pLA, pAI, pCR, pCI, pLDT, pDS = 4, 6, 8, 10, 12, 14, 16
pWG, pWU, pWD, pOUT, pDBG, pWS = 20, 22, 24, 26, 28, 30
rX, rWG, rWU, rWD, rWS = 32, 36, 40, 44, 48
sXCD, sJ, sRB, sFB, sRB64, sCB, sCH0 = 52, 53, 54, 55, 56, 57, 58
sT0, sT1, sT2, sT3, sT4, sT5 = 59, 60, 61, 62, 63, 64
sW1, sW2, sW3, sCNT = 65, 66, 67, 68
sGRP = 87
sXR, sR0 = 18, 19
sDK = 72
sTS = 88
vLANE = 1


STAMP_ON = [True]


def stamp(i):
    if OPT.get("lite") and i != 5:
        return
    if OPT["diag"] and (STAMP_ON[0] or i in (1, 5)):
        A(f"{'s_memtime' if OPT['diag']==2 else 's_memrealtime'} {s(sTS,2)}")
        A("s_waitcnt lgkmcnt(0)")
        A(f"s_mov_b32 {s(sTS+2+i)}, {s(sTS)}")


def stamp_flush(n):
    if not OPT["diag"]:
        return
    if OPT["diag"] == 4:
        sk, lp = A.new("dg"), A.new("dl")
        A(f"s_lshl_b32 {s(sT0)}, {s(sWG)}, 3")
        A(f"s_add_u32 {s(sT0)}, {s(sT0)}, {s(sWAVE)}")
        A(f"s_cmp_lg_u32 {s(sT0)}, {OPT['dwg']*8+OPT['dwave']}")
        A(f"s_cbranch_scc1 {sk}")
        A(f"s_sub_u32 {s(sT0)}, {s(sTS+2+OPT['dst'])}, {s(sTS+2)}")
        A(f"s_min_u32 {s(sT0)}, {s(sT0)}, 10000")
        A(f"s_mul_i32 {s(sT0)}, {s(sT0)}, {OPT['amp']}")
        A(f"s_add_u32 {s(sT0)}, {s(sT0)}, {OPT['base']}")
        A.label(lp)
        A(f"s_memrealtime {s(sTS,2)}")
        A("s_waitcnt lgkmcnt(0)")
        A(f"s_sub_u32 {s(sT1)}, {s(sTS)}, {s(sTS+2)}")
        A(f"s_cmp_lt_u32 {s(sT1)}, {s(sT0)}")
        A(f"s_cbranch_scc1 {lp}")
        A.label(sk)
        return
    if OPT["diag"] == 3:
        sk = A.new("dg")
        A(f"s_lshl_b32 {s(sT0)}, {s(sWG)}, 3")
        A(f"s_add_u32 {s(sT0)}, {s(sT0)}, {s(sWAVE)}")
        A(f"s_cmp_lg_u32 {s(sT0)}, {OPT['dwg']*8+OPT['dwave']}")
        A(f"s_cbranch_scc1 {sk}")
        A("v_mov_b32 v2, 0")
        for i in range(12):
            A(f"s_sub_u32 {s(sT0)}, {s(sTS+2+i)}, {s(sTS+2)}")
            A(f"v_mov_b32 v3, {s(sT0)}")
            A(f"global_store_dword v2, v3, {s(pDBG,2)} offset:{4*i}")
            A("s_nop 1")
        A.label(sk)
        return
    A(f"s_lshl_b32 {s(sT0)}, {s(sWG)}, 3")
    A(f"s_add_u32 {s(sT0)}, {s(sT0)}, {s(sWAVE)}")
    A(f"s_lshl_b32 {s(sT0)}, {s(sT0)}, 6")
    A(f"s_add_u32 {s(sT0)}, {s(sT0)}, {OFF_TS}")
    A(f"v_mov_b32 v2, {s(sT0)}")
    for i in range(12):
        A(f"v_mov_b32 v3, {s(sTS+2+i)}")
        A(f"global_store_dword v2, v3, {s(pWS,2)} offset:{4*i}")
        A("s_nop 1")


def srd(r, p, nbytes):
    A(f"s_mov_b32 {s(r)}, {s(p)}")
    A(f"s_and_b32 {s(r+1)}, {s(p+1)}, 0xffff")
    A(f"s_mov_b32 {s(r+2)}, {nbytes}")
    A(f"s_mov_b32 {s(r+3)}, 0x20000")


SPIN_MAX = 1 << 16


def poll_global(vaddr, vtmp, base, first_issued=False, sleep=1):
    lp, done, chk = A.new("pl"), A.new("pd"), A.new("pc")
    A(f"s_mov_b32 {s(sCNT)}, 0")
    if first_issued:
        A(f"s_branch {chk}")
    A.label(lp)
    A(f"global_load_dword {v(vtmp)}, {v(vaddr)}, {s(base,2)} sc1")
    A.label(chk)
    A("s_waitcnt vmcnt(0)")
    A(f"v_cmp_ne_u32 vcc, 0, {v(vtmp)}")
    A(f"s_add_u32 {s(sCNT)}, {s(sCNT)}, 1")
    A("s_cmp_eq_u64 vcc, exec")
    A(f"s_cbranch_scc1 {done}")
    A(f"s_sleep {sleep}")
    A(f"s_cmp_lt_u32 {s(sCNT)}, {SPIN_MAX}")
    A(f"s_cbranch_scc1 {lp}")
    A.label(done)


def q_read(sval, soff):
    if OPT["sld"]:
        A(f"s_load_dword {s(sval)}, {s(pWS,2)}, {s(soff)} glc")
    else:
        A(f"s_mov_b32 {s(sval)}, 0")
        A(f"s_atomic_add {s(sval)}, {s(pWS,2)}, {s(soff)} glc")


def poll_scalar(soff, want, sval, sleep, first_issued=False):
    lp, done, chk = A.new("ql"), A.new("qd"), A.new("qc")
    A(f"s_mov_b32 {s(sCNT)}, 0")
    if first_issued:
        A(f"s_branch {chk}")
    A.label(lp)
    q_read(sval, soff)
    A.label(chk)
    A("s_waitcnt lgkmcnt(0)")
    A(f"s_cmp_ge_u32 {s(sval)}, {want}")
    A(f"s_cbranch_scc1 {done}")
    A(f"s_add_u32 {s(sCNT)}, {s(sCNT)}, 1")
    A(f"s_sleep {sleep}")
    A(f"s_cmp_lt_u32 {s(sCNT)}, {SPIN_MAX}")
    A(f"s_cbranch_scc1 {lp}")
    A.label(done)


def lds_wait(vaddr, off, val, vt, sleep=0, every=False):
    lp, done = A.new("sl"), A.new("sd")
    A(f"s_mov_b32 {s(sCNT)}, 0")
    A.label(lp)
    A(f"ds_read_b32 {v(vt)}, {v(vaddr)} offset:{off}")
    A(f"s_add_u32 {s(sCNT)}, {s(sCNT)}, 1")
    A("s_waitcnt lgkmcnt(0)")
    if every:
        A(f"v_cmp_gt_u32 vcc, {val}, {v(vt)}")
        A(f"s_cbranch_vccz {done}")
    else:
        A(f"v_cmp_le_u32 vcc, {val}, {v(vt)}")
        A(f"s_cbranch_vccnz {done}")
    if sleep:
        A(f"s_sleep {sleep}")
    A(f"s_cmp_lt_u32 {s(sCNT)}, {SPIN_MAX*16}")
    A(f"s_cbranch_scc1 {lp}")
    A.label(done)


def lds_set(vaddr, off, val, vt):
    A(f"v_mov_b32 {v(vt)}, {val}")
    A(f"ds_write_b32 {v(vaddr)}, {v(vt)} offset:{off}")


def prologue():
    A(f"s_cmp_ge_u32 {s(sWG)}, 256")
    A("s_cbranch_scc1 L_end")
    A(f"s_load_dwordx16 {s(4,16)}, s[0:1], 0")
    A(f"s_load_dwordx8 {s(20,8)}, s[0:1], 64")
    A(f"s_load_dwordx4 {s(28,4)}, s[0:1], 96")
    if OPT["diag"]:
        A(f"{'s_memtime' if OPT['diag']==2 else 's_memrealtime'} {s(sTS,2)}")
    A("v_lshrrev_b32 v2, 6, v0")
    A(f"v_and_b32 {v(vLANE)}, 63, v0")
    A(f"v_readfirstlane_b32 {s(sWAVE)}, v2")
    A(f"s_and_b32 {s(sXCD)}, {s(sWG)}, 7")
    A(f"s_lshr_b32 {s(sJ)}, {s(sWG)}, 3")
    A(f"s_getpc_b64 {s(sT1,2)}")
    A.label("L_pc")
    A("v_and_b32 v2, 0x1e0, v0")
    A(f"v_add_u32 v2, {s(sJ)}, v2")
    A("v_lshlrev_b32 v2, 7, v2")
    A("v_min_u32 v2, L_end-L_pc, v2")
    A(f"global_load_dword v95, v2, {s(sT1,2)}")
    A(f"s_and_b32 {s(sT0)}, {s(sXCD)}, 3")
    A(f"s_lshr_b32 {s(sT1)}, {s(sXCD)}, 2")
    A(f"s_cmp_lt_u32 {s(sJ)}, 4")
    A("s_cbranch_scc1 L_side")
    A(f"s_sub_u32 {s(sJ)}, {s(sJ)}, 4")
    A(f"s_and_b32 {s(sT2)}, {s(sJ)}, 3")
    A(f"s_lshr_b32 {s(sCB)}, {s(sJ)}, 2")
    A(f"s_lshl_b32 {s(sRB)}, {s(sT0)}, 2")
    A(f"s_add_u32 {s(sRB)}, {s(sRB)}, {s(sT2)}")
    A(f"s_mul_i32 {s(sFB)}, {s(sT1)}, 7")
    A(f"s_add_u32 {s(sFB)}, {s(sFB)}, {s(sCB)}")
    A(f"s_lshl_b32 {s(sRB64)}, {s(sT0)}, 1")
    A(f"s_add_u32 {s(sRB64)}, {s(sRB64)}, {s(sT1)}")
    A(f"s_lshl_b32 {s(sRB64)}, {s(sRB64)}, 2")
    A(f"s_add_u32 {s(sRB64)}, {s(sRB64)}, {s(sT2)}")
    A(f"s_add_u32 {s(sGRP)}, {s(sT2)}, {s(sCB)}")
    A(f"s_and_b32 {s(sGRP)}, {s(sGRP)}, 1")


def kernarg_ready():
    A("s_waitcnt lgkmcnt(0)")
    if OPT["diag"]:
        for i in range(12):
            A(f"s_mov_b32 {s(sTS+2+i)}, {s(sTS)}")
        stamp(11)


def side():
    A.label("L_side")
    A.vm = 0
    XB, F, SA = 8, 40, 100
    vR, vQ, vOFF, vT, vT2, vRI = 2, 3, 4, 5, 6, 36
    vM = 38
    sRG, sR64 = sRB, sRB64
    A(f"s_lshl_b32 {s(sR64)}, {s(sT0)}, 1")
    A(f"s_add_u32 {s(sR64)}, {s(sR64)}, {s(sT1)}")
    A(f"s_lshl_b32 {s(sR64)}, {s(sR64)}, 2")
    A(f"s_add_u32 {s(sR64)}, {s(sR64)}, {s(sJ)}")
    A(f"s_lshl_b32 {s(sRG)}, {s(sR64)}, 3")
    A(f"s_add_u32 {s(sRG)}, {s(sRG)}, {s(sWAVE)}")
    A(f"v_lshrrev_b32 {v(vR)}, 3, {v(vLANE)}")
    A(f"v_and_b32 {v(vQ)}, 7, {v(vLANE)}")
    A(f"v_mul_u32_u24 {v(vOFF)}, 896, {v(vR)}")
    A(f"v_lshl_add_u32 {v(vOFF)}, {v(vQ)}, 4, {v(vOFF)}")
    A(f"s_mul_i32 {s(sT2)}, {s(sRG)}, {8*896}")
    A(f"v_add_u32 {v(vOFF)}, {s(sT2)}, {v(vOFF)}")
    kernarg_ready()
    xl = []
    for i in range(7):
        xl.append(A.vmem(f"global_load_dwordx4 {v(XB+4*i,4)}, {v(vOFF)}, {s(pX,2)} offset:{128*i}"))
    srd(rWS, pWS, WS_BYTES)
    vPF = 110
    A(f"s_mul_i32 {s(sT3)}, {s(sJ)}, {224*896}")
    A(f"s_mul_i32 {s(sT4)}, {s(sT1)}, {896*896}")
    A(f"v_min_u32 {v(vPF+1)}, 447, v0")
    A(f"v_lshl_add_u32 {v(vPF+2)}, {v(vPF+1)}, 7, {s(sT3)}")
    A(f"v_add_u32 {v(vPF)}, {s(sT4)}, {v(vPF+2)}")
    A(f"s_sub_u32 {s(sT4)}, {896*896-1568*128}, {s(sT4)}")
    A(f"v_cmp_gt_u32 vcc, {1568-3*448}, {v(vPF+1)}")
    A(f"v_add_u32 {v(vPF+1)}, {s(sT4)}, {v(vPF+2)}")
    A("s_nop 0")
    A(f"v_cndmask_b32 {v(vPF+2)}, {v(vPF+1)}, {v(vPF)}, vcc")

    if OPT["kq"]:
        A(f"s_mul_i32 {s(sT3)}, {s(sJ)}, {448*896}")
        A(f"v_min_u32 {v(vPF)}, 447, v0")
        A(f"v_lshl_add_u32 {v(vPF)}, {v(vPF)}, 7, {s(sT3)}")

    def pf(ns):
        for n in ns:
            if OPT["hrot"]:
                n = [0, 4, 3, 1, 5, 2, 6][n]
            A(f"v_add_u32 {v(vPF+3)}, {n*448*128}, {v(vPF + (0 if (n < 3 or OPT['kq']) else 2 if n == 3 else 1))}")
            A.vmem(f"global_load_dword {v(vPF+4+n)}, {v(vPF+3)}, {s(pWD,2)}")
    C = SA
    A(f"s_mov_b32 {s(sT3)}, 0x3f803f80")
    A(f"v_mov_b32 {v(C)}, 0")
    A(f"v_mov_b32 {v(C+1)}, 0")
    for i in range(7):
        A.wait_vm(xl[i])
        if i == 6:
            stamp(1)
            if OPT["sidepf"]:
                pf(range(OPT["pfe"]))
        for d in range(4):
            k = 4 * i + d
            A(f"v_dot2c_f32_bf16 {v(C+k%2)}, {s(sT3)}, {v(XB+k)}")
            A(f"v_lshlrev_b32 {v(F+2*k)}, 16, {v(XB+k)}")
            A(f"v_and_b32 {v(F+2*k+1)}, 0xffff0000, {v(XB+k)}")

    def reduce8():
        for m in ("quad_perm:[1,0,3,2]", "quad_perm:[2,3,0,1]", "row_half_mirror"):
            A("s_nop 1")
            A(f"v_add_f32_dpp {v(C)}, {v(C)}, {v(C)} {m} row_mask:0xf bank_mask:0xf")
    A("s_nop 2")
    A(f"v_add_f32 {v(C)}, {v(C)}, {v(C+1)}")
    reduce8()
    A(f"v_mul_f32 {v(vM)}, {f2u(-1.0/448):#x}, {v(C)}")
    A(f"v_mov_b32 {v(vM+1)}, {v(vM)}")
    for k in range(28):
        A(f"v_pk_add_f32 {v(F+2*k,2)}, {v(F+2*k,2)}, {v(vM,2)}")
    for k in range(28):
        a = C + 2 * (k % 2)
        if k < 2:
            A(f"v_pk_mul_f32 {v(a,2)}, {v(F+2*k,2)}, {v(F+2*k,2)}")
        else:
            A(f"v_pk_fma_f32 {v(a,2)}, {v(F+2*k,2)}, {v(F+2*k,2)}, {v(a,2)}")
    A(f"v_pk_add_f32 {v(C,2)}, {v(C,2)}, {v(C+2,2)}")
    A("s_nop 0")
    A(f"v_add_f32 {v(C)}, {v(C)}, {v(C+1)}")
    reduce8()
    A(f"v_mul_f32 {v(C)}, {f2u(1.0/448):#x}, {v(C)}")
    A(f"v_cvt_pk_bf16_f32 {v(vRI)}, {v(vM)}, {v(vM)}")
    A(f"v_cvt_pk_bf16_f32 {v(C)}, {v(C)}, {v(C)}")
    A(f"v_lshlrev_b32 {v(C)}, 16, {v(C)}")
    A(f"v_add_f32 {v(C)}, {f2u(1e-5):#x}, {v(C)}")
    A(f"v_cvt_pk_bf16_f32 {v(C)}, {v(C)}, {v(C)}")
    A(f"v_lshlrev_b32 {v(C)}, 16, {v(C)}")
    A(f"v_sqrt_f32 {v(C)}, {v(C)}")
    A(f"v_lshlrev_b32 {v(C+2)}, 16, {v(vRI)}")
    A(f"v_cvt_pk_bf16_f32 {v(C)}, {v(C)}, {v(C)}")
    A(f"v_lshlrev_b32 {v(C)}, 16, {v(C)}")
    A(f"v_rcp_f32 {v(vRI+1)}, {v(C)}")
    A(f"v_sub_f32 {v(C+2)}, {v(C+2)}, {v(vM)}")
    A(f"v_mul_f32 {v(C+2)}, {v(C+2)}, {v(vRI+1)}")
    A(f"v_mov_b32 {v(C+3)}, {v(C+2)}")
    A(f"v_mov_b32 {v(C)}, {v(vRI+1)}")
    A(f"v_mov_b32 {v(C+1)}, {v(vRI+1)}")
    A(f"v_lshlrev_b32 {v(vT2)}, 3, {v(vR)}")
    A(f"s_lshl_b32 {s(sT3)}, {s(sRG)}, 6")
    A(f"s_add_u32 {s(sT3)}, {s(sT3)}, {OFF_ST}")
    A(f"s_mov_b32 exec_lo, 0x01010101")
    A(f"s_mov_b32 exec_hi, 0x01010101")
    A.vmem(f"buffer_store_dwordx2 {v(vRI,2)}, {v(vT2)}, {s(rWS,4)}, {s(sT3)} offen sc1")
    A("s_mov_b64 exec, -1")
    A(f"v_mov_b32 {v(vT)}, 0")
    A(f"v_lshlrev_b32 {v(vT2)}, 2, v0")
    A(f"s_lshl_b32 {s(sT3)}, {s(sWG)}, 11")
    A(f"s_add_u32 {s(sT3)}, {s(sT3)}, {OFF_FL}")
    A.vmem(f"buffer_store_dword {v(vT)}, {v(vT2)}, {s(rWS,4)}, {s(sT3)} offen sc1")
    A(f"s_mul_i32 {s(sT3)}, {s(sWAVE)}, 7680")
    A(f"v_mul_u32_u24 {v(vT2)}, 960, {v(vR)}")
    A(f"v_lshl_add_u32 {v(vT2)}, {v(vQ)}, 4, {v(vT2)}")
    A(f"v_add_u32 {v(vT2)}, {s(sT3)}, {v(vT2)}")
    for k in range(28):
        A(f"v_pk_fma_f32 {v(F+2*k,2)}, {v(F+2*k,2)}, {v(C,2)}, {v(C+2,2)}")
    for i in range(7):
        for d in range(4):
            k = 4 * i + d
            A(f"v_cvt_pk_bf16_f32 {v(XB+k)}, {v(F+2*k)}, {v(F+2*k+1)}")
        A(f"ds_write_b128 {v(vT2)}, {v(XB+4*i,4)} offset:{128*i}")
    A(f"v_bfe_u32 {v(vT2)}, {v(vLANE)}, 2, 2")
    A(f"v_mul_u32_u24 {v(vT2)}, 960, {v(vT2)}")
    A(f"v_lshrrev_b32 {v(vOFF)}, 4, {v(vLANE)}")
    A(f"v_lshl_add_u32 {v(vT2)}, {v(vOFF)}, 5, {v(vT2)}")
    A(f"v_and_b32 {v(vOFF)}, 3, {v(vLANE)}")
    A(f"v_lshl_add_u32 {v(vT2)}, {v(vOFF)}, 3, {v(vT2)}")
    A(f"v_add_u32 {v(vT2)}, {s(sT3)}, {v(vT2)}")
    for i in range(7):
        A(f"ds_read_b64_tr_b16 {v(F+4*i,2)}, {v(vT2)} offset:{128*i}")
        A(f"ds_read_b64_tr_b16 {v(F+4*i+2,2)}, {v(vT2)} offset:{128*i+3840}")
    L2B = 65536
    A(f"s_lshl_b32 {s(sT3)}, {s(sWAVE)}, 4")
    A(f"s_add_u32 {s(sT3)}, {s(sT3)}, {L2B}")
    A(f"v_mul_u32_u24 {v(vT2)}, 144, {v(vLANE)}")
    A(f"v_add_u32 {v(vT2)}, {s(sT3)}, {v(vT2)}")
    for i in range(7):
        A(f"s_waitcnt lgkmcnt({min(15, 12-2*i+i)})")
        A(f"ds_write_b128 {v(vT2)}, {v(F+4*i,4)} offset:{64*144*i}")
    A(f"s_mul_i32 {s(sT3)}, {s(sWAVE)}, {56*144}")
    A(f"s_add_u32 {s(sT3)}, {s(sT3)}, {L2B}")
    A(f"v_mul_u32_u24 {v(vT2)}, 144, {v(vR)}")
    A(f"v_lshl_add_u32 {v(vT2)}, {v(vQ)}, 4, {v(vT2)}")
    A(f"v_add_u32 {v(vT2)}, {s(sT3)}, {v(vT2)}")
    A(f"v_lshlrev_b32 {v(vOFF)}, 12, {v(vR)}")
    A(f"v_lshl_add_u32 {v(vOFF)}, {v(vQ)}, 4, {v(vOFF)}")
    A(f"s_mul_i32 {s(sT3)}, {s(sWAVE)}, {56*4096}")
    A(f"s_lshl_b32 {s(sT4)}, {s(sR64)}, 7")
    A(f"s_add_u32 {s(sT3)}, {s(sT3)}, {s(sT4)}")
    A("s_waitcnt lgkmcnt(0)")
    A("s_barrier")
    for i in range(7):
        A(f"ds_read_b128 {v(XB+4*i,4)}, {v(vT2)} offset:{8*144*i}")
    for i in range(7):
        A(f"s_waitcnt lgkmcnt({6-i})")
        us = A.vmem(f"buffer_store_dwordx4 {v(XB+4*i,4)}, {v(vOFF)}, {s(rWS,4)}, {s(sT3)} offen sc1")
        if i < 6:
            A(f"s_add_u32 {s(sT3)}, {s(sT3)}, {8*4096}")
    stamp(2)
    n2 = OPT["pfe"] + OPT["pf2"]
    pf(range(OPT["pfe"], n2))
    A.wait_vm(us)
    A("s_barrier")
    stamp(3)
    skip = A.new("nf")
    A(f"s_cmp_lg_u32 {s(sWAVE)}, 0")
    A(f"s_cbranch_scc1 {skip}")
    A(f"s_lshl_b32 {s(sT3)}, {s(sWG)}, 2")
    if OPT["pf2"]:
        A(f"s_add_u32 {s(sT3)}, {s(sT3)}, 128")
        A(f"s_mov_b32 {s(sT4)}, 1")
        A(f"s_atomic_add {s(sT4)}, {s(pDBG,2)}, {s(sT3)}")
    else:
        A(f"v_mov_b32 {v(vT2)}, {s(sT3)}")
        A(f"v_mov_b32 {v(vT)}, 1")
        A("s_mov_b64 exec, 1")
        A(f"global_store_dword {v(vT2)}, {v(vT)}, {s(pDBG,2)} offset:128 sc1")
        A("s_mov_b64 exec, -1")
    A.label(skip)
    if OPT["sidepf"]:
        pf(range(n2, 7 - OPT['nm2']))
        A("s_waitcnt vmcnt(0)")
        stamp(4)
    stamp_flush(4)
    A("s_endpgm")


def final():
    A.label("L_fin")
    stamp(5)
    stamp_flush(6)
    A.label("L_end")
    A("s_endpgm")


def kgen_slot(R, hook):
    e = A
    la, ai, cr, ci, dt, dt2 = [R["P"] + k for k in range(6)]
    t = R["tmp"]
    z = t
    E = {1: t + 2, 8: t + 4, 256: t + 6}
    q = [t + 8, t + 10]
    Ak = [t + 12 + 2 * k for k in range(8)]
    PK = R["PK"]
    AF, BF, DK, wa, ra = R["AF"], R["BF"], R["DK"], R["wa"], R["ra"]
    q0 = q[0]
    e(f"v_mul_f32 {v(q0)}, {LOG2E:#x}, {v(la)}")
    e(f"v_exp_f32 {v(q0)}, {v(q0)}")
    e(f"v_mul_f32 {v(z+1)}, {v(ai)}, {v(dt)}")
    e(f"v_cvt_pk_bf16_f32 {v(q0)}, {v(q0)}, {v(q0)}")
    e(f"v_mul_f32 {v(z+1)}, {INV2PI:#x}, {v(z+1)}")
    e(f"v_lshlrev_b32 {v(q0)}, 16, {v(q0)}")
    e(f"v_mul_f32 {v(q0)}, {v(q0)}, {v(dt)}")
    e(f"v_mul_f32 {v(z)}, {NLOG2E:#x}, {v(q0)}")
    tmp = {1: Ak[1], 8: Ak[2], 256: Ak[3]}
    for p in (1, 8, 256):
        a = z if p == 1 else tmp[p]
        if p > 1:
            e(f"v_mul_f32 {v(a)}, {f2u(float(p)):#x}, {v(z)}")
            e(f"v_mul_f32 {v(a+1)}, {f2u(float(p)):#x}, {v(z+1)}")
        e(f"v_fract_f32 {v(tmp[p]+1)}, {v(a+1)}")
        e(f"v_exp_f32 {v(tmp[p])}, {v(a)}")
        e(f"v_cos_f32 {v(E[p])}, {v(tmp[p]+1)}")
        e(f"v_sin_f32 {v(E[p]+1)}, {v(tmp[p]+1)}")
    e(f"v_pk_mul_f32 {v(Ak[0],2)}, {v(cr,2)}, {v(dt,2)} op_sel:[0,1] op_sel_hi:[1,1]")
    for p in (1, 8, 256):
        e(f"v_pk_mul_f32 {v(E[p],2)}, {v(E[p],2)}, {v(tmp[p],2)} op_sel_hi:[1,0]" + (" neg_hi:[1,0]" if p == 8 else ""))
    st = [0]
    if OPT.get("p0"):
        stamp(2)

    def pack(dw, a, b):
        e(f"v_cvt_pk_bf16_f32 {v(PK+8*st[0]+dw)}, {v(a)}, {v(b)}")
        e(f"v_cvt_pk_bf16_f32 {v(PK+8*st[0]+4+dw)}, {v(a+1)}, {v(b+1)}")

    def flush(slot):
        e(f"ds_write_b128 {v(wa+slot)}, {v(PK+8*st[0],4)}")
        e(f"ds_write_b128 {v(wa+slot)}, {v(PK+8*st[0]+4,4)} offset:4096")
        st[0] ^= 1

    def cmul(*ops):
        for n, (d, a, b) in enumerate(ops):
            e(f"v_pk_mul_f32 {v(q[n],2)}, {v(a,2)}, {v(b,2)} op_sel:[1,1] op_sel_hi:[1,0]")
        for n, (d, a, b) in enumerate(ops):
            e(f"v_pk_fma_f32 {v(d,2)}, {v(a,2)}, {v(b,2)}, {v(q[n],2)} op_sel:[0,0,0] op_sel_hi:[0,1,1] neg_lo:[0,0,1]")

    def frags(dst):
        for i in range(8):
            for h in range(2):
                e(f"ds_read_b64_tr_b16 {v(dst+4*i+2*h,2)}, {v(ra+h)} offset:{1024*i}")
    E2 = z
    cmul((Ak[1], Ak[0], E[1]), (E2, E[1], E[1]))
    pack(0, Ak[0], Ak[1])
    for k in (2, 4, 6):
        cmul((Ak[k], Ak[k - 2], E2), (Ak[k + 1], Ak[k - 1], E2))
        pack(k // 2, Ak[k], Ak[k + 1])
    flush(0)
    G = E[256]
    cmul((Ak[0], Ak[0], G), (Ak[2], Ak[2], G)); pack(0, Ak[0], Ak[2])
    cmul((Ak[4], Ak[4], G), (Ak[6], Ak[6], G)); pack(2, Ak[4], Ak[6])
    cmul((Ak[1], Ak[0], G), (Ak[4], Ak[4], G)); pack(1, Ak[1], Ak[4])
    cmul((Ak[0], Ak[1], G), (Ak[4], Ak[4], G)); pack(3, Ak[0], Ak[4])
    flush(1)
    G2, E16 = Ak[2], E[1]
    cmul((G2, G, G), (E16, E[8], E[8]))
    cmul((Ak[1], Ak[1], G2), (Ak[0], Ak[0], G2)); pack(0, Ak[1], Ak[0])
    cmul((Ak[1], Ak[1], G2), (Ak[0], Ak[0], G2)); pack(2, Ak[1], Ak[0])
    X, Y = Ak[3], Ak[5]
    cmul((Ak[1], Ak[1], G2), (Y, E[8], E16)); pack(1, Ak[1], Ak[1])
    flush(2)
    if OPT.get("p0"):
        stamp(3)
    frags(AF)
    hook(0)
    if OPT.get("p0"):
        stamp(4)
    e(f"v_cvt_pk_bf16_f32 {v(PK+8*st[0])}, 1.0, {v(E[8])}")
    e(f"v_cvt_pk_bf16_f32 {v(PK+8*st[0]+4)}, 0, {v(E[8]+1)}")
    pack(1, E16, Y)
    px = E16
    for i in range(2, 16):
        cmul((X, px, E16), (Y, Y, E16))
        px = X
        pack(i % 4, X, Y)
        if i % 4 == 3:
            flush(i // 4)
    if OPT.get("p0"):
        stamp(9)
    frags(BF)
    hook(1)
    if OPT.get("p0"):
        stamp(10)
    for i in range(8):
        e(f"s_waitcnt lgkmcnt({14-2*i})")
        e(f"v_mfma_f32_32x32x16_bf16 {v(DK,16)}, {v(AF+4*i,4)}, {v(BF+4*i,4)}, {v(DK,16) if i else 0}")


WD_SLOT = [XR + 16384, WR + 2 * 16384, WR + 3 * 16384, XR + 2 * 16384, WR, WR + 16384, XR]
vWO, vXO, vDO = 200, 201, 202
sWO, sXO, sWoff, sWoff1, sXoff, sDoff, sDbase, sW4K = 69, 70, 71, 72, 73, 74, 75, 76
sCH, sCI, sKB = 82, 83, 84
KR_ = dict(P=128, tmp=134, PK=48, wa=162, ra=166, AF=16, BF=168, DK=104)
wid, xid, did = {}, {}, {}


def dma_w(c):
    for i in range(2):
        for mat in range(2):
            A(f"s_add_u32 m0, {s(sWO)}, {WR+(c%4)*16384+mat*8192+i*1024}")
            last = (i == 1 and mat == 1)
            if i == 1 and mat == 0:
                A(f"s_add_u32 {s(sWoff)}, {s(sWoff)}, {32*3584}")
            elif last:
                A(f"s_cmp_eq_u32 {s(sWoff)}, {448*3584}")
            else:
                A("s_nop 0")
            wid[c] = A.vmem(f"buffer_load_dwordx4 {v(vWO)}, {s(rWU if mat else rWG,4)}, {s(sWoff1 if i else sWoff)} offen lds")
            if last:
                A(f"s_cselect_b32 {s(sWoff)}, 0, {s(sWoff)}")
                A(f"s_add_u32 {s(sWoff1)}, {s(sWoff)}, {4*3584}")


def dma_x(xc, iis):
    for ii in iis:
        A(f"s_add_u32 m0, {s(sXO)}, {XR+(xc%3)*16384+ii*4096}")
        A(f"s_add_u32 {s(sT0)}, {s(sXoff)}, {ii*32*896}")
        xid[xc] = A.vmem(f"buffer_load_dwordx4 {v(vXO)}, {s(rX,4)}, {s(sT0)} offen lds")
        if ii == 3:
            A(f"s_add_u32 {s(sXoff)}, {s(sXoff)}, 128")
            A(f"s_cmp_eq_u32 {s(sXoff)}, 896")
            A(f"s_cselect_b32 {s(sXoff)}, 0, {s(sXoff)}")


def dma_d(pp, vd):
    for i in range(4):
        A(f"s_add_u32 m0, {s(sW4K)}, {WD_SLOT[pp%7]+i*1024}")
        A(f"s_add_u32 {s(sDoff)}, {s(sDoff)}, {8*896}")
        did[pp] = A.vmem(f"buffer_load_dwordx4 {v(vd)}, {s(rWD,4)}, {s(sDoff)} offen lds")


def wd_setup(vd, vt, vt2, first_piece):
    A(f"v_lshrrev_b32 {v(vt)}, 3, {v(vLANE)}")
    A(f"v_mul_u32_u24 {v(vd)}, 896, {v(vt)}")
    A(f"v_lshrrev_b32 {v(vt)}, 2, {v(vLANE)}")
    A(f"v_lshrrev_b32 {v(vt2)}, 4, {v(vLANE)}")
    A(f"v_xor_b32 {v(vt)}, {v(vt)}, {v(vt2)}")
    A(f"v_and_b32 {v(vt)}, 1, {v(vt)}")
    A(f"v_lshl_add_u32 {v(vd)}, {v(vt)}, 6, {v(vd)}")
    A(f"v_and_b32 {v(vt)}, 3, {v(vLANE)}")
    A(f"v_lshl_add_u32 {v(vd)}, {v(vt)}, 4, {v(vd)}")
    A(f"s_and_b32 {s(sW4K)}, {s(sWAVE)}, 3")
    A(f"s_lshl_b32 {s(sT1)}, {s(sCB)}, 7")
    if OPT["kq"]:
        A(f"s_mul_i32 {s(sDoff)}, {s(sW4K)}, {448*896}")
        A(f"s_add_u32 {s(sDoff)}, {s(sDoff)}, {s(sT1)}")
        if OPT["hrot"]:
            A(f"s_xor_b32 {s(sT1)}, {s(sGRP)}, {1 if first_piece else 0}")
            A(f"s_mul_i32 {s(sT1)}, {s(sT1)}, {224*896}")
            A(f"s_add_u32 {s(sDoff)}, {s(sDoff)}, {s(sT1)}")
        elif first_piece:
            A(f"s_add_u32 {s(sDoff)}, {s(sDoff)}, {first_piece*32*896}")
    else:
        A(f"s_mul_i32 {s(sDoff)}, {s(sW4K)}, {224*896}")
        A(f"s_add_u32 {s(sDoff)}, {s(sDoff)}, {s(sT1)}")
        A(f"s_lshr_b32 {s(sT1)}, {s(sXCD)}, 2")
        if first_piece:
            A(f"s_xor_b32 {s(sT1)}, {s(sT1)}, 1")
        A(f"s_mul_i32 {s(sT1)}, {s(sT1)}, {896*896}")
        A(f"s_add_u32 {s(sDoff)}, {s(sDoff)}, {s(sT1)}")
    A(f"s_sub_u32 {s(sDoff)}, {s(sDoff)}, {8*896}")
    A(f"s_lshl_b32 {s(sW4K)}, {s(sW4K)}, 12")
    srd(rWD, pWD, 448 * 1792 * 2)


cXA, cWA, cL16, cT, cT2, cFL, cD, cZ, cDB = 2, 6, 8, 9, 10, 11, 12, 13, 14
cSM, cSEL, cSAC = 64, 88, 96
sRH, sFH = sW1, sW2
xRow, xC8, xT, xT2, xT3, xMine, xOther, xB, xKA, xUA, xG4 = 2, 3, 4, 5, 6, 7, 8, 9, 10, 14, 15
xGA, xPA, xTA = 64, 82, 84
xPF, sPB = 86, 80
xFP, xFO = 252, 254
sXW, sPH, sUBc, sTBc, sKR = sW1, sW2, sW3, 77, 78


def by_ph(f0, f1):
    hi, join = A.new("ph"), A.new("pj")
    A(f"s_cmp_eq_u32 {s(sPH)}, 1")
    A(f"s_cbranch_scc1 {hi}")
    f0()
    A(f"s_branch {join}")
    A.label(hi)
    f1()
    A.label(join)


def c_setup():
    vT, vT2, vFL, vL16 = cT, cT2, cFL, cL16
    A(f"s_and_b32 {s(sRH)}, {s(sWAVE)}, 1")
    A(f"s_lshr_b32 {s(sFH)}, {s(sWAVE)}, 1")
    A(f"v_and_b32 {v(vT)}, 31, {v(vLANE)}")
    A(f"s_lshl_b32 {s(sT0)}, {s(sRH)}, 13")
    A(f"s_add_u32 {s(sT0)}, {s(sT0)}, {XR}")
    A(f"v_lshl_add_u32 {v(vT)}, {v(vT)}, 7, {s(sT0)}")
    A(f"v_bfe_u32 {v(vT2)}, {v(vLANE)}, 1, 3")
    A(f"v_lshrrev_b32 {v(vFL)}, 5, {v(vLANE)}")
    A(f"v_xor_b32 {v(vT2)}, {v(vT2)}, {v(vFL)}")
    for k in range(4):
        A(f"v_xor_b32 {v(cXA+k)}, {2*k}, {v(vT2)}")
        A(f"v_lshl_add_u32 {v(cXA+k)}, {v(cXA+k)}, 4, {v(vT)}")
    wd_setup(cD, vT, vT2, 7)
    A(f"v_bfe_u32 {v(vL16)}, {v(vLANE)}, 4, 1")
    A(f"v_lshlrev_b32 {v(vL16)}, 5, {v(vL16)}")
    A(f"v_and_b32 {v(vT)}, 3, {v(vLANE)}")
    A(f"v_lshl_add_u32 {v(vL16)}, {v(vT)}, 3, {v(vL16)}")
    A(f"v_bfe_u32 {v(vT2)}, {v(vLANE)}, 2, 2")
    A(f"v_lshl_add_u32 {v(cDB)}, {v(vFL)}, 2, {v(vT2)}")
    A(f"v_lshl_add_u32 {v(cDB)}, {v(cDB)}, 7, {s(sW4K)}")
    A(f"v_add_u32 {v(cDB)}, {v(cDB)}, {v(vL16)}")
    A(f"v_bfe_u32 {v(vT)}, {v(vLANE)}, 3, 1")
    A(f"v_lshl_add_u32 {v(cDB)}, {v(vT)}, 6, {v(cDB)}")
    A(f"v_lshl_add_u32 {v(vT)}, {v(vFL)}, 3, {v(vT2)}")
    A(f"v_lshl_add_u32 {v(vT)}, {v(vT)}, 8, {v(vL16)}")
    A(f"v_add_u32 {v(vT)}, {WR}, {v(vT)}")
    A(f"v_xor_b32 {v(vT2)}, {s(sWAVE)}, {v(vT2)}")
    A(f"v_lshl_add_u32 {v(cWA)}, {v(vT2)}, 6, {v(vT)}")
    A(f"v_xor_b32 {v(cWA+1)}, 64, {v(cWA)}")
    A(f"v_lshlrev_b32 {v(vL16)}, 4, {v(vLANE)}")
    A(f"s_lshl_b32 {s(sT0)}, {s(sWAVE)}, 2")
    A(f"v_mov_b32 {v(cZ)}, {s(sT0)}")
    for i in range(28):
        A(f"v_mov_b32 {v(cSM+i)}, 0")
    A("s_mov_b32 exec_lo, 0x00100001")
    A("s_mov_b32 exec_hi, 0x00100001")
    for i in range(4):
        A(f"v_mov_b32 {v(cSEL+i)}, 0x3f803f80")
    A("s_mov_b64 exec, -1")
    A(f"s_lshl_b32 {s(sT2)}, {s(sRH)}, 13")
    A(f"s_cmp_eq_u32 {s(sCI)}, 0")
    A(f"s_mov_b32 {s(sKB)}, {XR+2*16384}")
    A(f"s_cselect_b32 {s(sKB)}, {WR+3*16384}, {s(sKB)}")
    A(f"s_add_u32 {s(sKB)}, {s(sKB)}, {s(sT2)}")


def x_setup():
    vT, vT2, vT3 = xT, xT2, xT3
    A(f"s_sub_u32 {s(sXW)}, {s(sWAVE)}, 4")
    A(f"s_and_b32 {s(sPH)}, {s(sXW)}, 1")
    A(f"s_mul_i32 {s(sKB)}, {s(sXW)}, {KA_SZ}")
    A(f"s_mul_i32 {s(sKR)}, {s(sCI)}, {2*KA_SZ}")
    A(f"s_mul_i32 {s(sUBc)}, {s(sCI)}, {UB_SZ}")
    A(f"s_add_u32 {s(sUBc)}, {s(sUBc)}, {UB}")
    A(f"s_mul_i32 {s(sTBc)}, {s(sCI)}, {TB_SZ}")
    A(f"s_add_u32 {s(sTBc)}, {s(sTBc)}, {TB}")
    for i in range(4):
        A(f"v_mov_b32 {v(16+i)}, 0")
    if not OPT["early3"]:
        A(f"v_min_u32 {v(vT2)}, 29, {v(vLANE)}")
        A(f"v_lshl_add_u32 {v(vT2)}, {v(vT2)}, 4, {s(sUBc)}")
        A(f"ds_write_b128 {v(vT2)}, {v(16,4)}")
    A(f"v_and_b32 {v(vT2)}, 3, {v(vLANE)}")
    A(f"v_lshlrev_b32 {v(vT2)}, 4, {v(vT2)}")
    A(f"ds_write_b128 {v(vT2)}, {v(16,4)} offset:{FG}")
    if not OPT["early3"]:
        A(f"v_mov_b32 {v(vT2)}, {s(sTBc)}")
        A(f"ds_write_b32 {v(vT2)}, {v(16)}")
    A(f"s_add_u32 {s(sTBc)}, {s(sTBc)}, 4")
    A(f"s_lshl_b32 {s(sT0)}, {s(sXW)}, 2")
    A(f"v_mov_b32 {v(xMine)}, {s(sT0)}")
    A(f"v_xor_b32 {v(xOther)}, 4, {v(xMine)}")
    A(f"s_add_u32 {s(sWoff)}, {s(sWoff)}, {96*3584}")
    A(f"s_sub_u32 {s(sT0)}, {s(sWoff)}, {448*3584}")
    A(f"s_cselect_b32 {s(sWoff)}, {s(sWoff)}, {s(sT0)}")
    A(f"s_add_u32 {s(sXoff)}, {s(sXoff)}, 256")
    A(f"s_sub_u32 {s(sT0)}, {s(sXoff)}, 896")
    A(f"s_cselect_b32 {s(sXoff)}, {s(sXoff)}, {s(sT0)}")
    A(f"s_add_u32 {s(sWoff1)}, {s(sWoff)}, {4*3584}")
    wd_setup(vDO, vT, vT2, 0)
    r2 = 2 * OPT["rot1"]
    got = {0, 1, 2, r2 % 14, (r2 + 1) % 14, (r2 + 2) % 14}
    rest = []
    for k in range(3, 14):
        for c in (k, (k + r2) % 14):
            if c not in got and c not in rest:
                rest.append(c)
    rest = (rest + [rest[-1]] * 8)[:8]
    A(f"s_lshr_b32 {s(sT0)}, {s(sXW)}, 1")
    A(f"s_lshl_b32 {s(sT0)}, {s(sT0)}, 4")
    A(f"s_lshr_b32 {s(sT0)}, {sum(c << (4*i) for i, c in enumerate(rest)):#x}, {s(sT0)}")
    A(f"v_lshrrev_b32 {v(vT)}, 4, {v(vLANE)}")
    A(f"v_lshlrev_b32 {v(vT)}, 2, {v(vT)}")
    A(f"v_bfe_u32 {v(vT)}, {s(sT0)}, {v(vT)}, 4")
    A(f"s_lshl_b32 {s(sT0)}, {s(sXR)}, 1")
    A(f"v_add_u32 {v(vT)}, {s(sT0)}, {v(vT)}")
    A(f"v_subrev_u32 {v(vT2)}, 14, {v(vT)}")
    A(f"v_min_u32 {v(vT)}, {v(vT)}, {v(vT2)}")
    A(f"v_bfe_u32 {v(vT2)}, {v(vLANE)}, 1, 3")
    A(f"v_lshl_add_u32 {v(vT)}, {v(vT)}, 5, {v(vT2)}")
    A(f"v_mul_u32_u24 {v(vT)}, 3584, {v(vT)}")
    A(f"v_and_b32 {v(vT2)}, 1, {v(vLANE)}")
    A(f"v_lshl_add_u32 {v(vT)}, {v(vT2)}, 7, {v(vT)}")
    A(f"s_and_b32 {s(sT0)}, {s(sJ)}, 3")
    A(f"s_mul_i32 {s(sT0)}, {s(sT0)}, {8*3584}")
    A(f"s_lshl_b32 {s(sT1)}, {s(sFB)}, 8")
    A(f"s_add_u32 {s(sT0)}, {s(sT0)}, {s(sT1)}")
    A(f"v_add_u32 {v(xPF)}, {s(sT0)}, {v(vT)}")
    A(f"s_cmp_eq_u32 {s(sPH)}, 0")
    A(f"s_cselect_b32 {s(sPB)}, {s(pWG)}, {s(pWU)}")
    A(f"s_cselect_b32 {s(sPB+1)}, {s(pWG+1)}, {s(pWU+1)}")
    gx = {0, 1, OPT["rot1"] % 7, (OPT["rot1"] + 1) % 7}
    rx = []
    for k in range(2, 7):
        for c in (k, (k + OPT["rot1"]) % 7):
            if c not in gx and c not in rx:
                rx.append(c)
    rx = (rx + [rx[-1]] * 4)[:4]
    A(f"s_lshr_b32 {s(sT0)}, {s(sCB)}, 1")
    A(f"s_lshl_b32 {s(sT0)}, {s(sT0)}, 2")
    A(f"s_lshr_b32 {s(sT0)}, {sum(c << (4*i) for i, c in enumerate(rx)):#x}, {s(sT0)}")
    A(f"s_and_b32 {s(sT0)}, {s(sT0)}, 15")
    A(f"s_add_u32 {s(sT0)}, {s(sT0)}, {s(sXR)}")
    A(f"s_sub_u32 {s(sT1)}, {s(sT0)}, 7")
    A(f"s_cselect_b32 {s(sT0)}, {s(sT0)}, {s(sT1)}")
    A(f"s_lshl_b32 {s(sT0)}, {s(sT0)}, 7")
    A(f"s_lshl_b32 {s(sT1)}, {s(sRB)}, 1")
    A(f"s_and_b32 {s(sT2)}, {s(sCB)}, 1")
    A(f"s_add_u32 {s(sT1)}, {s(sT1)}, {s(sT2)}")
    A(f"s_lshl_b32 {s(sT1)}, {s(sT1)}, 2")
    A(f"s_add_u32 {s(sT1)}, {s(sT1)}, {s(sXW)}")
    A(f"s_mul_i32 {s(sT1)}, {s(sT1)}, {16*896}")
    A(f"s_add_u32 {s(sT0)}, {s(sT0)}, {s(sT1)}")
    A(f"v_and_b32 {v(vT)}, 15, {v(vLANE)}")
    A(f"v_mul_u32_u24 {v(vT)}, 896, {v(vT)}")
    A(f"v_add_u32 {v(xPF+1)}, {s(sT0)}, {v(vT)}")
    A(f"s_cmp_eq_u32 {s(sCI)}, 0")
    A(f"s_mov_b32 {s(sT0)}, {XR+2*16384}")
    A(f"s_cselect_b32 {s(sT0)}, {WR+3*16384}, {s(sT0)}")
    if OPT["early3"]:
        A(f"s_mul_i32 {s(sT0)}, {s(sCI)}, {2*2816}")
        A(f"s_add_u32 {s(sT0)}, {s(sT0)}, {UB}")
    A(f"v_lshl_add_u32 {v(xPA)}, {v(vLANE)}, 2, {s(sT0)}")
    A(f"s_xor_b32 {s(sT0)}, {s(sXW)}, 1")
    A(f"s_mul_i32 {s(sT0)}, {s(sT0)}, {KA_SZ}")
    A(f"v_lshl_add_u32 {v(xPA+1)}, {v(vLANE)}, 2, {s(sT0)}")

    def gaddr(ph):
        A(f"v_and_b32 {v(vT)}, 31, {v(vLANE)}")
        A(f"v_lshrrev_b32 {v(vT2)}, 5, {v(vLANE)}")
        if ph == 0:
            A(f"v_lshl_add_u32 {v(vT)}, {v(vT)}, 1, {v(vT2)}")
            A(f"v_lshl_add_u32 {v(xTA)}, {v(vT)}, 4, {s(sTBc)}")
            A(f"s_add_u32 {s(sT0)}, {s(sTBc)}, 1024")
            A(f"v_lshl_add_u32 {v(xTA+1)}, {v(vT)}, 3, {s(sT0)}")
        else:
            A(f"s_add_u32 {s(sT0)}, {s(sTBc)}, {384*4}")
            A(f"v_lshl_add_u32 {v(xTA)}, {v(vLANE)}, 3, {s(sT0)}")
            A(f"v_lshl_add_u32 {v(vT)}, {v(vT2)}, 6, {v(vT)}")
            A(f"s_add_u32 {s(sT0)}, {s(sTBc)}, {512*4}")
            A(f"v_lshl_add_u32 {v(xTA+1)}, {v(vT)}, 2, {s(sT0)}")
        A(f"v_lshlrev_b32 {v(vT)}, 4, {v(vLANE)}")
        A(f"v_sub_u32 {v(vT)}, {2047-1024*ph}, {v(vT)}")
        if ph:
            A(f"v_cmp_gt_u32 vcc, 256, {v(vT)}")
            A(f"v_subrev_u32 {v(vT2)}, 16, {v(vT)}")
            A(f"v_mov_b32 {v(vT3)}, 144")
            A(f"v_cndmask_b32 {v(vT)}, {v(vT)}, {v(vT3)}, vcc")
            A(f"v_mov_b32 {v(vT3)}, 128")
            A(f"v_cndmask_b32 {v(vT2)}, {v(vT3)}, {v(vT2)}, vcc")
        else:
            A(f"v_mov_b32 {v(vT2)}, 128")
        A(f"v_cvt_f32_u32 {v(vT)}, {v(vT)}")
        A(f"v_subrev_u32 {v(vT2)}, 0x4300, {v(vT2)}")
        A(f"v_lshl_add_u32 {v(vT2)}, {v(vT2)}, 2, {s(sTBc)}")
        for k in (range(0, 17, 2) if ph else (0, 8, 16)):
            A(f"v_subrev_f32 {v(xGA+k)}, {f2u(float(k)):#x}, {v(vT)}")
            A(f"v_subrev_f32 {v(xGA+k+1)}, {f2u(float(k+1)):#x}, {v(vT)}")
            A(f"v_cvt_pk_bf16_f32 {v(vT3)}, {v(xGA+k)}, {v(xGA+k+1)}")
            A(f"v_mad_u32_u16 {v(xGA+k)}, {v(vT3)}, 4, {v(vT2)}")
            if k < 16 and ph:
                A(f"v_mad_u32_u16 {v(xGA+k+1)}, {v(vT3)}, 4, {v(vT2)} op_sel:[1,0,0,0]")
    by_ph(lambda: gaddr(0), lambda: gaddr(1))


def warm_d():
    sk = A.new("wd")
    if OPT["nmain"] < 4:
        A(f"s_cmp_ge_u32 {s(sXW)}, {OPT['nmain']}")
        A(f"s_cbranch_scc1 {sk}")
    A(f"global_load_dword {v(xPF+5)}, {v(xPF+4)}, {s(pWD,2)}")
    A.label(sk)


def phase0():
    A.vm = 0
    R = KR_
    vT, vT2, vT3 = 120, 121, 122
    P = R["P"]
    A(f"s_mul_i32 {s(sCH0)}, {s(sXCD)}, 28")
    A(f"s_add_u32 {s(sCH0)}, {s(sCH0)}, {s(sJ)}")
    A(f"s_lshl_b32 {s(sCH0)}, {s(sCH0)}, 1")
    A(f"s_bfe_u32 {s(sCI)}, {s(sWAVE)}, 0x10001")
    A(f"s_add_u32 {s(sCH)}, {s(sCH0)}, {s(sCI)}")
    A(f"s_lshr_b32 {s(sT0)}, {s(sWAVE)}, 2")
    A(f"s_lshl_b32 {s(sT0)}, {s(sT0)}, 1")
    A(f"s_and_b32 {s(sT1)}, {s(sWAVE)}, 1")
    A(f"s_add_u32 {s(sT0)}, {s(sT0)}, {s(sT1)}")
    A(f"s_lshl_b32 {s(sT0)}, {s(sT0)}, 7")
    A(f"s_lshl_b32 {s(sT3)}, {s(sCH)}, 9")
    A(f"s_add_u32 {s(sT0)}, {s(sT0)}, {s(sT3)}")
    A(f"v_lshl_add_u32 {v(vT3)}, {v(vLANE)}, 1, {s(sT0)}")
    A(f"s_lshl_b32 {s(sT3)}, {s(sCH0)}, 1")
    A(f"s_and_b32 {s(sT5)}, {s(sWAVE)}, 3")
    A(f"v_lshrrev_b32 {v(vT)}, 4, {v(vLANE)}")
    A(f"v_mul_u32_u24 {v(vWO)}, 3584, {v(vT)}")
    A(f"v_bfe_u32 {v(vT2)}, {v(vLANE)}, 2, 2")
    A(f"v_xor_b32 {v(vT2)}, {v(vT2)}, {v(vT)}")
    A(f"v_lshl_add_u32 {v(vWO)}, {v(vT2)}, 6, {v(vWO)}")
    A(f"v_and_b32 {v(vT2)}, 3, {v(vLANE)}")
    A(f"v_lshl_add_u32 {v(vWO)}, {v(vT2)}, 4, {v(vWO)}")
    A(f"s_mul_i32 {s(sT0)}, {s(sT5)}, {8*3584}")
    A(f"s_lshl_b32 {s(sT2)}, {s(sFB)}, 8")
    A(f"s_add_u32 {s(sT0)}, {s(sT0)}, {s(sT2)}")
    A(f"v_add_u32 {v(vWO)}, {s(sT0)}, {v(vWO)}")
    A(f"s_lshl_b32 {s(sT0)}, {s(sT1)}, 2")
    A(f"v_add_u32 {v(vT)}, {s(sT0)}, {v(vT)}")
    A(f"v_and_b32 {v(vT2)}, 7, {v(vLANE)}")
    A(f"v_xor_b32 {v(vT2)}, {v(vT2)}, {v(vT)}")
    A(f"v_lshrrev_b32 {v(vT)}, 3, {v(vLANE)}")
    A(f"v_mul_u32_u24 {v(vXO)}, 896, {v(vT)}")
    A(f"v_lshl_add_u32 {v(vXO)}, {v(vT2)}, 4, {v(vXO)}")
    A(f"s_lshl_b32 {s(sT0)}, {s(sRB)}, 4")
    A(f"s_add_u32 {s(sT0)}, {s(sT0)}, {s(sT5)}")
    A(f"s_mul_i32 {s(sT0)}, {s(sT0)}, {8*896}")
    A(f"v_add_u32 {v(vXO)}, {s(sT0)}, {v(vXO)}")
    A(f"s_lshl_b32 {s(sWO)}, {s(sT5)}, 11")
    A(f"s_lshl_b32 {s(sXO)}, {s(sT5)}, 10")
    tabs = {0: [0] * 8, 1: [0, 1, 2, 3, 2, 3, 4, 5], 2: [0, 2, 1, 3, 5, 0, 6, 1], 3: [0, 1, 2, 3, 1, 2, 3, 0]}[OPT["xrot"]]
    A(f"s_lshl_b32 {s(sDoff)}, {s(sXCD)}, 2")
    A(f"s_lshr_b32 {s(sDoff)}, {sum(c << (4*i) for i, c in enumerate(tabs)):#x}, {s(sDoff)}")
    A(f"s_and_b32 {s(sDoff)}, {s(sDoff)}, 15")
    A(f"s_mul_i32 {s(sDbase)}, {s(sGRP)}, {OPT['rot1']}")
    A(f"s_add_u32 {s(sDbase)}, {s(sDbase)}, {s(sDoff)}")
    A(f"s_sub_u32 {s(sT0)}, {s(sDbase)}, 7")
    A(f"s_cselect_b32 {s(sDbase)}, {s(sDbase)}, {s(sT0)}")
    A(f"s_mul_i32 {s(sWoff)}, {s(sDbase)}, {64*3584}")
    A(f"s_add_u32 {s(sWoff1)}, {s(sWoff)}, {4*3584}")
    A(f"s_lshl_b32 {s(sXoff)}, {s(sDbase)}, 7")
    if OPT["fill2"]:
        A(f"s_lshr_b32 {s(sT0)}, {s(sWAVE)}, 1")
        A(f"s_lshl_b32 {s(sT0)}, {s(sT0)}, 2")
        A(f"v_lshrrev_b32 {v(vT)}, 4, {v(vLANE)}")
        A(f"v_add_u32 {v(vT)}, {s(sT0)}, {v(vT)}")
        A(f"v_min_u32 {v(vT)}, 13, {v(vT)}")
        A(f"v_bfe_u32 {v(vT2)}, {v(vLANE)}, 1, 3")
        A(f"v_lshl_add_u32 {v(vT)}, {v(vT)}, 5, {v(vT2)}")
        A(f"v_mul_u32_u24 {v(vT)}, 3584, {v(vT)}")
        A(f"v_and_b32 {v(vT2)}, 1, {v(vLANE)}")
        A(f"v_lshl_add_u32 {v(vT)}, {v(vT2)}, 7, {v(vT)}")
        A(f"s_and_b32 {s(sT0)}, {s(sJ)}, 3")
        A(f"s_mul_i32 {s(sT0)}, {s(sT0)}, {8*3584}")
        A(f"s_lshl_b32 {s(sT2)}, {s(sFB)}, 8")
        A(f"s_add_u32 {s(sT0)}, {s(sT0)}, {s(sT2)}")
        A(f"v_add_u32 v92, {s(sT0)}, {v(vT)}")
        A(f"s_min_u32 {s(sT0)}, {s(sWAVE)}, 6")
        A(f"s_lshl_b32 {s(sT0)}, {s(sT0)}, 7")
        A(f"s_mul_i32 {s(sT2)}, {s(sRB)}, {128*896}")
        A(f"s_add_u32 {s(sT0)}, {s(sT0)}, {s(sT2)}")
        A(f"s_mul_i32 {s(sT2)}, {s(sCB)}, 19")
        A(f"v_min_u32 {v(vT)}, 18, {v(vLANE)}")
        A(f"v_add_u32 {v(vT)}, {s(sT2)}, {v(vT)}")
        A(f"v_min_u32 {v(vT)}, 127, {v(vT)}")
        A(f"v_mul_u32_u24 {v(vT)}, 896, {v(vT)}")
        A(f"v_add_u32 v93, {s(sT0)}, {v(vT)}")
    kernarg_ready()
    A(f"s_mov_b32 {s(sXR)}, {s(sDoff)}")

    def warm2(cond=None):
        if cond:
            A(cond)
            A("s_cselect_b64 exec, -1, 1")
        A.vmem(f"global_load_dword v94, v93, {s(pX,2)}")
        A.vmem(f"global_load_dword v94, v92, {s(sPB,2)}")
        if cond:
            A("s_mov_b64 exec, -1")
    for k, p in enumerate((pLA, pAI, pCR, pCI)):
        par = A.vmem(f"global_load_ushort {v(P+k)}, {v(vT3)}, {s(p,2)}{' nt' if OPT['pnt'] else ''}")
    A(f"s_load_dword {s(sT4)}, {s(pLDT,2)}, {s(sT3)}")
    if OPT["fill2"]:
        A(f"s_cmp_eq_u32 {s(sT1)}, 0")
        A(f"s_cselect_b32 {s(sPB)}, {s(pWG)}, {s(pWU)}")
        A(f"s_cselect_b32 {s(sPB+1)}, {s(pWG+1)}, {s(pWU+1)}")
    if OPT["pbar"]:
        A("s_barrier")
    srd(rWG, pWG, 448 * 1792 * 2)
    srd(rWU, pWU, 448 * 1792 * 2)
    srd(rX, pX, 2048 * 448 * 2)
    isx, join = A.new("px"), A.new("pj")
    A(f"s_cmp_ge_u32 {s(sWAVE)}, 4")
    A(f"s_cbranch_scc1 {isx}")
    if OPT["fill2"]:
        warm2(f"s_cmp_lt_u32 {s(sWAVE)}, {OPT['fill2']}")
        c_setup()
        dma_w(0); dma_x(0, range(4))
    else:
        dma_w(0); dma_x(0, range(4))
        c_setup()
    A(f"s_branch {join}")
    A.label(isx)
    x_setup()
    A.label(join)
    srd(rWS, pWS, WS_BYTES)

    def c_only(f):
        sk = A.new("co")
        A(f"s_cmp_ge_u32 {s(sWAVE)}, 4")
        A(f"s_cbranch_scc1 {sk}")
        f()
        A.label(sk)
    A(f"v_lshl_add_u32 {v(vT)}, {v(vLANE)}, 6, {s(sKB)}")
    A(f"v_bfe_u32 {v(vT2)}, {v(vLANE)}, 1, 2")
    for k in range(4):
        A(f"v_xor_b32 {v(vT3)}, {k}, {v(vT2)}")
        A(f"v_lshl_add_u32 {v(R['wa']+k)}, {v(vT3)}, 4, {v(vT)}")
    A(f"v_bfe_u32 {v(vT2)}, {v(vLANE)}, 2, 2")
    A(f"v_lshrrev_b32 {v(vT)}, 5, {v(vLANE)}")
    A(f"v_lshl_add_u32 {v(vT)}, {v(vT)}, 3, {v(vT2)}")
    A(f"v_lshl_add_u32 {v(vT)}, {v(vT)}, 6, {s(sKB)}")
    A(f"v_bfe_u32 {v(vT2)}, {v(vLANE)}, 4, 1")
    A(f"v_lshl_add_u32 {v(vT)}, {v(vT2)}, 5, {v(vT)}")
    A(f"v_lshrrev_b32 {v(vT2)}, 1, {v(vLANE)}")
    A(f"v_lshrrev_b32 {v(vT3)}, 3, {v(vLANE)}")
    A(f"v_xor_b32 {v(vT2)}, {v(vT2)}, {v(vT3)}")
    A(f"v_and_b32 {v(vT2)}, 1, {v(vT2)}")
    A(f"v_lshl_add_u32 {v(vT)}, {v(vT2)}, 4, {v(vT)}")
    A(f"v_and_b32 {v(vT2)}, 1, {v(vLANE)}")
    A(f"v_lshl_add_u32 {v(R['ra'])}, {v(vT2)}, 3, {v(vT)}")
    A(f"v_add_u32 {v(R['ra']+1)}, 256, {v(R['ra'])}")
    A(f"v_xor_b32 {v(R['ra']+1)}, 32, {v(R['ra']+1)}")
    A("s_waitcnt lgkmcnt(0)")
    A(f"s_lshl_b32 {s(sT0)}, {s(sT4)}, 16")
    A(f"s_and_b32 {s(sT2)}, {s(sT4)}, 0xffff0000")
    A(f"s_cmp_eq_u32 {s(sCI)}, 0")
    A(f"s_cselect_b32 {s(sT0)}, {s(sT0)}, {s(sT2)}")
    A(f"v_mov_b32 {v(vT)}, {LOG2E:#x}")
    A(f"v_mul_f32 {v(vT)}, {s(sT0)}, {v(vT)}")
    A(f"v_exp_f32 {v(vT)}, {v(vT)}")
    A("s_nop 0")
    A(f"v_cvt_pk_bf16_f32 {v(vT)}, {v(vT)}, {v(vT)}")
    A(f"v_lshlrev_b32 {v(P+4)}, 16, {v(vT)}")
    A(f"v_add_f32 {v(P+5)}, {v(P+4)}, {v(P+4)}")
    if OPT["early3"]:
        A(f"s_mul_i32 {s(sT0)}, {s(sWAVE)}, 2816")
        A(f"s_add_u32 {s(sT0)}, {s(sT0)}, {UB}")
        A(f"s_cmp_lt_u32 {s(sWAVE)}, 4")
        A(f"s_cselect_b32 {s(sKB)}, {s(sT0)}, {s(sKB)}")
    A(f"v_lshl_add_u32 {v(vT)}, {v(vLANE)}, 2, {s(sKB)}")
    stamp(6)
    isx, join = A.new("px"), A.new("pj")
    A(f"s_cmp_ge_u32 {s(sWAVE)}, 4")
    A(f"s_cbranch_scc1 {isx}")
    if OPT["w1h"] < 0 and OPT["w1h"] != -6:
        dma_w(1)
    if OPT["fill2"]:
        warm2(f"s_cmp_ge_u32 {s(sWAVE)}, {OPT['fill2']}")
    A.wait_vm(par)
    A(f"s_branch {join}")
    A.label(isx)
    A("s_waitcnt vmcnt(0)")
    if OPT["xp0"] in (1, 2):
        A("s_setprio 1")
    if OPT["fill2"]:
        keep = A.vm
        warm2()
        A.vm = keep
    elif OPT["pfh"] == -2:
        A(f"global_load_dword {v(xPF+2)}, {v(xPF+1)}, {s(pX,2)}")
        A(f"global_load_dword {v(xPF+3)}, {v(xPF)}, {s(sPB,2)}")
    A.label(join)
    stamp(7)
    for k in range(4):
        A(f"v_lshlrev_b32 {v(P+k)}, 16, {v(P+k)}")
    def warm():
        A(f"global_load_dword {v(xPF+2)}, {v(xPF+1)}, {s(pX,2)}")
        A(f"global_load_dword {v(xPF+3)}, {v(xPF)}, {s(sPB,2)}")

    def hook(n):
        isx, join = A.new("hx"), A.new("hj")
        A(f"s_cmp_ge_u32 {s(sWAVE)}, 4")
        A(f"s_cbranch_scc1 {isx}")
        if OPT["w1h"] in (-5, -6):
            pass
        elif OPT["w1h"] == -2:
            if n == 0:
                dma_w(2); dma_x(1, range(4))
        elif OPT["w1h"] in (-3, -4):
            if n == 0:
                dma_w(2)
        elif OPT["w1h"] < 0:
            dma_w(2) if n == 0 else dma_x(1, range(4))
        elif OPT["w1h"] == 0:
            if n == 0:
                dma_w(1)
            else:
                dma_w(2); dma_x(1, range(4))
        elif n == 1:
            dma_w(1); dma_w(2); dma_x(1, range(4))
        A(f"s_branch {join}")
        A.label(isx)
        if OPT["xp0"] == n + 1:
            A("s_setprio 0")
        if OPT["xp0"] == 3:
            A(f"s_setprio {1 - n}")
        if OPT["wsplit"]:
            if n == 0:
                A(f"global_load_dword {v(xPF+2)}, {v(xPF+1)}, {s(pX,2)}")
            A(f"s_cmp_{'ge' if n == 0 else 'lt'}_u32 {s(sWAVE)}, 6")
            A(f"s_cbranch_scc1 {join}")
            A(f"global_load_dword {v(xPF+3)}, {v(xPF)}, {s(sPB,2)}")
        elif OPT["pfh"] == n and not OPT["fill2"]:
            warm()
        if OPT["wdh"] == n:
            warm_d()
        A.label(join)
    kgen_slot(R, hook)
    A("s_nop 11")
    DK = R["DK"]
    for r in range(0, 10, 2):
        A(f"ds_write2st64_b32 {v(vT)}, {v(DK+r)}, {v(DK+r+1)} offset0:{r} offset1:{r+1}")
    A(f"ds_write_b32 {v(vT)}, {v(DK+10)} offset:2560")
    stamp(8)
    A(f"s_cmp_ge_u32 {s(sWAVE)}, 4")
    A("s_cbranch_scc1 L_xw")
    if OPT.get("p0"):
        STAMP_ON[0] = False


def cwave():
    vXA, vWA, vL16, vT, vT2, vFL, vD, vZ = cXA, cWA, cL16, cT, cT2, cFL, cD, cZ
    FR = 16
    SM, SEL, SAC = cSM, cSEL, cSAC
    ACC = 128

    def xf(st, rbk): return FR + 24 * st + 4 * rbk
    def wf(st, mat, j): return FR + 24 * st + 8 + 4 * (2 * mat + j)
    def acc(mat, j, rbk): return ACC + 16 * ((mat * 2 + j) * 2 + rbk)

    if OPT["prio"]:
        A(f"s_setprio {OPT['prio']}")

    def reads(st, c, ks):
        xs = ((c // 2) % 3) * 16384
        k4 = (c % 2) * 2 + ks
        ws_ = (c % 4) * 16384 + ks * 4096
        r = []
        r.append(f"ds_read_b128 {v(xf(st,0),4)}, {v(vXA+k4)} offset:{xs}")
        for j in range(2):
            for mat in range(2):
                for h in range(2):
                    r.append(f"ds_read_b64_tr_b16 {v(wf(st,mat,j)+2*h,2)}, {v(vWA+j)} offset:{ws_+mat*8192+h*1024}")
            if j == 0:
                r.append(f"ds_read_b128 {v(xf(st,1),4)}, {v(vXA+k4)} offset:{xs+4096}")
        return r

    def mf(st, first):
        if OPT["snake"] == 1:
            order = [(0, 0, 0), (0, 0, 1), (0, 1, 1), (0, 1, 0), (1, 1, 0), (1, 1, 1), (1, 0, 1), (1, 0, 0)]
        elif OPT["snake"] == 2:
            order = [(0, 0, 0), (0, 1, 0), (0, 1, 1), (0, 0, 1), (1, 0, 1), (1, 1, 1), (1, 1, 0), (1, 0, 0)]
        elif OPT["snake"] == 3:
            order = [(0, 0, 0), (0, 0, 1), (1, 0, 1), (1, 0, 0), (1, 1, 0), (1, 1, 1), (0, 1, 1), (0, 1, 0)]
        else:
            order = [(j, rbk, mat) for j in range(2) for rbk in range(2) for mat in range(2)]
        m = []
        for j, rbk, mat in order:
            a = acc(mat, j, rbk)
            cc = "0" if first else v(a, 16)
            m.append(f"v_mfma_f32_32x32x16_bf16 {v(a,16)}, {v(wf(st,mat,j),4)}, {v(xf(st,rbk),4)}, {cc}")
        return m

    def smf(st, first):
        return [f"v_mfma_f32_16x16x32_bf16 {v(SAC+4*mat,4)}, {v(SEL,4)}, {v(wf(st,mat,0),4)}, {'0' if first else v(SAC+4*mat,4)}"
                for mat in range(2)]

    def mix(st, first):
        b, sm = mf(st, first), smf(st, first)
        if OPT["nos"]:
            return b
        return b[:OPT['spos']] + sm + b[OPT['spos']:]

    def phase(ms, rs, extra=None):
        rs = list(rs)
        for i, m in enumerate(ms):
            if i == len(ms) - 1 and not OPT["wlate"]:
                A("s_waitcnt lgkmcnt(0)")
            A(m)
            for _ in range(OPT["rpg"]):
                if rs:
                    A(rs.pop(0))
            if i == 6 and extra:
                extra()
        if OPT["wlate"]:
            A("s_waitcnt lgkmcnt(0)")

    mid = [0]

    def mloads():
        A(f"s_lshl_b32 {s(sT2)}, {s(sRB)}, 1")
        A(f"s_add_u32 {s(sT2)}, {s(sT2)}, {s(sRH)}")
        A(f"s_lshl_b32 {s(sT2)}, {s(sT2)}, 9")
        A(f"s_add_u32 {s(sT2)}, {s(sT2)}, {OFF_ST}")
        A(f"v_lshrrev_b32 {v(vT)}, 1, {v(vL16)}")
        A("s_mov_b32 exec_hi, 0")
        for rbk in range(2):
            mid[0] = A.vmem(f"buffer_load_dword {v(SM+16+4*rbk)}, {v(vT)}, {s(rWS,4)}, {s(sT2)} offen offset:{256*rbk} sc1")
        A("s_mov_b32 exec_hi, -1")

    sHA = 78
    sQ2, sQV, sONE, sPC = 77, 85, 86, 16

    def haddr():
        A(f"s_lshl_b32 {s(sT0)}, {s(sRB)}, 1")
        A(f"s_add_u32 {s(sT0)}, {s(sT0)}, {s(sRH)}")
        A(f"s_lshl_b32 {s(sT1)}, {s(sFB)}, 1")
        A(f"s_add_u32 {s(sT1)}, {s(sT1)}, {s(sFH)}")
        A(f"s_mul_i32 {s(sT2)}, {s(sT0)}, {224*1024}")
        A(f"s_lshl_b32 {s(sT3)}, {s(sT1)}, 12")
        A(f"s_add_u32 {s(sT2)}, {s(sT2)}, {s(sT3)}")
        A(f"s_add_u32 {s(sT2)}, {s(sT2)}, {OFF_H}")
        A(f"s_lshl_b32 {s(sT3)}, {s(sRH)}, 11")
        A(f"s_add_u32 {s(sHA)}, {s(sT2)}, {s(sT3)}")
        A(f"s_xor_b32 {s(sHA+1)}, {s(sHA)}, 2048")
        A(f"s_add_u32 {s(sHA+2)}, {s(sHA)}, {112*1024}")
        A(f"s_add_u32 {s(sHA+3)}, {s(sHA+1)}, {112*1024}")
        A(f"s_lshl_b32 {s(sT4)}, {s(sT0)}, 10")
        A(f"s_add_u32 {s(sT4)}, {s(sT4)}, {OFF_FL}")
        if OPT["kq"]:
            A(f"s_mul_i32 {s(sT1)}, {s(sT1)}, 37")
            A(f"s_lshr_b32 {s(sT1)}, {s(sT1)}, 8")
            A(f"s_lshl_b32 {s(sT1)}, {s(sT1)}, 7")
            A(f"s_add_u32 {s(sT4)}, {s(sT4)}, {s(sT1)}")
        A(f"s_add_u32 {s(sPC)}, {s(pWS)}, {s(sT4)}")
        A(f"s_addc_u32 {s(sPC+1)}, {s(pWS+1)}, 0")
        A(f"s_lshl_b32 {s(sQ2)}, {s(sRB64)}, 3")
        if OPT["kq"]:
            A(f"s_add_u32 {s(sQ2)}, {s(sQ2)}, {s(sWAVE)}")
        A(f"s_lshl_b32 {s(sQ2)}, {s(sQ2)}, 7")
        A(f"s_add_u32 {s(sQ2)}, {s(sQ2)}, {OFF_FL}")
    if OPT["w1h"] == -6:
        dma_w(1)
    if OPT["w1h"] in (-5, -6):
        dma_w(2)
    if OPT["w1h"] == -3:
        dma_x(1, range(4))
    haddr()
    A.wait_vm(xid[0])
    A("s_waitcnt lgkmcnt(0)")
    A("s_barrier")
    stamp(1)
    for r in reads(0, 0, 0):
        A(r)
    if OPT["w1h"] in (-4, -5, -6):
        dma_x(1, range(4))
    A("s_waitcnt lgkmcnt(0)")
    for c in range(14):
        phase(mix(0, c == 0), reads(1, c, 1))
        if c < 13:
            if c == 0:
                A.wait_vm(wid[1])
            if c == 1:
                A.wait_vm(xid[1])
            if c + 1 == OPT["ib"]:
                STAMP_ON[0] = True
                stamp(4)
            A("s_barrier")
            if c + 1 == OPT["ib"]:
                stamp(6)
                STAMP_ON[0] = False
            if c in (OPT.get("sa", 3), OPT.get("sb", 8)):
                stamp(9 if c == OPT.get("sa", 3) else 10)
            phase(mix(1, False), reads(0, c + 1, 0), mloads if c + 1 == H1_BAR else None)
    vDA = 2
    ms = mf(1, False)
    for m in smf(1, False) + ms[:3]:
        A(m)
    A(f"s_lshl_b32 {s(sT0)}, {s(sWAVE)}, 9")
    A(f"v_lshrrev_b32 {v(vT)}, 2, {v(vL16)}")
    A(f"v_add_u32 {v(vT)}, {s(sT0)}, {v(vT)}")
    A(f"v_add_u32 {v(vDA)}, {XR}, {v(cDB)}")
    A(f"v_xor_b32 {v(vDA+1)}, 64, {v(vDA)}")
    for mat in range(2):
        d = SM + 8 * mat
        A(f"v_cvt_pk_bf16_f32 {v(d)}, {v(SAC+4*mat)}, {v(SAC+4*mat)}")
        A(f"v_lshlrev_b32 {v(d)}, 16, {v(d)}")
        A(f"v_sub_f32 {v(vT2)}, {v(SAC+4*mat)}, {v(d)}")
        A(f"v_cvt_pk_bf16_f32 {v(d)}, {v(d)}, {v(vT2)}")
        if mat == 0:
            A(ms[3])
    A(f"v_add_u32 {v(vT2)}, {SX}, {v(vT)}")
    if not OPT["xp"] & 4:
        A(f"ds_write2st64_b32 {v(vT2)}, {v(SM)}, {v(SM+8)} offset0:0 offset1:1")
    A(f"v_xor_b32 {v(vT)}, 512, {v(vT)}")
    A(ms[4])
    A(f"v_add_u32 {v(vDA+2)}, {WR}, {v(cDB)}")
    A(f"v_xor_b32 {v(vDA+3)}, 64, {v(vDA+2)}")
    A(ms[5])
    A("s_waitcnt lgkmcnt(0)")
    A("s_barrier")
    ACC2, HB, W2 = 192, 128, 176
    HD = OPT["hd"]

    def w1(pos):
        return 104 + 8 * pos if pos < 3 else 16 + 8 * (pos - 3)

    def wd_reads(dst, pos):
        sl = WD_SLOT[(pos % 14) // 2]
        hi = sl >= WR
        off = sl - (WR if hi else XR) + (pos % 2) * 2048
        return [f"ds_read_b64_tr_b16 {v(dst+4*cj+2*h,2)}, {v(vDA+2*hi+cj)} offset:{off+h*1024}"
                for cj in range(2) for h in range(2)]
    for mat in range(2):
        A(f"ds_read_b32 {v(SM+8*mat+4)}, {v(vT)} offset:{SX+256*mat}")
    for m in ms[6:]:
        A(m)
    A.wait_vm(mid[0])
    rs = [r for pos in range(4) for r in wd_reads(w1(pos), pos)]
    corr = []
    for j in range(2):
        for rbk in range(2):
            for mat in range(2):
                a = acc(mat, j, rbk)
                corr.append(f"v_mfma_f32_32x32x16_bf16 {v(a,16)}, {v(SM+4*(2*mat+j),4)}, {v(SM+16+4*rbk,4)}, {v(a,16)}")
    nfirst = 4 if OPT["cint"] else 8
    for n in range(nfirst):
        if n == 4:
            A("s_waitcnt lgkmcnt(8)")
        A(corr[n])
        for _ in range(16 // nfirst):
            A(rs.pop(0))
    stamp(2)
    if OPT["eprio"]:
        A(f"s_setprio {OPT['eprio']}")
    if OPT["cint"]:
        A("s_waitcnt lgkmcnt(15)")
    late = corr[nfirst:]
    for j in range(2):
        for rbk in range(2):
            g_, u_ = acc(0, j, rbk), acc(1, j, rbk)
            for ab in range(2):
                b = 8 * ab
                if late:
                    A(late.pop(0))
                for e in range(8):
                    A(f"v_max_f32 {v(g_+b+e)}, 0, {v(g_+b+e)}")
                if late and ab == 0 and False:
                    A(late.pop(0))
                if (OPT["b15"] or OPT["epk"]) and not (OPT["cint"] and j == 0):
                    for e in range(0, 8, 2):
                        A(f"v_pk_mul_f32 {v(g_+b+e,2)}, {v(g_+b+e,2)}, {v(u_+b+e,2)}")
                else:
                    for e in range(8):
                        A(f"v_mul_f32 {v(g_+b+e)}, {v(g_+b+e)}, {v(u_+b+e)}")
                for e in range(4):
                    A(f"v_cvt_pk_bf16_f32 {v(g_+b+e)}, {v(g_+b+2*e)}, {v(g_+b+2*e+1)}")
                hs = A.vmem(f"buffer_store_dwordx4 {v(g_+b,4)}, {v(vL16)}, {s(rWS,4)}, {s(sHA+2*rbk+j)} offen offset:{ab*1024} sc1")
                nst = (j * 2 + rbk) * 2 + ab + 1
                if OPT["mid"] and nst == OPT["mid"]:
                    A("s_waitcnt lgkmcnt(0)")
                    dma_d(7, vD)
                if OPT["mid"] and nst == OPT["mid"] + 2:
                    dma_d(8, vD)
    stamp(6)
    if OPT["eprio"] and not OPT["elong"]:
        A("s_setprio 0")
    A("s_waitcnt lgkmcnt(0)")
    if OPT["b15"]:
        A("s_barrier")
    else:
        lds_wait(vZ, F_WD, 1, vT)
    for pos in range(4, 10):
        for r in wd_reads(w1(pos), pos):
            A(r)
    NM = OPT["nmid"]
    P0_ = 9 if OPT["mid"] else 7
    if OPT["mid"]:
        A("s_waitcnt lgkmcnt(0)")
    for pp in range(P0_, NM + 1):
        if pp == P0_ + OPT["npre"]:
            A(f"s_mov_b32 {s(sONE)}, 1")
            A.wait_vm(hs)
            stamp(3)
            for k in range(7 if OPT["rep"] else 1):
                A(f"s_atomic_add {s(sONE)}, {s(sPC,2)}, {128*k}")
        if pp == 9:
            A("s_waitcnt lgkmcnt(0)") if OPT["npre"] > 2 else None
        if pp == (P0_ + 1 if OPT["allrd"] else 11):
            lds_wait(vZ, F_WD, 2, vT)
            for pos in range(10, 14):
                for r in wd_reads(w1(pos), pos):
                    A(r)
        if pp == 12 and not OPT["allrd"]:
            A("s_waitcnt lgkmcnt(0)")
        if pp == OPT["stat"]:
            lds_set(vZ, F_GO, 1, vT)
        if pp == min(NM, OPT['qat']):
            q_read(sQV, sQ2)
        dma_d(pp, vD)
        if pp == P0_ + 1:
            A("s_waitcnt lgkmcnt(0)")
    assert NM >= 11 or OPT['allrd']
    sHB, sHB2, sH0, sH1 = 78, 79, 80, 81
    A(f"s_mul_i32 {s(sHB)}, {s(sRB64)}, {224*1024}")
    A(f"s_mul_i32 {s(sT0)}, {s(sWAVE)}, {(28 if OPT['kq'] else 14)*1024}")
    A(f"s_add_u32 {s(sHB)}, {s(sHB)}, {s(sT0)}")
    A(f"s_add_u32 {s(sHB)}, {s(sHB)}, {OFF_H}")
    if OPT["kq"]:
        A(f"s_add_u32 {s(sHB2)}, {s(sHB)}, {14*1024}")
        if OPT["hrot"]:
            A(f"s_mul_i32 {s(sT0)}, {s(sGRP)}, {14*1024}")
            A(f"s_add_u32 {s(sHB)}, {s(sHB)}, {s(sT0)}")
            A(f"s_sub_u32 {s(sHB2)}, {s(sHB2)}, {s(sT0)}")
    else:
        A(f"s_lshr_b32 {s(sT0)}, {s(sXCD)}, 2")
        A(f"s_mul_i32 {s(sT0)}, {s(sT0)}, {56*1024}")
        A(f"s_sub_u32 {s(sHB2)}, {s(sHB)}, {s(sT0)}")
        A(f"s_add_u32 {s(sHB2)}, {s(sHB2)}, {56*1024}")
        A(f"s_add_u32 {s(sHB)}, {s(sHB)}, {s(sT0)}")
    vPW = [6, 7, 11, 14]
    A(f"s_add_u32 {s(sT0)}, {s(sW4K)}, {WR}")
    A(f"v_lshl_add_u32 {v(vPW[0])}, {v(vLANE)}, 2, {s(sT0)}")
    for k, rot in ((1, 16), (2, 128), (3, 144)):
        A(f"v_xor_b32 {v(vPW[k])}, {rot}, {v(vPW[0])}")
    poll_scalar(sQ2, 7 if OPT['kq'] else 28, sQV, OPT["ssl"], first_issued=True)
    stamp(4)
    hid = {}

    def h_load(ks):
        p = ks % 14
        if p % 4 == 0:
            A(f"s_add_u32 {s(sH0)}, {s(sHB if ks < 14 else sHB2)}, {p*1024}")
            A(f"s_add_u32 {s(sH1)}, {s(sH0)}, {112*1024}")
        for rbk in range(2):
            hid[ks] = A.vmem(f"buffer_load_dwordx4 {v(HB+8*(ks%HD)+4*rbk,4)}, {v(vL16)}, {s(rWS,4)}, {s(sH0+rbk)} offen offset:{(p%4)*1024} sc1")
    for ks in range(HD):
        h_load(ks)
        if OPT["stat"] == 20 + ks:
            lds_set(vZ, F_GO, 1, vT)
    if OPT["elong"]:
        A("s_setprio 0")
    for ks in range(28):
        A.wait_vm(hid[ks])
        if ks == OPT["goat"]:
            lds_set(vZ, F_GO, 2, vT)
        if OPT["go2"] and ks == OPT["go2"]:
            lds_set(vZ, F_GO, 3, vT)
        if ks >= 13 and ks + 1 < 28:
            for r in wd_reads(W2 + 8 * ((ks + 1) % 2), ks + 1):
                A(r)
        if ks >= 14:
            A(f"s_waitcnt lgkmcnt({4 if ks + 1 < 28 else 0})")
        wb = w1(ks) if ks < 14 else W2 + 8 * (ks % 2)
        for rbk in range(2):
            for cj in ((0, 1) if (rbk == 0 or not OPT["snake"]) else (1, 0)):
                a = ACC2 + 16 * (2 * rbk + cj)
                cc = "0" if ks == 0 else v(a, 16)
                A(f"v_mfma_f32_32x32x16_bf16 {v(a,16)}, {v(HB+8*(ks%HD)+4*rbk,4)}, {v(wb+4*cj,4)}, {cc}")
        if ks + HD < 28:
            h_load(ks + HD)
        if ks % 2 == 0 and NM + 1 + ks // 2 < 14:
            if NM + 1 + ks // 2 == OPT["stat"]:
                lds_set(vZ, F_GO, 1, vT)
            dma_d(NM + 1 + ks // 2, vD)
    stamp(7)
    A("s_nop 8")
    for t in range(4):
        for r in (0, 1, 2, 3, 8, 9, 10, 11):
            A(f"ds_write2st64_b32 {v(vPW[r%4])}, {v(ACC2+16*t+r)}, {v(ACC2+16*t+r+4)} offset0:{64*t+r} offset1:{64*t+r+4}")
        if OPT["tail2"] and t == 2:
            A("s_waitcnt lgkmcnt(8)")
            A("s_barrier")
    A("s_waitcnt lgkmcnt(0)")
    A("s_barrier")
    A("s_branch L_fin")


def xwave():
    A.label("L_xw")
    A.vm = 0
    A.xw = True
    vT, vT2, vT3, vMine, vOther = xT, xT2, xT3, xMine, xOther
    vRow, vC8, vKA, vUA, vB, vG4 = xRow, xC8, xKA, xUA, xB, xG4
    DK = KR_["DK"]
    U0 = 204
    XV, STV, DV, TV, DF = 212, 220, 224, 228, 244
    GV, PK = 16, 40
    vFLG, vFV = 16, 17
    CA, FS = 32, 64

    def sum_partials(regs, part=3):
        prs = [regs[i:i + 2] for i in range(0, len(regs), 2)]
        for n, (va, o) in enumerate(((xPA, 0), (xPA, 11 if OPT['early3'] else 32), (xPA + 1, 0)) if part & 1 else ()):
            for k, pr in enumerate(prs):
                d = GV + 8 * n + 2 * k
                if len(pr) == 2:
                    A(f"ds_read2st64_b32 {v(d,2)}, {v(va)} offset0:{o+pr[0]} offset1:{o+pr[1]}")
                else:
                    A(f"ds_read_b32 {v(d)}, {v(va)} offset:{(o+pr[0])*256}")
        if not part & 2:
            return
        A("s_waitcnt lgkmcnt(0)")
        for n in range(3):
            for k, r in enumerate(regs):
                A(f"v_add_f32 {v(DK+r)}, {v(DK+r)}, {v(GV+8*n+k)}")

    def tb_lo():
        A(f"ds_write2_b32 {v(xTA)}, {v(DK)}, {v(DK+1)} offset0:0 offset1:1")
        A(f"ds_write2_b32 {v(xTA)}, {v(DK+2)}, {v(DK+3)} offset0:2 offset1:3")
        A(f"ds_write2_b32 {v(xTA+1)}, {v(DK+4)}, {v(DK+5)} offset0:0 offset1:1")

    def tb_hi():
        A(f"ds_write2_b32 {v(xTA)}, {v(DK+6)}, {v(DK+7)} offset0:0 offset1:1")
        A(f"ds_write2_b32 {v(xTA+1)}, {v(DK+8)}, {v(DK+9)} offset0:0 offset1:32")
        if OPT["early3"]:
            A(f"s_sub_u32 {s(sT0)}, {s(sTBc)}, 4")
            A(f"v_mov_b32 {v(vT)}, {s(sT0)}")
            A(f"v_mov_b32 {v(vT2)}, 0")
        A("s_mov_b64 exec, 1")
        A(f"ds_write_b32 {v(xTA+1)}, {v(DK+10)} offset:{128*4}")
        if OPT["early3"]:
            A(f"ds_write_b32 {v(vT)}, {v(vT2)}")
        A("s_mov_b64 exec, -1")

    def i1_lo():
        sum_partials([0, 1, 2, 3, 4, 5])
        if not OPT["early3"]:
            tb_lo()

    def i1_hi():
        sum_partials([6, 7, 8, 9, 10])
        if not OPT["early3"]:
            tb_hi()

    def pad_zero():
        A(f"v_min_u32 {v(vT3)}, 29, {v(vLANE)}")
        A(f"v_lshl_add_u32 {v(vT3)}, {v(vT3)}, 4, {s(sUBc)}")
        A(f"ds_write_b128 {v(vT3)}, {v(GV+8,4)}")

    def gather(ph, part=7):
        for k in (range(17) if ph else (0, 8, 16)):
            if part & (1 if k < 9 else 4):
                A(f"ds_read_b32 {v(GV+k)}, {v(xGA+k)}")
        if not part & 2:
            return
        A("s_waitcnt lgkmcnt(0)")
        src = list(range(GV, GV + 17)) if ph else [GV] * 4 + [GV + 8] * 7 + [GV + 16] * 6
        for cp in range(2):
            for k in range(8):
                A(f"v_cvt_pk_bf16_f32 {v(PK+8*cp+k)}, {v(src[2*k+cp])}, {v(src[2*k+cp+1])}")

    vK1, vK2 = 22, 23

    def kr_addr():
        A(f"s_lshl_b32 {s(sT0)}, {s(sPH)}, 11")
        A(f"s_add_u32 {s(sT1)}, {s(sT0)}, {s(sKR)}")
        A(f"v_lshl_add_u32 {v(vK1)}, {v(vLANE)}, 5, {s(sT1)}")
        for i in range(4):
            A(f"v_mov_b32 {v(GV+8+i)}, 0")
        A(f"s_mul_i32 {s(sT0)}, {s(sPH)}, {KR_PITCH}")
        A(f"s_add_u32 {s(sT0)}, {s(sT0)}, {s(sKR)}")
        A(f"v_and_b32 {v(vK2)}, 1, {v(vLANE)}")
        A(f"v_lshl_add_u32 {v(vK2)}, {v(vK2)}, 4, {s(sT0)}")

    def kr_one(n):
        if n < 4:
            A(f"ds_write_b128 {v(vK1)}, {v(PK+4*n,4)} offset:{(n//2)*KR_PITCH+16*(n%2)}")
        else:
            A("s_mov_b64 exec, 3")
            A(f"ds_write_b128 {v(vK2)}, {v(GV+8,4)} offset:4096")
            A("s_mov_b64 exec, -1")

    def kr_write(cp):
        kr_one(2 * cp)
        kr_one(2 * cp + 1)
        if cp:
            kr_one(4)

    def conv_setup():
        A(f"v_and_b32 {v(vB)}, 15, {v(vLANE)}")
        A(f"v_lshrrev_b32 {v(vG4)}, 4, {v(vLANE)}")
        A(f"v_sub_u32 {v(vT)}, 2031, {v(vB)}")
        A(f"v_and_b32 {v(vT2)}, 1, {v(vT)}")
        A(f"v_mul_u32_u24 {v(vT2)}, {KR_PITCH}, {v(vT2)}")
        A(f"v_lshrrev_b32 {v(vT)}, 1, {v(vT)}")
        A(f"v_lshl_add_u32 {v(vT)}, {v(vT)}, 2, {v(vT2)}")
        A(f"v_lshl_add_u32 {v(vT)}, {v(vG4)}, 4, {v(vT)}")
        A(f"s_lshl_b32 {s(sT0)}, {s(sPH)}, 8")
        A(f"s_sub_u32 {s(sT1)}, {s(sKR)}, {s(sT0)}")
        A(f"v_add_u32 {v(vT)}, {s(sT1)}, {v(vT)}")
        for p in range(4):
            A(f"v_subrev_u32 {v(vKA+p)}, {512*(2*p+1)+192}, {v(vT)}")
        A(f"s_sub_u32 {s(sT1)}, {s(sUBc)}, {s(sT0)}")
        A(f"s_add_u32 {s(sT1)}, {s(sT1)}, {448-192}")
        A(f"v_lshl_add_u32 {v(vUA)}, {v(vB)}, 5, {s(sT1)}")
        A(f"v_lshl_add_u32 {v(vUA)}, {v(vG4)}, 4, {v(vUA)}")

    ids = {}

    def t_loads():
        A(f"v_bfe_u32 {v(vRow)}, v0, 3, 5")
        A(f"v_and_b32 {v(vC8)}, 7, v0")
        A(f"v_mul_u32_u24 {v(xFO)}, 896, {v(vRow)}")
        A(f"v_lshl_add_u32 {v(xFO)}, {v(vC8)}, 4, {v(xFO)}")
        A(f"s_mul_i32 {s(sT1)}, {s(sRB64)}, {64*896}")
        A(f"s_lshl_b32 {s(sT2)}, {s(sCB)}, 7")
        A(f"s_add_u32 {s(sT1)}, {s(sT1)}, {s(sT2)}")
        A(f"v_add_u32 {v(xFO)}, {s(sT1)}, {v(xFO)}")
        A(f"v_add_u32 {v(xFO+1)}, {32*896}, {v(xFO)}")
        A.vmem(f"global_load_dwordx4 {v(XV,4)}, {v(xFO)}, {s(pX,2)}")
        A.vmem(f"global_load_dwordx4 {v(XV+4,4)}, {v(xFO+1)}, {s(pX,2)}")
        A(f"v_lshl_add_u32 {v(vT)}, {v(vC8)}, 4, {s(sT2)}")
        A.vmem(f"global_load_dwordx4 {v(DV,4)}, {v(vT)}, {s(pDS,2)}")
        A(f"v_lshrrev_b32 {v(vT)}, 2, {v(vC8)}")
        A(f"v_lshlrev_b32 {v(xFP)}, 14, {v(vT)}")
        A(f"v_lshrrev_b32 {v(vT)}, 3, {v(vRow)}")
        A(f"v_lshl_add_u32 {v(xFP)}, {v(vT)}, 10, {v(xFP)}")
        A(f"v_and_b32 {v(vT)}, 3, {v(vRow)}")
        A(f"v_lshl_add_u32 {v(xFP)}, {v(vT)}, 8, {v(xFP)}")
        A(f"v_lshrrev_b32 {v(vT)}, 1, {v(vRow)}")
        A(f"v_lshrrev_b32 {v(vT2)}, 2, {v(vRow)}")
        A(f"v_xor_b32 {v(vT)}, {v(vT)}, {v(vT2)}")
        A(f"v_and_b32 {v(vT)}, 1, {v(vT)}")
        A(f"v_lshl_add_u32 {v(xFP)}, {v(vT)}, 7, {v(xFP)}")
        A(f"v_and_b32 {v(vT)}, 3, {v(vC8)}")
        A(f"v_lshl_add_u32 {v(xFP)}, {v(vT)}, 5, {v(xFP)}")
        A(f"v_and_b32 {v(vT)}, 1, {v(vRow)}")
        A(f"v_lshl_add_u32 {v(xFP)}, {v(vT)}, 4, {v(xFP)}")
        A(f"v_add_u32 {v(xFP)}, {WR}, {v(xFP)}")
        A(f"v_xor_b32 {v(xFP+1)}, 16, {v(xFP)}")

    def h1_issue():
        A(f"v_or_b32 {v(vFLG)}, 32, {v(vLANE)}")
        A(f"v_lshlrev_b32 {v(vFLG)}, 2, {v(vFLG)}")
        ids["h1"] = A.vmem(f"global_load_dword {v(vFV)}, {v(vFLG)}, {s(pDBG,2)} sc1")

    def h1_check():
        ok = A.new("h1")
        A.wait_vm(ids["h1"])
        A(f"v_cmp_ne_u32 vcc, 0, {v(vFV)}")
        A("s_nop 0")
        A("s_cmp_eq_u64 vcc, exec")
        A(f"s_cbranch_scc1 {ok}")
        A("s_sleep 12")
        poll_global(vFLG, vFV, pDBG, sleep=20)
        A.label(ok)
        stamp(9)

    def u_loads():
        A(f"s_lshl_b32 {s(sT0)}, {s(sPH)}, 11")
        A(f"s_lshl_b32 {s(sT1)}, {s(sCH)}, 12")
        A(f"s_add_u32 {s(sT1)}, {s(sT1)}, {s(sT0)}")
        A(f"v_lshlrev_b32 {v(vT)}, 4, {v(vLANE)}")
        A.vmem(f"buffer_load_dwordx4 {v(U0,4)}, {v(vT)}, {s(rWS,4)}, {s(sT1)} offen sc1")
        A.vmem(f"buffer_load_dwordx4 {v(U0+4,4)}, {v(vT)}, {s(rWS,4)}, {s(sT1)} offen offset:1024 sc1")
        A(f"s_lshl_b32 {s(sT1)}, {s(sRB64)}, 9")
        A(f"s_add_u32 {s(sT1)}, {s(sT1)}, {OFF_ST}")
        A(f"v_lshlrev_b32 {v(vT)}, 3, {v(vRow)}")
        A.vmem(f"buffer_load_dwordx2 {v(STV,2)}, {v(vT)}, {s(rWS,4)}, {s(sT1)} offen sc1")
        ids["u"] = A.vmem(f"buffer_load_dwordx2 {v(STV+2,2)}, {v(vT)}, {s(rWS,4)}, {s(sT1)} offen offset:256 sc1")
        A(f"s_add_u32 {s(sT1)}, {s(sT0)}, {s(sUBc)}")
        A(f"v_lshl_add_u32 {v(vT2)}, {v(vLANE)}, 4, {s(sT1)}")

    def u_write():
        A.wait_vm(ids["u"])
        A(f"ds_write_b128 {v(vT2)}, {v(U0,4)} offset:480")
        A(f"ds_write_b128 {v(vT2)}, {v(U0+4,4)} offset:{480+1024}")

    def t_compute():
        for d in range(4):
            A(f"v_lshlrev_b32 {v(DF+2*d)}, 16, {v(DV+d)}")
            A(f"v_and_b32 {v(DF+2*d+1)}, 0xffff0000, {v(DV+d)}")
        for i in range(2):
            A(f"v_lshlrev_b32 {v(STV+2*i)}, 16, {v(STV+2*i)}")
            for d in range(4):
                A(f"v_lshlrev_b32 {v(TV+8*i+2*d)}, 16, {v(XV+4*i+d)}")
                A(f"v_and_b32 {v(TV+8*i+2*d+1)}, 0xffff0000, {v(XV+4*i+d)}")
            for k in range(8):
                A(f"v_add_f32 {v(vT3)}, {v(TV+8*i+k)}, {v(STV+2*i)}")
                A(f"v_mul_f32 {v(vT3)}, {v(vT3)}, {v(STV+2*i+1)}")
                A(f"v_fmac_f32 {v(TV+8*i+k)}, {v(DF+k)}, {v(vT3)}")
            A(f"v_mul_f32 {v(STV+2*i+1)}, {v(STV+2*i+1)}, {v(STV+2*i+1)}")

    def fa(st, q): return FS + 64 * st + 4 * q
    def fb_(st, x): return FS + 64 * st + 32 + 4 * x

    def creads(st, kp):
        r = []
        for q in range(8):
            o = 128 * (1 - (q & 1)) + 16 * (3 - kp)
            r.append(f"ds_read_b128 {v(fb_(st,q),4)}, {v(vUA)} offset:{512*q+64*(3-kp)}")
            r.append(f"ds_read2_b32 {v(fa(st,q),2)}, {v(vKA+q//2)} offset0:{o} offset1:{o+1}")
            r.append(f"ds_read2_b32 {v(fa(st,q)+2,2)}, {v(vKA+q//2)} offset0:{o+2} offset1:{o+3}")
        return r

    def warm_tail():
        A(f"s_min_u32 {s(sT0)}, {s(sXW)}, {OPT['nm2']-1}")
        A(f"s_add_u32 {s(sT0)}, {s(sT0)}, {7-OPT['nm2']}")
        A(f"s_and_b32 {s(sT1)}, {s(sJ)}, 3")
        A(f"s_mul_i32 {s(sT1)}, {s(sT1)}, 7")
        A(f"s_add_u32 {s(sT0)}, {s(sT0)}, {s(sT1)}")
        A(f"s_mul_i32 {s(sT0)}, {s(sT0)}, 7")
        A(f"s_add_u32 {s(sT0)}, {s(sT0)}, {s(sCB)}")
        A(f"s_lshl_b32 {s(sT0)}, {s(sT0)}, 13")
        A(f"v_lshl_add_u32 {v(vT3)}, {v(vLANE)}, 7, {s(sT0)}")
        A(f"s_cmp_lt_u32 {s(sXW)}, {OPT['nm2']}")
        A("s_cselect_b64 exec, -1, 1")
        A.vmem(f"global_load_dword v203, {v(vT3)}, {s(pWD,2)}")
        A("s_mov_b64 exec, -1")

    lg = lambda: A("s_waitcnt lgkmcnt(0)")
    pre = {b: [] for b in range(15)}
    post = {b: [] for b in range(15)}
    post[0] = [lg]
    post[1] = [lambda: by_ph(i1_lo, i1_hi)]
    post[2] = [lg]
    post[3] = [lambda: by_ph(lambda: gather(0), lambda: gather(1)), kr_addr]
    pre[4] = [lambda: kr_write(0)]
    pre[5] = [lambda: kr_write(1)]
    post[6] = [conv_setup]
    post[7] = [t_loads]
    if OPT["early3"]:
        e0 = OPT["early3"]
        for b in range(1, 9):
            pre[b], post[b] = [], []
        post[e0] = [lambda: by_ph(i1_lo, i1_hi)]
        pre[e0 + 1] = [lambda: by_ph(tb_lo, tb_hi)]
        post[e0 + 2] = [conv_setup, lg]
        post[e0 + 3] = [lambda: by_ph(lambda: gather(0), lambda: gather(1)), kr_addr]
        pre[e0 + 4] = [lambda: kr_write(0)]
        pre[e0 + 5] = [lambda: kr_write(1)]
        pre[e0 + 6] = [pad_zero]
        post[e0 + 6] = [t_loads]
        assert e0 + 6 < H1_BAR - 1
    LO, HI = [0, 1, 2, 3, 4, 5], [6, 7, 8, 9, 10]
    if OPT["fine"] and OPT["early3"]:
        for b in range(1, 10):
            pre[b], post[b] = [], []
        post[1] = [lambda: by_ph(lambda: sum_partials(LO, 1), lambda: sum_partials(HI, 1))]
        post[2] = [lambda: by_ph(lambda: sum_partials(LO, 2), lambda: sum_partials(HI, 2))]
        pre[3] = [lambda: by_ph(tb_lo, tb_hi)]
        post[3] = [conv_setup, lg]
        post[4] = [lambda: by_ph(lambda: gather(0, 1), lambda: gather(1, 1))]
        post[5] = [lambda: by_ph(lambda: gather(0, 4), lambda: gather(1, 4))]
        post[6] = [lambda: by_ph(lambda: gather(0, 2), lambda: gather(1, 2)), kr_addr]
        pre[7] = [lambda: kr_write(0)]
        pre[8] = [lambda: kr_write(1)]
        pre[9] = [pad_zero]
        post[9] = [t_loads]
    elif OPT["fine"]:
        post[3] = [lambda: by_ph(lambda: gather(0, 1), lambda: gather(1, 1))]
        post[4] = [lambda: by_ph(lambda: gather(0, 4), lambda: gather(1, 4))]
        post[5] = [lambda: by_ph(lambda: gather(0, 2), lambda: gather(1, 2)), kr_addr]
        pre[4], pre[5] = [], []
        pre[6] = [lambda: kr_write(0)]
        pre[7] = [lambda: kr_write(1)]
        post[6], post[7], post[8], post[9] = [], [], [conv_setup], [t_loads]
        if OPT["fine"] in (3, 4):
            tgt = pre if OPT["fine"] == 3 else post
            pre[6], pre[7] = [], []
            for n in range(5):
                tgt[6 + n] = tgt[6 + n] + [lambda n=n: kr_one(n)]
        if OPT["fine"] >= 6:
            pre[6], pre[7] = [], []
            if OPT["fine"] != 15:
                pre[min(12, OPT["fine"]) if OPT["fine"] == 16 else OPT["fine"]] = [lambda: kr_write(0), lambda: kr_write(1)]
        if OPT["fine"] == 2:
            pre[1], post[1] = post[1], []
            pre[3], post[3] = post[3], []
            pre[4], post[4] = post[4], []
    post[H1_BAR - 1] += [h1_issue]
    post[H1_BAR] += [h1_check, u_loads]
    pre[max(H1_BAR + 2, OPT['uw'])] += [u_write]
    post[13] += [lg]
    if OPT["nm2"] and OPT["wat"] < 15:
        post[OPT["wat"]] += [warm_tail]
    assert H1_BAR + 2 <= 13
    cr0 = lambda: [A(r) for r in creads(0, 0)]
    post[14] += [cr0, lambda: A.wait_vm(did[1])]
    if OPT["fine"] >= 15:
        pre[13] = []
        post[13] = post[13][1:]
        post[14] = [f for f in post[14] if f is not cr0]
    if OPT["xp"] & 16:
        pre[6], pre[7] = [], []
    if OPT["xp"] & 32:
        post[3], post[4] = [], []
    if OPT["xp"] & 64:
        post[1] = []
    if OPT["xp"] & 128:
        post[5] = [kr_addr]
    if OPT["xp"] & 2:
        pre[13] = []
        post[14] = post[14][1:]
    if OPT["xp"] & 8:
        pre[13] = []
        post[H1_BAR] = [h1_check]
    for b in range(15):
        if pre[b] and OPT["wpri"] == 1:
            A("s_setprio 3")
        for f in pre[b]:
            f()
        if pre[b] and OPT["wpri"] == 1:
            A("s_setprio 0")
        if b == 1 and OPT["wpri"] == 2:
            A("s_setprio 3")
        if OPT["wdh"] == 10 + b:
            A.vmem(f"global_load_dword {v(xPF+5)}, {v(xPF+4)}, {s(pWD,2)}")
        if OPT["early3"]:
            if b == 1:
                dma_w(3); dma_x(2, (0, 1))
            if b == 2:
                dma_x(2, (2, 3)); dma_w(4)
        else:
            if b == 2:
                dma_w(3); dma_w(4); dma_x(2, (0, 1))
            if b == 3:
                dma_x(2, (2, 3))
        if 3 <= b <= 11:
            dma_w(b + 2)
        if 3 <= b <= 10:
            dma_x((b - 3) // 2 + 3, (0, 1) if (b - 3) % 2 == 0 else (2, 3))
        for pp in [{11: [0], 12: [1], 13: [2, 3], 14: [4]}, {11: [0], 12: [1], 13: [2], 14: [3, 4]}, {11: [0], 12: [1], 13: [2], 14: [3]}][OPT['psch']].get(b, []):
            if OPT["xp"] & 1:
                did[pp] = A.vm
            else:
                dma_d(pp, vDO)
        if b == OPT["ib"]:
            STAMP_ON[0] = True
            stamp(3)
        if OPT["xs"] and b >= 1:
            c = b - 1
            for ks in range(2):
                for mat in range(2):
                    for h in range(2):
                        A(f"ds_read_b64_tr_b16 {v(140+8*ks+4*mat+2*h,2)}, v139 offset:{(c%4)*16384+ks*4096+mat*8192+h*1024}")
        for f in post[b]:
            f()
        if OPT["xs"] == 2 and b >= 1:
            A("s_waitcnt lgkmcnt(0)")
            for ks in range(2):
                for mat in range(2):
                    A(f"v_mfma_f32_16x16x32_bf16 {v(160+4*mat,4)}, {v(156,4)}, {v(140+8*ks+4*mat,4)}, {v(160+4*mat,4)}")
        if 3 <= b < 14:
            need = wid[b]
            if b % 2 == 0:
                need = max(need, xid[b // 2])
            A.wait_vm(need)
        if b == OPT["ib"]:
            stamp(4)
        if OPT["xs"] == 1 and b >= 1:
            A("s_waitcnt lgkmcnt(0)")
            for ks in range(2):
                for mat in range(2):
                    A(f"v_mfma_f32_16x16x32_bf16 {v(160+4*mat,4)}, {v(156,4)}, {v(140+8*ks+4*mat,4)}, {v(160+4*mat,4)}")
        A("s_barrier")
        if b == OPT["ib"] - 1:
            STAMP_ON[0] = True
            stamp(2)
        if b == OPT["ib"]:
            stamp(6)
            STAMP_ON[0] = False
        if b == 0:
            stamp(1)
            if OPT["xs"]:
                A(f"v_bfe_u32 v137, {v(vLANE)}, 2, 2")
                A(f"v_lshrrev_b32 v138, 5, {v(vLANE)}")
                A("v_lshl_add_u32 v138, v138, 3, v137")
                A("v_lshlrev_b32 v138, 8, v138")
                A(f"v_bfe_u32 v139, {v(vLANE)}, 4, 1")
                A("v_lshl_add_u32 v138, v139, 5, v138")
                A(f"v_and_b32 v139, 3, {v(vLANE)}")
                A("v_lshl_add_u32 v138, v139, 3, v138")
                A(f"v_xor_b32 v137, {s(sXW)}, v137")
                A("v_lshl_add_u32 v139, v137, 6, v138")
                A(f"v_add_u32 v139, {WR}, v139")
                for i in range(12):
                    A(f"v_mov_b32 {v(156+i)}, 0")
                A("s_mov_b32 exec_lo, 0x00100001")
                A("s_mov_b32 exec_hi, 0x00100001")
                for i in range(4):
                    A(f"v_mov_b32 {v(156+i)}, 0x3f803f80")
                A("s_mov_b64 exec, -1")
    stamp(2)
    if OPT["wpri"] == 2:
        A("s_setprio 0")
    if OPT["psch"] == 2:
        dma_d(4, vDO)
    dma_d(5, vDO)
    dma_d(6, vDO)
    if OPT["nm2"] and OPT["wat"] == 15:
        warm_tail()
    if OPT["fine"] >= 15:
        u_write()
        if OPT["fine"] == 15:
            kr_write(0)
            kr_write(1)
        lds_set(vMine, F_PAIR, 1, vT)
        if OPT["wd2e"] == 1:
            A.wait_vm(did[6])
            lds_set(vMine, F_WD, 2, vT)
        else:
            A.wait_vm(did[4])
            lds_set(vMine, F_WD, 1, vT)
        lds_wait(vOther, F_PAIR, 1, vT)
        cr0()
        if OPT["wd2e"] == 2:
            A.wait_vm(did[6])
            lds_set(vMine, F_WD, 2, vT)
    if OPT["b15"]:
        A.wait_vm(did[4])
        A("s_barrier")
        stamp(8)
    for kp in range(4):
        st = kp % 2
        if kp == OPT["cvp"]:
            A("s_setprio 2")
        A("s_waitcnt lgkmcnt(0)")
        rs = creads(1 - st, kp + 1) if kp < 3 else []
        for q in range(8):
            for t in range(q, 8):
                cc = "0" if (kp == 0 and q == 0) else v(CA + 4 * t, 4)
                A(f"v_mfma_f32_16x16x32_bf16 {v(CA+4*t,4)}, {v(fa(st,q),4)}, {v(fb_(st,t-q),4)}, {cc}")
                if rs:
                    A(rs.pop(0))
            if OPT["b15"] or OPT["fine"] >= 15:
                if kp == 0 and q == OPT.get("wdq", 4) and not OPT["wd2e"]:
                    A.wait_vm(did[6])
                    lds_set(vMine, F_WD, 2, vT)
            elif kp in (0, 1) and q == 4:
                A.wait_vm(did[4] if kp == 0 else did[6])
                lds_set(vMine, F_WD, kp + 1, vT)
    stamp(3)
    A(f"s_lshl_b32 {s(sT0)}, {s(sPH)}, 12")
    A(f"s_add_u32 {s(sT0)}, {s(sT0)}, {s(sKR)}")
    A(f"v_lshl_add_u32 {v(vT2)}, {v(vLANE)}, 4, {s(sT0)}")
    A(f"s_xor_b32 {s(sT1)}, {s(sPH)}, 1")
    A(f"s_lshl_b32 {s(sT1)}, {s(sT1)}, 12")
    A(f"s_add_u32 {s(sT1)}, {s(sT1)}, {s(sKR)}")
    A(f"v_lshl_add_u32 {v(vT3)}, {v(vLANE)}, 4, {s(sT1)}")
    A("s_setprio 3")

    def ex_lo():
        for t in range(4):
            A(f"ds_write_b128 {v(vT2)}, {v(CA+16+4*t,4)} offset:{EX_OFF+1024*t}")

    def ex_hi():
        for t in range(4):
            A(f"ds_write_b128 {v(vT2)}, {v(CA+4*t,4)} offset:{EX_OFF+1024*t}")
        for r in range(16):
            A(f"v_mov_b32 {v(CA+r)}, {v(CA+16+r)}")
    by_ph(ex_lo, ex_hi)
    lds_set(vMine, F_PAIR, 2, vT)
    lds_wait(vOther, F_PAIR, 2, vT)
    for t in range(4):
        A(f"ds_read_b128 {v(FS+4*t,4)}, {v(vT3)} offset:{EX_OFF+1024*t}")
    A(f"v_and_b32 {v(vT)}, 1, {v(vG4)}")
    A(f"v_lshlrev_b32 {v(vT)}, 9, {v(vT)}")
    A(f"v_lshl_add_u32 {v(vT)}, {v(vB)}, 5, {v(vT)}")
    A(f"v_lshrrev_b32 {v(vT2)}, 1, {v(vG4)}")
    A(f"v_lshl_add_u32 {v(vT)}, {v(vT2)}, 4, {v(vT)}")
    A(f"s_lshl_b32 {s(sT0)}, {s(sCH)}, 12")
    A(f"s_lshl_b32 {s(sT1)}, {s(sPH)}, 11")
    A(f"s_add_u32 {s(sT0)}, {s(sT0)}, {s(sT1)}")
    A(f"s_add_u32 {s(sT0)}, {s(sT0)}, {OFF_Y}")
    A("s_waitcnt lgkmcnt(0)")
    for r in range(16):
        A(f"v_add_f32 {v(CA+r)}, {v(CA+r)}, {v(FS+r)}")
    YP = 100
    for pr in range(2):
        for tt in range(2):
            for d in range(2):
                src = CA + 4 * (2 * pr + tt) + 2 * d
                A(f"v_cvt_pk_bf16_f32 {v(YP+4*pr+2*tt+d)}, {v(src)}, {v(src+1)}")
    A("s_nop 1")
    for pr in range(2):
        A(f"v_permlane16_swap_b32 {v(YP+4*pr)}, {v(YP+4*pr+2)}")
        A(f"v_permlane16_swap_b32 {v(YP+4*pr+1)}, {v(YP+4*pr+3)}")
    if OPT["stat"]:
        t_compute()
        lds_wait(vMine, F_GO, 1, vT2, sleep=1)
    stamp(8)
    for pr in range(0 if OPT["noy"] & 1 else 2):
        A(f"buffer_store_dwordx4 {v(YP+4*pr,4)}, {v(vT)}, {s(rWS,4)}, {s(sT0)} offen offset:{1024*pr} sc1")
    if not OPT["stat"]:
        t_compute()
    A(f"s_lshr_b32 {s(sT0)}, {s(sCH)}, 4")
    A(f"s_lshl_b32 {s(sT0)}, {s(sT0)}, 1")
    A(f"s_add_u32 {s(sT0)}, {s(sT0)}, {s(sPH)}")
    A(f"s_lshl_b32 {s(sT0)}, {s(sT0)}, 7")
    A(f"s_add_u32 {s(sT0)}, {s(sT0)}, {OFF_FL+32768}")
    A(f"s_mov_b32 {s(sT1)}, 1")
    A("s_waitcnt vmcnt(0)")
    A(f"s_atomic_add {s(sT1)}, {s(pWS,2)}, {s(sT0)}")
    stamp(4)
    YV = 64
    A(f"s_lshl_b32 {s(sT2)}, {s(sCB)}, 2")
    A(f"s_add_u32 {s(sT2)}, {s(sT2)}, {s(sXW)}")
    A(f"s_lshl_b32 {s(sT2)}, {s(sT2)}, 1")
    A(f"s_lshr_b32 {s(sT3)}, {s(sRB64)}, 4")
    A(f"s_add_u32 {s(sT2)}, {s(sT2)}, {s(sT3)}")
    A(f"s_lshl_b32 {s(sT2)}, {s(sT2)}, 7")
    A(f"s_add_u32 {s(sT2)}, {s(sT2)}, {OFF_FL+32768}")
    if OPT["goat"] >= 0:
        lds_wait(vMine, F_GO, 2, vT2, sleep=2)
    else:
        A("s_waitcnt lgkmcnt(0)")
    stamp(6)
    poll_scalar(sT2, 16, sT3, OPT.get('ysl', 4))
    stamp(7)
    A(f"s_lshl_b32 {s(sT0)}, {s(sCB)}, 2")
    A(f"s_add_u32 {s(sT0)}, {s(sT0)}, {s(sXW)}")
    A(f"s_lshl_b32 {s(sT0)}, {s(sT0)}, 16")
    A(f"s_lshl_b32 {s(sT1)}, {s(sRB64)}, 7")
    A(f"s_add_u32 {s(sT0)}, {s(sT0)}, {s(sT1)}")
    A(f"s_add_u32 {s(sT0)}, {s(sT0)}, {OFF_Y}")
    A(f"s_add_u32 {s(sT1)}, {s(sT0)}, {8*4096}")
    A(f"v_lshrrev_b32 {v(vT)}, 3, {v(vLANE)}")
    A(f"v_lshlrev_b32 {v(vT)}, 12, {v(vT)}")
    A(f"v_lshl_add_u32 {v(vT)}, {v(vC8)}, 4, {v(vT)}")
    if OPT["go2"]:
        lds_wait(vMine, F_GO, 3, vT2, sleep=1)
    if not OPT["noy"] & 2:
        A(f"buffer_load_dwordx4 {v(YV,4)}, {v(vT)}, {s(rWS,4)}, {s(sT0)} offen sc1")
        A(f"buffer_load_dwordx4 {v(YV+4,4)}, {v(vT)}, {s(rWS,4)}, {s(sT1)} offen sc1")
    A(f"s_mul_i32 {s(sT0)}, {s(sXW)}, {YS_SZ}")
    A(f"s_add_u32 {s(sT0)}, {s(sT0)}, {UB}")
    A(f"v_lshl_add_u32 {v(vT)}, {v(vLANE)}, 4, {s(sT0)}")
    A(f"v_lshrrev_b32 {v(vT2)}, 1, {v(vC8)}")
    A(f"v_mul_u32_u24 {v(vT2)}, {YS_SZ}, {v(vT2)}")
    A(f"v_and_b32 {v(vT3)}, 1, {v(vC8)}")
    A(f"v_mul_u32_u24 {v(vT3)}, 1040, {v(vT3)}")
    A(f"v_add_u32 {v(vT2)}, {v(vT2)}, {v(vT3)}")
    A(f"v_lshl_add_u32 {v(vT2)}, {v(vRow)}, 1, {v(vT2)}")
    for k in range(16):
        A(f"v_mov_b32 {v(YV+8+k)}, 0")
    A(f"v_and_b32 {v(vOther)}, 3, {v(vLANE)}")
    A(f"v_lshlrev_b32 {v(vOther)}, 2, {v(vOther)}")
    A("s_waitcnt vmcnt(0)")
    A(f"ds_write_b128 {v(vT)}, {v(YV,4)}")
    A(f"ds_write_b128 {v(vT)}, {v(YV+4,4)} offset:1040")
    lds_set(vMine, F_Y, 1, vT)
    lds_wait(vOther, F_Y, 1, vT, sleep=1, every=True)
    for i in range(2):
        for k in range(8):
            A(f"ds_read_u16_d16_hi {v(YV+8+8*i+k)}, {v(vT2)} offset:{UB+128*k+64*i}")
    A("s_waitcnt lgkmcnt(0)")
    for k in range(16):
        A(f"v_add_f32 {v(TV+k)}, {v(TV+k)}, {v(YV+8+k)}")
    stamp(10)
    A("s_barrier")
    PB = 64

    def preads(i):
        for q in range(4):
            for h in range(2):
                A(f"ds_read_b128 {v(PB+32*i+8*q+4*h,4)}, {v(xFP+h)} offset:{32768*i+4096*q}")
    preads(0)
    if OPT["tail2"]:
        A("s_barrier")
    preads(1)
    for i in range(2):
        P = PB + 32 * i
        A(f"s_waitcnt lgkmcnt({12-8*i})")
        for e in range(0, 8, 2):
            A(f"v_pk_add_f32 {v(P+e,2)}, {v(P+e,2)}, {v(P+8+e,2)}")
        A(f"s_waitcnt lgkmcnt({8-8*i})")
        for e in range(0, 8, 2):
            A(f"v_pk_add_f32 {v(P+16+e,2)}, {v(P+16+e,2)}, {v(P+24+e,2)}")
        for e in range(0, 8, 2):
            A(f"v_pk_add_f32 {v(P+e,2)}, {v(P+e,2)}, {v(P+16+e,2)}")
        for e in range(0, 8, 2):
            A(f"v_pk_fma_f32 {v(P+e,2)}, {v(P+e,2)}, {v(STV+2*i,2)}, {v(TV+8*i+e,2)} op_sel:[0,1,0] op_sel_hi:[1,1,1]")
        for e in range(4):
            A(f"v_cvt_pk_bf16_f32 {v(P+8+e)}, {v(P+2*e)}, {v(P+2*e+1)}")
        A(f"global_store_dwordx4 {v(xFO+i)}, {v(P+8,4)}, {s(pOUT,2)}{['',' sc1',' nt',' sc0 sc1'][OPT['outsc']]}")
    if OPT["diag"]:
        A("s_waitcnt vmcnt(0)")


def main():
    hdr = open("cdna_kernels/" + NAME + ".s.ref").read().split("\n")
    out = [l for l in hdr if l.startswith(";") and "@launch" not in l and "Override" not in l and "grid=ceil" not in l]
    out.append(f"; @launch grid=(256,1,1) block=(512,1,1) lds={LDS_BYTES}")
    out += [
        "; One fused launch, 256 workgroups x 8 waves (written by my own generator script).",
        ";  wg 0..31   : LayerNorm of 64 rows each -> u^T (bf16), (-mean, 1/std); clear hand-off counters; warm L2 with W_down",
        ";  wg 32..255 : phase 0  all waves build the S4D kernel K of 2 channels (factor tables exp(z*a), exp(z*b), one MFMA tile)",
        ";               GEMM1    waves 0-3: 128x128 tile of x*Wg, x*Wu (mean folded in by one extra MFMA step), waves 4-7 stream LDS",
        ";               waves 0-3: h = relu(g)*u -> ws, then GEMM2 64x64 tile (k split over waves)",
        ";               waves 4-7: Toeplitz MFMA convolution -> ws, then out = x + y + D*xn + r^2*(h*Wd)",
        "; Hand-offs: write-through stores, vmcnt drain, then a flag/counter; consumers poll, then read with sc1 loads.",
    ]
    out.append('.amdgcn_target "amdgcn-amd-amdhsa--gfx950"')
    out.append(".text")
    out.append(f".globl {NAME}_kernel")
    out.append(".p2align 8")
    out.append(f".type {NAME}_kernel,@function")
    out.append(f"{NAME}_kernel:")
    prologue()
    phase0()
    cwave()
    side()
    xwave()
    final()
    out += A.l
    out.append('.section .rodata,"a"')
    out.append(".p2align 6")
    out.append(f".amdhsa_kernel {NAME}_kernel")
    out.append("  .amdhsa_next_free_vgpr 256")
    out.append("  .amdhsa_next_free_sgpr 102")
    out.append("  .amdhsa_accum_offset 256")
    out.append("  .amdhsa_group_segment_fixed_size 0")
    out.append("  .amdhsa_kernarg_size 112")
    out.append("  .amdhsa_user_sgpr_count 2")
    out.append("  .amdhsa_user_sgpr_kernarg_segment_ptr 1")
    out.append("  .amdhsa_system_sgpr_workgroup_id_x 1")
    out.append(".end_amdhsa_kernel")
    open(sys.argv[1], "w").write("\n".join(out) + "\n")


main()
```
